```python
import torch

def _softmax(x, axis=-1):
    return torch.softmax(x, dim=axis)
def _gelu(x):
    return torch.nn.functional.gelu(x, approximate="tanh")
def _silu(x):
    return torch.nn.functional.silu(x)
def _sigmoid(x):
    return torch.sigmoid(x)
def _layernorm(x, axis=-1, eps=1e-5):
    m = x.mean(dim=axis, keepdim=True)
    v = x.var(dim=axis, keepdim=True, unbiased=False)
    return (x - m) / torch.sqrt(v + eps)
def _scatter_add(tgt, idx, src, axis=0):
    return tgt.clone().index_add_(axis, idx, src)
def _segment_sum(src, seg, n):
    out = torch.zeros((n,) + src.shape[1:], dtype=src.dtype)
    return out.index_add_(0, seg, src)
def _pad(x, pw):
    flat = tuple(v for pair in reversed(pw) for v in pair)
    return torch.nn.functional.pad(x, flat)

kernel_name = 'recurrent_scan__linear_attn_block__mixer_s_mlp__prompt'

def setup_inputs():

    _w = (lambda a: (lambda t: t.to(torch.bfloat16) if t.is_floating_point() else t)(torch.as_tensor(a)))
    def _A_setup():
        B, S, D = 1, 2048, 640
        return {
            "x": _w((lambda *s: torch.randn(*s, dtype=torch.bfloat16) * 0.05)(B, S, D)),
            "wqkv": _w((lambda *s: torch.randn(*s, dtype=torch.bfloat16) * 0.05)(D, 3 * D)),
            "wo": _w((lambda *s: torch.randn(*s, dtype=torch.bfloat16) * 0.05)(D, D)),
        }
    _A_in = _A_setup()

    def _B_setup():
        B, S, D, F = 1, 2048, 640, 1536
        return {
            "x":  _w((lambda *s: torch.randn(*s, dtype=torch.bfloat16) * 0.05)(B, S, D)),
            "w1": _w((lambda *s: torch.randn(*s, dtype=torch.bfloat16) * 3.2)(D, D) * (D ** -0.5)),
            "w2": _w((lambda *s: torch.randn(*s, dtype=torch.bfloat16) * 3.2)(D, D) * (D ** -0.5)),
            "w3": _w((lambda *s: torch.randn(*s, dtype=torch.bfloat16) * 3.2)(D, F) * (D ** -0.5)),
            "w4": _w((lambda *s: torch.randn(*s, dtype=torch.bfloat16) * 1.6)(F, D) * (F ** -0.5)),
        }
    _B_in = _B_setup()

    return {
        "A_x": _A_in["x"],
        "A_wqkv": _A_in["wqkv"],
        "A_wo": _A_in["wo"],
        "B_x": _B_in["x"],
        "B_w1": _B_in["w1"],
        "B_w2": _B_in["w2"],
        "B_w3": _B_in["w3"],
        "B_w4": _B_in["w4"],
    }

def reference(A_x, A_wqkv, A_wo, B_x, B_w1, B_w2, B_w3, B_w4):
    def _A_ref(x, wqkv, wo):
        B, S, D = x.shape
        H = 32; Dh = D // H
        qkv = (lambda x, *d: x.permute(*d))((x @ wqkv).reshape(B, S, 3, H, Dh), 2, 0, 3, 1, 4)
        q, k, v = qkv[0], qkv[1], qkv[2]
        phi = lambda t: torch.where(t > 0, t + 1, torch.exp(t)) + 1e-6
        pq, pk = phi(q), phi(k)
        kv = torch.einsum("bhsd,bhse->bhde", pk, v)
        z = torch.einsum("bhsd->bhd", pk)
        num = torch.einsum("bhqd,bhde->bhqe", pq, kv)
        den = torch.einsum("bhqd,bhd->bhq", pq, z)[..., None] + 1e-6
        o = num / den
        return (lambda x, *d: x.permute(*d))(o, 0, 2, 1, 3).reshape(B, S, D) @ wo

    def _B_ref(x, w1, w2, w3, w4):
        B, S, D = x.shape
        h = _gelu(_layernorm(x, axis=-1) @ w1)
        c = D // 4
        g0 = _pad(h[:, :, 0*c:1*c], ((0, 0), (1, 0), (0, 0)))[:, :S, :]
        g1 = _pad(h[:, :, 1*c:2*c], ((0, 0), (0, 1), (0, 0)))[:, 1:, :]
        g2 = _pad(h[:, :, 2*c:3*c], ((0, 0), (2, 0), (0, 0)))[:, :S, :]
        g3 = _pad(h[:, :, 3*c:   ], ((0, 0), (0, 2), (0, 0)))[:, 2:, :]
        hs = torch.concatenate([g0, g1, g2, g3], axis=-1) @ w2
        x1 = x + hs
        h2 = _gelu(_layernorm(x1, axis=-1) @ w3) @ w4
        return x1 + h2

    x = A_x
    xn = _layernorm(x, axis=-1)
    s = _A_ref(xn, A_wqkv, A_wo)
    g = _silu(_B_ref(xn, B_w1, B_w2, B_w3, B_w4))
    return x + s * g
```

```python
import re, copy

REG_RE = re.compile(r'^(-|abs\()?([vas])(?:(\d+)|\[(\d+):(\d+)\])\)?$')
TRANS = ('v_exp_f32', 'v_log_f32', 'v_rcp_f32', 'v_rsq_f32', 'v_sqrt_f32', 'v_sin_f32', 'v_cos_f32')

def regs_of(tok):
    tok = tok.strip()
    if tok in ('vcc',): return [('s', 106), ('s', 107)]
    if tok == 'exec': return [('s', 126), ('s', 127)]
    if tok == 'm0': return [('s', 124)]
    m = REG_RE.match(tok)
    if not m: return []
    f = m.group(2)
    if m.group(3) is not None: return [(f, int(m.group(3)))]
    return [(f, i) for i in range(int(m.group(4)), int(m.group(5)) + 1)]

def split_ops(s):
    out, depth, cur = [], 0, ''
    for ch in s:
        if ch in '[(': depth += 1
        if ch in '])': depth -= 1
        if ch == ',' and depth == 0:
            out.append(cur.strip()); cur = ''
        else: cur += ch
    if cur.strip(): out.append(cur.strip())
    return out

class Ins:
    __slots__ = ('text', 'op', 'wr', 'rd', 'cls', 'passes', 'srcc', 'ab', 'size', 'mods')

def parse(text):
    t = text.split(';')[0].strip()
    parts = t.split(None, 1)
    op = parts[0]
    rest = parts[1] if len(parts) > 1 else ''
    ops = split_ops(rest)
    mods = ''
    if ops:
        last = ops[-1].split(None, 1)
        if len(last) > 1 and not op.startswith('s_waitcnt'):
            ops[-1] = last[0]; mods = last[1]
    I = Ins(); I.text = text; I.op = op; I.mods = mods; I.passes = 0; I.srcc = []; I.ab = []
    R = [regs_of(o) for o in ops]
    flat = lambda x: [r for y in x for r in y]
    base = re.sub(r'_(e32|e64|dpp|sdwa)$', '', op)
    if op.startswith('v_mfma'):
        I.cls = 'mfma'; I.wr = R[0]; I.rd = flat(R[1:]); I.srcc = R[3]; I.ab = R[1] + R[2]
        I.passes = 8 if '32x32' in op else 4
    elif op.startswith('ds_read') or op.startswith('ds_bpermute') or op.startswith('ds_swizzle'):
        I.cls = 'ds'; I.wr = R[0]; I.rd = flat(R[1:])
    elif op.startswith('ds_'):
        I.cls = 'ds'; I.wr = []; I.rd = flat(R)
    elif op.startswith('buffer_load') or op.startswith('global_load'):
        I.cls = 'vmem'
        if ' lds' in (' ' + mods) or 'load_lds' in op:
            I.wr = []; I.rd = flat(R) + [('s', 124)]
        else:
            I.wr = R[0]; I.rd = flat(R[1:])
    elif op.startswith('buffer_atomic') or op.startswith('global_atomic'):
        I.cls = 'vmem'; I.rd = flat(R); I.wr = R[0] if 'sc0' in mods else []
    elif op.startswith('buffer_') or op.startswith('global_'):
        I.cls = 'vmem'; I.wr = []; I.rd = flat(R)
    elif op.startswith('s_load') or op.startswith('s_memtime') or op.startswith('s_memrealtime'):
        I.cls = 'smem'; I.wr = R[0]; I.rd = flat(R[1:])
    elif op.startswith('v_'):
        I.cls = 'valu'
        if base.startswith('v_permlane') and 'swap' in base:
            I.wr = R[0] + R[1]; I.rd = R[0] + R[1]
        elif base.startswith('v_cmp'):
            I.wr = R[0]; I.rd = flat(R[1:])
            if base.startswith('v_cmpx'): I.wr = I.wr + regs_of('exec')
        elif base in ('v_add_co_u32', 'v_sub_co_u32', 'v_addc_co_u32'):
            I.wr = R[0] + R[1]; I.rd = flat(R[2:])
        else:
            I.wr = R[0]; I.rd = flat(R[1:])
            if base in ('v_fmac_f32', 'v_dot2c_f32_bf16') or op.endswith('_dpp'): I.rd = I.rd + R[0]
    elif op.startswith('s_'):
        I.cls = 'salu'
        if op.startswith('s_cmp') or op.startswith('s_cbranch') or op in ('s_branch', 's_barrier', 's_nop', 's_waitcnt', 's_endpgm', 's_sleep', 's_setprio', 's_bitcmp1_b32', 's_bitcmp0_b32'):
            I.wr = []; I.rd = flat(R)
        else:
            I.wr = R[0] if R else []; I.rd = flat(R[1:])
            if 'saveexec' in op: I.wr = I.wr + regs_of('exec')
    else:
        raise ValueError('unknown op ' + text)
    return I

class Asm:
    def __init__(self):
        self.lines = []
        self.hist = []
        self.pos = 0
        self.vm = []
        self.lg = []
        self.smem = False
        self.nops = 0
        self.stats = {}
    def save(self): return (list(self.hist), self.pos, list(self.vm), list(self.lg), self.smem)
    def restore(self, st): self.hist, self.pos, self.vm, self.lg, self.smem = list(st[0]), st[1], list(st[2]), list(st[3]), st[4]
    def reset(self): self.hist = []; self.vm = []; self.lg = []; self.smem = False
    def raw(self, s): self.lines.append(s)
    def label(self, s): self.lines.append(s + ':')
    def comment(self, s): self.lines.append('    ; ' + s)
    def _emit(self, text, n=1):
        self.lines.append('    ' + text); self.pos += n
    def nop(self, states):
        while states > 0:
            k = min(states, 16); self._emit(f's_nop {k-1}', k); states -= k; self.nops += 1
    def waitcnt(self, vm=None, lg=None):
        s = []
        if vm is not None and vm < len(self.vm):
            s.append(f'vmcnt({min(vm,63)})'); self.vm = self.vm[len(self.vm) - min(vm,63):] if vm else []
        if lg is not None and (lg < len(self.lg) or (lg == 0 and self.smem)):
            k = min(lg, 15)
            s.append(f'lgkmcnt({k})'); self.lg = self.lg[len(self.lg) - k:] if k else []
            if k == 0: self.smem = False
        if s: self._emit('s_waitcnt ' + ' '.join(s))
    def wait_tag(self, tag):
        idx = max([i for i, (t, _) in enumerate(self.vm) if t == tag], default=None)
        if idx is not None: self.waitcnt(vm=len(self.vm) - 1 - idx)
    def wait_lds_tag(self, tag):
        idx = max([i for i, (t, _) in enumerate(self.lg) if t == tag], default=None)
        if idx is not None: self.waitcnt(lg=len(self.lg) - 1 - idx)
    def need(self, I):
        req = 0
        rd, wr = set(I.rd), set(I.wr)
        base = re.sub(r'_(e32|e64|dpp|sdwa)$', '', I.op)
        for P, ppos in self.hist:
            d = self.pos - ppos - 1
            if d >= 20: continue
            pw = set(P.wr); n = 0
            pbase = re.sub(r'_(e32|e64|dpp|sdwa)$', '', P.op)
            if P.cls == 'valu':
                vw = {r for r in pw if r[0] != 's'}; sw = {r for r in pw if r[0] == 's'}
                if I.cls == 'mfma' and vw & rd: n = max(n, 3 if pbase.startswith('v_dot') else 2)
                if pbase.startswith('v_dot') and I.cls in ('valu', 'vmem', 'ds') and (vw & (rd | wr)):
                    same_c = (pbase == base)
                    n = max(n, 0 if same_c and not (vw & set(I.rd[:-1] if base != 'v_dot2c_f32_bf16' else I.rd[:-1])) else 3)
                if I.cls == 'vmem' and sw & rd: n = max(n, 5)
                if I.cls == 'valu' and sw & rd: n = max(n, 4 if base in ('v_readlane_b32', 'v_writelane_b32') else 2)
                if I.cls == 'valu' and I.op.startswith('v_cndmask') and ('s', 106) in sw: n = max(n, 2)
                if I.cls == 'salu' and sw & rd: n = max(n, 1)
                if base in ('v_readfirstlane_b32', 'v_readlane_b32') and vw & rd: n = max(n, 1)
                if (I.op.endswith('_dpp') or base.startswith('v_permlane')) and vw & rd: n = max(n, 2)
                if pbase in TRANS and I.cls == 'valu' and base not in TRANS and vw & rd: n = max(n, 1)
                if pbase in TRANS and I.cls in ('vmem', 'ds') and vw & rd: n = max(n, 1)
                if ('s', 126) in sw:
                    if I.cls == 'mfma': n = max(n, 4)
                    if I.op.endswith('_dpp'): n = max(n, 5)
                    if base.startswith('v_permlane') or base in ('v_readfirstlane_b32', 'v_readlane_b32'): n = max(n, 4)
                if ('sdwa' in P.op or ('op_sel:' in P.mods and not P.op.startswith('v_pk'))) and I.cls == 'valu' and vw & (rd | wr): n = max(n, 1)
            elif P.cls == 'mfma':
                big = {8: 12, 4: 8}[P.passes]
                if I.cls == 'mfma':
                    if pw & set(I.ab): n = max(n, big)
                    if pw & set(I.srcc) and not (list(P.wr) == list(I.srcc) and P.passes == I.passes): n = max(n, big - 2)
                    if pw & wr and not (pw & set(I.srcc)): n = max(n, big - 2)
                elif I.cls in ('valu', 'vmem', 'ds'):
                    if pw & (rd | wr): n = max(n, big)
                    if I.cls == 'valu' and set(P.srcc) & wr: n = max(n, {8: 7, 4: 3}[P.passes])
            elif P.cls == 'salu':
                if ('s', 124) in pw and ('s', 124) in rd and I.cls in ('vmem', 'ds'): n = max(n, 1)
            elif P.cls == 'vmem':
                if ('store' in P.op) and ('x3' in P.op or 'x4' in P.op) and (set(P.rd) & wr) and I.cls == 'valu': n = max(n, 2)
            if n - d > req: req = n - d
        return req
    def __call__(self, text, tag=None):
        I = parse(text)
        touched = set(I.rd) | set(I.wr)
        vi = max([i for i, (_, r) in enumerate(self.vm) if r & touched], default=None)
        li = max([i for i, (_, r) in enumerate(self.lg) if r & touched], default=None)
        self.waitcnt(vm=None if vi is None else len(self.vm) - 1 - vi,
                     lg=None if li is None else (0 if self.smem else len(self.lg) - 1 - li))
        n = self.need(I)
        if n > 0: self.nop(n)
        self.lines.append('    ' + text)
        self.hist.append((I, self.pos)); self.pos += 1
        if len(self.hist) > 24: self.hist = self.hist[-24:]
        if I.cls == 'vmem':
            self.vm.append((tag, set(I.wr)))
            assert len(self.vm) <= 63, 'too many outstanding vmem ops: %d' % len(self.vm)
        elif I.cls == 'ds': self.lg.append((tag, set(I.wr)))
        elif I.cls == 'smem': self.lg.append((tag, set(I.wr))); self.smem = True
        self.stats[I.cls] = self.stats.get(I.cls, 0) + 1
    def barrier(self):
        self._emit('s_barrier')
    def text(self): return '\n'.join(self.lines) + '\n'

def vr(b, n=1, f='v'):
    return f'{f}{b}' if n == 1 else f'{f}[{b}:{b+n-1}]'
def ar(b, n=1): return vr(b, n, 'a')
def sr(b, n=1): return vr(b, n, 's')
```

```python
import struct, sys, math
from asmlib import *

NAME = 'recurrent_scan__linear_attn_block__mixer_s_mlp__prompt'
def f2u(x): return '0x%08x' % struct.unpack('<I', struct.pack('<f', x))[0]
LOG2E = 1.4426950408889634
GC1 = -2.0 * LOG2E * math.sqrt(2.0 / math.pi)
GC2 = GC1 * 0.044715
XN, PQ, HS, X1, OO, H2 = 0x0, 0x300000, 0x600000, 0x900000, 0xC00000, 0x1000000
KVS, CS3, R2, ST1 = 0x1800000, 0x1820000, 0x1840000, 0x1850000
WS_SIZE = 0x2000000
OOB = 0x40000000
S_X, S_WQKV, S_WO, S_W1, S_W2, S_W3, S_W4, S_OUT, S_WS = 16, 18, 20, 24, 26, 28, 30, 32, 36
SRD_WS, SRD_W, SRD_X, SRD_OUT, SRD_W2 = 40, 44, 48, 52, 56
S_WAVE = 60

def srd(A, d, base, size):
    A(f's_mov_b32 s{d}, s{base}'); A(f's_mov_b32 s{d+1}, s{base+1}')
    A(f's_mov_b32 s{d+2}, {size}'); A(f's_mov_b32 s{d+3}, 0x20000')

def prologue(A, name, nwg, code_kb):
    A.raw(f'.p2align 8\n.type {name},@function\n{name}:')
    A.reset()
    A(f's_cmp_ge_u32 s2, {nwg}')
    A(f's_cbranch_scc1 L_{name}_end')
    A('s_load_dwordx16 s[16:31], s[0:1], 0')
    A('s_load_dwordx4 s[32:35], s[0:1], 64')
    A('s_load_dwordx2 s[36:37], s[0:1], 80')
    A('s_getpc_b64 s[4:5]')
    A.label(f'L_{name}_pc')
    A('v_lshlrev_b32 v1, 7, v0')
    A(f'v_cmp_gt_u32 vcc, L_{name}_end-L_{name}_pc, v1')
    A('s_and_saveexec_b64 s[6:7], vcc')
    A(f's_cbranch_execz L_{name}_np')
    A.lines.append('    global_load_dword v2, v1, s[4:5]')
    A.label(f'L_{name}_np')
    A('s_mov_b64 exec, s[6:7]')
    A.vm.append(('pf', {('v', 2)}))
    A('v_lshrrev_b32 v1, 6, v0')
    A('v_and_b32 v0, 63, v0')
    A(f'v_readfirstlane_b32 s{S_WAVE}, v1')
    A.waitcnt(lg=0)
    srd(A, SRD_WS, S_WS, WS_SIZE)

def epilogue(A, name):
    A.label(f'L_{name}_end')
    A('s_endpgm')

def kd(name, vgpr, accum, sgpr=96):
    return f""".section .rodata,"a"
.p2align 6
.amdhsa_kernel {name}
  .amdhsa_next_free_vgpr {vgpr}
  .amdhsa_next_free_sgpr {sgpr}
  .amdhsa_accum_offset {accum}
  .amdhsa_group_segment_fixed_size 0
  .amdhsa_kernarg_size 88
  .amdhsa_user_sgpr_count 2
  .amdhsa_user_sgpr_kernarg_segment_ptr 1
  .amdhsa_system_sgpr_workgroup_id_x 1
.end_amdhsa_kernel
.text
"""

def allreduce32(A, v, t):
    A(f'v_add_f32_dpp v{v}, v{v}, v{v} quad_perm:[1,0,3,2] row_mask:0xf bank_mask:0xf')
    A(f'v_add_f32_dpp v{v}, v{v}, v{v} quad_perm:[2,3,0,1] row_mask:0xf bank_mask:0xf')
    A(f'v_add_f32_dpp v{v}, v{v}, v{v} row_half_mirror row_mask:0xf bank_mask:0xf')
    A(f'v_add_f32_dpp v{v}, v{v}, v{v} row_mirror row_mask:0xf bank_mask:0xf')
    A(f'v_mov_b32 v{t}, v{v}')
    A(f'v_permlane16_swap_b32 v{v}, v{t}')
    A(f'v_add_f32 v{v}, v{v}, v{t}')

def k0(A):
    name = 'k0_kernel'
    prologue(A, name, 256, 2)
    srd(A, SRD_X, S_X, 2048 * 1280)
    A('v_lshrrev_b32 v3, 5, v0')
    A(f's_lshl_b32 s61, s{S_WAVE}, 1')
    A('v_add_u32 v3, s61, v3')
    A('v_and_b32 v4, 31, v0')
    A('v_mul_u32_u24 v5, 1280, v3')
    A('v_lshl_add_u32 v5, v4, 4, v5')
    A('v_cmp_gt_u32 vcc, 16, v4')
    A(f'v_mov_b32 v7, {OOB}')
    A('v_cndmask_b32 v6, v7, v5, vcc')
    A('s_mul_i32 s62, s2, 10240')
    A(f'buffer_load_dwordx4 v[8:11], v5, s[{SRD_X}:{SRD_X+3}], s62 offen')
    A(f'buffer_load_dwordx4 v[12:15], v5, s[{SRD_X}:{SRD_X+3}], s62 offen offset:512')
    A(f'buffer_load_dwordx4 v[16:19], v6, s[{SRD_X}:{SRD_X+3}], s62 offen offset:1024')
    A('v_mov_b32 v44, 0'); A('v_mov_b32 v45, 0'); A('v_mov_b32 v46, 0'); A('v_mov_b32 v47, 0')
    A('v_lshlrev_b32 v48, 4, v0')
    A('s_lshl_b32 s63, s2, 10')
    A(f's_add_u32 s63, s63, {KVS}')
    A(f's_cmp_eq_u32 s{S_WAVE}, 0')
    A(f's_cselect_b32 s63, s63, {OOB}')
    A(f'buffer_store_dwordx4 v[44:47], v48, s[{SRD_WS}:{SRD_WS+3}], s63 offen')
    A('v_lshrrev_b32 v49, 1, v4')
    A('v_lshlrev_b32 v49, 8, v49')
    A('v_lshl_add_u32 v49, v3, 4, v49')
    A('v_and_b32 v50, 1, v4')
    A('v_lshl_add_u32 v49, v50, 3, v49')
    A('s_mov_b32 s64, 0xffff0000')
    for i in range(12):
        A(f'v_lshlrev_b32 v{20+2*i}, 16, v{8+i}')
        A(f'v_and_b32 v{21+2*i}, s64, v{8+i}')
    A('v_pk_add_f32 v[52:53], v[20:21], v[22:23]')
    for i in range(2, 12):
        A(f'v_pk_add_f32 v[52:53], v[52:53], v[{20+2*i}:{21+2*i}]')
    A('v_add_f32 v52, v52, v53')
    allreduce32(A, 52, 53)
    A(f'v_mul_f32 v52, {f2u(-1.0/640)}, v52')
    A('v_cndmask_b32 v54, 0, v52, vcc')
    for i in range(12):
        m = 52 if i < 8 else 54
        A(f'v_pk_add_f32 v[{20+2*i}:{21+2*i}], v[{20+2*i}:{21+2*i}], v[{m}:{m+1}] op_sel_hi:[1,0]')
    A('v_pk_mul_f32 v[56:57], v[20:21], v[20:21]')
    for i in range(1, 12):
        A(f'v_pk_fma_f32 v[56:57], v[{20+2*i}:{21+2*i}], v[{20+2*i}:{21+2*i}], v[56:57]')
    A('v_add_f32 v56, v56, v57')
    allreduce32(A, 56, 57)
    A(f'v_mul_f32 v56, {f2u(1.0/640)}, v56')
    A(f'v_add_f32 v58, {f2u(1e-5)}, v56')
    A('v_rsq_f32 v58, v58')
    A('v_mul_f32 v60, v58, v58')
    A('v_mul_f32 v60, v60, v56')
    A(f'v_add_f32 v60, {f2u(1e-5)}, v60')
    A('v_rsq_f32 v60, v60')
    for i in range(12):
        A(f'v_pk_mul_f32 v[{20+2*i}:{21+2*i}], v[{20+2*i}:{21+2*i}], v[58:59] op_sel_hi:[1,0]')
    for i in range(12):
        A(f'v_cvt_pk_bf16_f32 v{8+i}, v{20+2*i}, v{21+2*i}')
    for n in range(3):
        A(f'ds_write_b64 v49, v[{8+4*n}:{9+4*n}] offset:{4096*n}')
        A(f'ds_write_b64 v49, v[{10+4*n}:{11+4*n}] offset:{4096*n+128}')
    A('v_cmp_eq_u32 vcc, 0, v4')
    A('v_lshlrev_b32 v61, 2, v3')
    A('v_cndmask_b32 v61, v7, v61, vcc')
    A('s_lshl_b32 s65, s2, 5')
    A(f's_add_u32 s65, s65, {R2}')
    A(f'buffer_store_dword v60, v61, s[{SRD_WS}:{SRD_WS+3}], s65 offen')
    A(f's_lshl_b32 s66, s{S_WAVE}, 6')
    A('v_add_u32 v62, s66, v0')
    A('v_lshlrev_b32 v63, 4, v62')
    A('v_lshrrev_b32 v64, 3, v62')
    A('v_lshlrev_b32 v64, 9, v64')
    A('v_and_b32 v65, 7, v62')
    A('v_lshl_add_u32 v64, v65, 4, v64')
    A('s_lshr_b32 s67, s2, 2')
    A('s_mul_i32 s67, s67, 40960')
    A('s_and_b32 s68, s2, 3')
    A('s_lshl_b32 s68, s68, 7')
    A('s_add_u32 s67, s67, s68')
    A('s_add_u32 s68, s67, 16384')
    A('s_add_u32 s69, s67, 32768')
    A(f's_cmp_lt_u32 s{S_WAVE}, 2')
    A(f's_cselect_b32 s69, s69, {OOB}')
    A.waitcnt(lg=0)
    A.barrier()
    for n in range(3):
        A(f'ds_read_b128 v[{8+4*n}:{11+4*n}], v63 offset:{4096*n}')
    for n in range(3):
        A(f'buffer_store_dwordx4 v[{8+4*n}:{11+4*n}], v64, s[{SRD_WS}:{SRD_WS+3}], s{67+n} offen')
    epilogue(A, name)
    return kd(name, 72, 72), f'; @launch kernel={name} grid=(256,1,1) block=(256,1,1) lds=12800'

def gelu_pk(A, y, n, c1, c2, ir, t):
    for i in range(0, n, 2):
        A(f'v_pk_mul_f32 v[{t+i}:{t+i+1}], v[{y+i}:{y+i+1}], v[{y+i}:{y+i+1}]')
    for i in range(0, n, 2):
        A(f'v_pk_fma_f32 v[{t+i}:{t+i+1}], v[{t+i}:{t+i+1}], v[{c2}:{c2+1}], v[{c1}:{c1+1}] op_sel_hi:[1,0,0]')
    for i in range(0, n, 2):
        A(f'v_pk_mul_f32 v[{t+i}:{t+i+1}], v[{t+i}:{t+i+1}], v[{y+i}:{y+i+1}]')
    for i in range(n):
        A(f'v_exp_f32 v{t+i}, v{t+i}')
    for i in range(0, n, 2):
        A(f'v_pk_fma_f32 v[{t+i}:{t+i+1}], v[{t+i}:{t+i+1}], v[{ir}:{ir+1}], v[{ir}:{ir+1}] op_sel_hi:[1,0,0]')
    for i in range(n):
        A(f'v_rcp_f32 v{t+i}, v{t+i}')
    for i in range(0, n, 2):
        A(f'v_pk_mul_f32 v[{y+i}:{y+i+1}], v[{y+i}:{y+i+1}], v[{t+i}:{t+i+1}]')

def phi_pk(A, y, n, l2e, t):
    for i in range(0, n, 2):
        A(f'v_pk_mul_f32 v[{t+i}:{t+i+1}], v[{y+i}:{y+i+1}], v[{l2e}:{l2e+1}] op_sel_hi:[1,0]')
    for i in range(n):
        A(f'v_exp_f32_e64 v{t+i}, v{t+i} clamp')
    for i in range(n):
        A(f'v_max_f32 v{y+i}, {f2u(1e-6)}, v{y+i}')
    for i in range(0, n, 2):
        A(f'v_pk_add_f32 v[{y+i}:{y+i+1}], v[{y+i}:{y+i+1}], v[{t+i}:{t+i+1}]')

def pack(A, dst, y, n):
    for i in range(0, n, 2):
        A(f'v_cvt_pk_bf16_f32 v{dst+i//2}, v{y+i}, v{y+i+1}')

def div_magic(A, q, r, idx, d, t):
    magic = (65536 + d - 1) // d
    A(f'v_mul_u32_u24 v{q}, {magic}, v{idx}')
    A(f'v_lshrrev_b32 v{q}, 16, v{q}')
    A(f'v_mul_u32_u24 v{t}, {d}, v{q}')
    A(f'v_sub_u32 v{r}, v{idx}, v{t}')

def engine1(A, NT, nslots, ACC, WF, VW, VRD, VA, s_abase, s_wbase, s_wstep, first_c0=True, mid=None):
    RS = NT * 64; CH = 64 * RS
    NCH = 10
    per = 4 + NT
    def issue(c):
        for ks in range(4):
            s = 4 * c + ks
            so = f's{s_abase}' if c == 0 else 's70'
            if ks == 0 and c > 0: A(f's_add_u32 s70, s{s_abase}, {c*4096}')
            A(f'buffer_load_dwordx4 a[{4*s}:{4*s+3}], v{VA}, s[{SRD_WS}:{SRD_WS+3}], {so} offen offset:{ks*1024}', tag=('A', c))
        for n in range(NT):
            A(f's_add_u32 m0, s71, {(c % nslots) * CH + n * 1024}')
            A(f'buffer_load_dwordx4 v{VW+n}, s[{SRD_W}:{SRD_W+3}], s{s_wbase} offen lds', tag=('W', c))
        A(f's_add_u32 s{s_wbase}, s{s_wbase}, s{s_wstep}')
    spb = 65536 // CH
    def rd(s, t):
        c, ks = divmod(s, 4)
        slot = c % nslots
        b = WF + (s % 2) * 4 * NT + 4 * t
        off = (slot % spb) * CH + ks * 16 * RS + t * 64
        A(f'ds_read_b64_tr_b16 v[{b}:{b+1}], v{VRD + slot // spb} offset:{off}')
        A(f'ds_read_b64_tr_b16 v[{b+2}:{b+3}], v{VRD + slot // spb} offset:{off + 8 * RS}')
    A(f's_mul_i32 s71, s{S_WAVE}, {16 * RS}')
    room = 63 - len(A.vm)
    npre = min(nslots - 1 if nslots < NCH else NCH, room // per)
    for c in range(npre): issue(c)
    nxt = npre
    if mid: mid()
    A.wait_tag(('W', 0)); A.barrier()
    for t in range(NT): rd(0, t)
    for s in range(40):
        c, ks = divmod(s, 4)
        if ks == 3 and c + 1 < NCH:
            A.wait_tag(('W', c + 1)); A.barrier()
        for t in range(NT):
            b = WF + (s % 2) * 4 * NT + 4 * t
            cc = '0' if (s == 0 and first_c0) else f'v[{ACC+16*t}:{ACC+16*t+15}]'
            A(f'v_mfma_f32_32x32x16_bf16 v[{ACC+16*t}:{ACC+16*t+15}], v[{b}:{b+3}], a[{4*s}:{4*s+3}], {cc}')
            if s + 1 < 40: rd(s + 1, t)
        if ks == 3 and nxt < NCH and (nslots >= NCH or nxt - nslots <= c - 1) and len(A.vm) + per <= 63:
            issue(nxt); nxt += 1
    assert nxt == NCH

def e1_lane_setup(A, NT, VRD, nb, VA, t0):
    RS = NT * 64; CH = 64 * RS; spb = 65536 // CH
    A(f'v_bfe_u32 v{t0}, v0, 2, 2')
    A(f'v_lshrrev_b32 v{t0+1}, 5, v0')
    A(f'v_lshl_add_u32 v{t0}, v{t0+1}, 2, v{t0}')
    A(f'v_mul_u32_u24 v{t0}, {RS}, v{t0}')
    A(f'v_bfe_u32 v{t0+1}, v0, 4, 1')
    A(f'v_lshl_add_u32 v{t0}, v{t0+1}, 5, v{t0}')
    A(f'v_and_b32 v{t0+1}, 3, v0')
    A(f'v_lshl_add_u32 v{VRD}, v{t0+1}, 3, v{t0}')
    for i in range(1, nb):
        A(f'v_add_u32 v{VRD+i}, {i * spb * CH}, v{VRD}')
    A(f'v_lshlrev_b32 v{VA}, 4, v0')

def k1(A):
    name = 'k1_kernel'
    prologue(A, name, 256, 20)
    ACC, WF, VW, VRD, VA = 64, 16, 8, 4, 7
    A('s_and_b32 s61, s2, 7'); A('s_lshr_b32 s62, s2, 3')
    A('s_lshr_b32 s63, s61, 1'); A('s_lshl_b32 s63, s63, 2'); A('s_lshr_b32 s64, s62, 3'); A('s_add_u32 s63, s63, s64')
    A('s_and_b32 s64, s62, 7'); A('s_lshl_b32 s64, s64, 1'); A('s_and_b32 s65, s61, 1'); A('s_add_u32 s64, s64, s65')
    A('s_cmp_ge_u32 s64, 12')
    A(f's_cselect_b32 s{SRD_W}, s{S_W1}, s{S_WQKV}'); A(f's_cselect_b32 s{SRD_W+1}, s{S_W1+1}, s{S_WQKV+1}')
    A('s_cselect_b32 s66, 1, 3')
    A('s_cselect_b32 s67, 12, 0')
    A(f's_mul_i32 s{SRD_W+2}, s66, {640*1280}'); A(f's_mov_b32 s{SRD_W+3}, 0x20000')
    A('s_mul_i32 s66, s66, 1280')
    A('s_sub_u32 s67, s64, s67'); A('s_mul_i32 s67, s67, 320')
    A('s_mov_b32 s68, 0')
    A('s_sub_u32 s69, s64, 4')
    A('s_cmp_lt_u32 s69, 8')
    A('s_cbranch_scc0 L_k1_notkv')
    A('s_mul_i32 s67, s69, 160'); A('s_add_u32 s67, s67, 1280'); A('s_mov_b32 s68, 1120')
    A.label('L_k1_notkv')
    for n in range(5):
        A(f'v_add_u32 v56, {64*n}, v0')
        div_magic(A, 57, 58, 56, 20, 59)
        A('v_mul_lo_u32 v57, v57, s66')
        A('v_lshl_add_u32 v57, v58, 4, v57')
        A('v_cmp_lt_u32 vcc, 9, v58')
        A('v_mov_b32 v59, s68')
        A('v_cndmask_b32 v59, 0, v59, vcc')
        A(f'v_add_u32 v{VW+n}, v57, v59')
    e1_lane_setup(A, 5, VRD, 3, VA, 56)
    A(f's_lshl_b32 s72, s{S_WAVE}, 4'); A('s_mul_i32 s72, s72, s66'); A('s_add_u32 s72, s72, s67')
    A('s_lshl_b32 s73, s66, 6')
    A('s_lshl_b32 s74, s63, 2'); A(f's_add_u32 s74, s74, s{S_WAVE}')
    A('s_mul_i32 s75, s74, 40960')
    A('v_and_b32 v56, 31, v0'); A('v_lshlrev_b32 v56, 2, v56')
    A('s_lshl_b32 s76, s74, 7'); A(f's_add_u32 s76, s76, {R2}')
    A(f'buffer_load_dword v60, v56, s[{SRD_WS}:{SRD_WS+3}], s76 offen')
    engine1(A, 5, 8, ACC, WF, VW, VRD, VA, 75, 72, 73)
    T = 144
    A('s_cmp_lt_u32 s64, 4'); A('s_cbranch_scc1 L_k1_q')
    A('s_cmp_lt_u32 s64, 12'); A('s_cbranch_scc1 L_k1_kv')
    st = A.save()
    A('v_mul_f32 v58, v60, v60'); A('v_mul_f32 v58, v58, v60')
    A(f'v_mul_f32 v58, {f2u(GC2)}, v58')
    A(f'v_mul_f32 v56, {f2u(GC1)}, v60')
    A('v_rcp_f32 v62, v60')
    A('s_sub_u32 s77, s64, 12')
    A('s_lshr_b32 s78, s77, 1'); A('s_add_u32 s78, s78, 1')
    A('s_sub_u32 s79, 0, s78')
    A('s_bitcmp1_b32 s77, 0'); A('s_cselect_b32 s78, s79, s78')
    A('s_lshl_b32 s79, s74, 5'); A('s_add_u32 s79, s79, s78')
    A('v_and_b32 v16, 31, v0'); A('v_add_u32 v16, s79, v16')
    A('v_cmp_gt_u32 vcc, 2048, v16')
    A('v_and_b32 v16, 2047, v16')
    A('v_lshrrev_b32 v17, 5, v16'); A('v_mul_u32_u24 v17, 40960, v17')
    A('v_and_b32 v18, 31, v16'); A('v_lshl_add_u32 v17, v18, 4, v17')
    A('v_lshrrev_b32 v18, 5, v0'); A('v_lshl_add_u32 v17, v18, 9, v17')
    A('v_cndmask_b32 v19, 0, -1, vcc')
    A('s_mul_i32 s80, s77, 10240'); A(f's_add_u32 s80, s80, {HS}')
    for t in range(5):
        gelu_pk(A, ACC + 16 * t, 16, 56, 58, 62, T)
        d = 24 + 8 * (t % 2)
        pack(A, d, ACC + 16 * t, 16)
        for i in range(8): A(f'v_and_b32 v{d+i}, v19, v{d+i}')
        if t in (2, 4): A('s_add_u32 s80, s80, 4096')
        for hh in range(2):
            A(f'buffer_store_dwordx4 v[{d+4*hh}:{d+4*hh+3}], v17, s[{SRD_WS}:{SRD_WS+3}], s80 offen offset:{((2*t+hh)%4)*1024}')
    A('s_endpgm')
    A.label('L_k1_q'); A.restore(st)
    A(f'v_mov_b32 v56, {f2u(LOG2E)}')
    A('s_mul_i32 s80, s64, 10240'); A('s_add_u32 s80, s80, s75'); A(f's_add_u32 s80, s80, {PQ}')
    for t in range(5):
        phi_pk(A, ACC + 16 * t, 16, 56, T)
        d = 24 + 8 * (t % 2)
        pack(A, d, ACC + 16 * t, 16)
        if t in (2, 4): A('s_add_u32 s80, s80, 4096')
        for hh in range(2):
            A(f'buffer_store_dwordx4 v[{d+4*hh}:{d+4*hh+3}], v{VA}, s[{SRD_WS}:{SRD_WS+3}], s80 offen offset:{((2*t+hh)%4)*1024}')
    A('s_endpgm')
    A.label('L_k1_kv'); A.restore(st)
    A(f'v_mov_b32 v56, {f2u(LOG2E)}')
    phi_pk(A, ACC, 40, 56, T)
    pack(A, 16, ACC, 80)
    A('v_and_b32 v56, 31, v0'); A(f's_lshl_b32 s77, s{S_WAVE}, 5'); A('v_add_u32 v56, s77, v56')
    A('v_mul_u32_u24 v56, 328, v56')
    A('v_lshrrev_b32 v57, 5, v0'); A('v_lshl_add_u32 v57, v57, 3, v56')
    A('v_mov_b32 v58, 0x3f803f80'); A('v_mov_b32 v59, 0x3f803f80')
    A.waitcnt(lg=0); A.barrier()
    for u in range(20):
        A(f'ds_write_b64 v57, v[{16+2*u}:{17+2*u}] offset:{16*u}')
    A('ds_write_b64 v56, v[58:59] offset:320')
    A('v_bfe_u32 v60, v0, 2, 2'); A('v_lshrrev_b32 v61, 5, v0'); A('v_lshl_add_u32 v60, v61, 2, v60')
    A('v_mul_u32_u24 v60, 328, v60')
    A('v_bfe_u32 v61, v0, 4, 1'); A('v_and_b32 v62, 3, v0'); A('v_lshl_add_u32 v61, v61, 2, v62')
    A('v_lshlrev_b32 v62, 3, v61')
    A('v_add_u32 v63, s77, v62'); A('v_add_u32 v63, v63, v60')
    A(f's_mul_i32 s78, s{S_WAVE}, 40'); A('s_add_u32 s78, s78, 160')
    A('v_add_u32 v62, s78, v62')
    A('v_cmp_gt_u32 vcc, 5, v61')
    A('v_mov_b32 v61, 320')
    A('v_cndmask_b32 v62, v61, v62, vcc')
    A('v_add_u32 v62, v62, v60')
    A.waitcnt(lg=0); A.barrier()
    for ks in range(8):
        for t in range(2):
            A(f'ds_read_b64_tr_b16 v[{64+8*ks+2*t}:{65+8*ks+2*t}], v63 offset:{(16*ks+8*t)*328}')
            A(f'ds_read_b64_tr_b16 v[{68+8*ks+2*t}:{69+8*ks+2*t}], v62 offset:{(16*ks+8*t)*328}')
    A('v_and_b32 v16, 31, v0'); A('v_lshrrev_b32 v17, 5, v0')
    A('v_lshlrev_b32 v18, 2, v16'); A('v_lshl_add_u32 v18, v17, 9, v18')
    A(f'v_mov_b32 v19, {OOB}')
    A('v_cmp_gt_u32 vcc, 21, v16'); A('v_cndmask_b32 v18, v19, v18, vcc')
    A(f'v_subrev_u32 v17, s{S_WAVE}, v17')
    for j in range(4):
        A(f'v_add_u32 v20, {2*j}, v17')
        A('v_cmp_gt_u32 vcc, 5, v20')
        A(f'v_cndmask_b32 v{24+j}, v19, v18, vcc')
    for ks in range(8):
        cc = '0' if ks == 0 else 'v[144:159]'
        A(f'v_mfma_f32_32x32x16_bf16 v[144:159], v[{64+8*ks}:{67+8*ks}], v[{68+8*ks}:{71+8*ks}], {cc}')
    A('s_lshl_b32 s79, s69, 2'); A(f's_add_u32 s79, s79, s{S_WAVE}'); A('s_lshl_b32 s79, s79, 12'); A(f's_add_u32 s79, s79, {KVS}')
    for r in range(16):
        j, i = divmod(r, 4)
        A(f'buffer_atomic_add_f32 v{144+r}, v{24+j}, s[{SRD_WS}:{SRD_WS+3}], s79 offen offset:{(8*j+i)*128}')
    epilogue(A, name)
    return kd(name, 192 + 160, 192), f'; @launch kernel={name} grid=(256,1,1) block=(256,1,1) lds=163840'

def e2_setup(A, VW, VRD, VA, t0):
    for n in range(5):
        A(f'v_add_u32 v{t0}, {64*n}, v0')
        div_magic(A, t0 + 1, t0 + 2, t0, 10, t0 + 3)
        A(f'v_mul_u32_u24 v{t0+1}, 1280, v{t0+1}')
        A(f'v_lshl_add_u32 v{VW+n}, v{t0+2}, 4, v{t0+1}')
    A(f'v_bfe_u32 v{t0}, v0, 2, 3')
    A(f'v_lshrrev_b32 v{t0+1}, 5, v0')
    A(f'v_lshl_add_u32 v{t0}, v{t0+1}, 4, v{t0}')
    A(f'v_mul_u32_u24 v{t0}, 160, v{t0}')
    A(f'v_and_b32 v{t0+1}, 3, v0')
    A(f'v_lshl_add_u32 v{t0}, v{t0+1}, 3, v{t0}')
    A(f's_lshr_b32 s81, s{S_WAVE}, 1')
    A(f's_and_b32 s82, s{S_WAVE}, 1')
    A('s_mul_i32 s83, s81, 10240')
    A(f'v_add_u32 v{VRD}, s83, v{t0}')
    A(f'v_add_u32 v{VRD+1}, 61440, v{VRD}')
    A(f'v_add_u32 v{VRD+2}, 61440, v{VRD+1}')
    A(f'v_lshrrev_b32 v{t0}, 4, v0'); A(f'v_lshlrev_b32 v{t0}, 9, v{t0}')
    A(f'v_and_b32 v{t0+1}, 15, v0'); A(f'v_lshl_add_u32 v{t0}, v{t0+1}, 4, v{t0}')
    A('s_lshl_b32 s83, s81, 8')
    A(f'v_add_u32 v{VA}, s83, v{t0}')
    A(f'v_xor_b32 v{VA+1}, 256, v{VA}')
    A(f's_mul_i32 s71, s{S_WAVE}, 5120')

def engine2(A, segs, WF, VW, VRD, VA, NPRE=6, mid=None):
    chunks = [(sg, i) for sg in segs for i in range(sg['nch'])]
    N = len(chunks); nslots = 8
    def issue(c):
        sg, i = chunks[c]
        for st in range(2):
            for u in range(2):
                b = 16 * (c % 8) + 8 * st + 4 * u
                A(f'buffer_load_dwordx4 a[{b}:{b+3}], v{VA+u}, s[{SRD_WS}:{SRD_WS+3}], s{sg["s_a"]} offen offset:{st*2048}', tag=('A', c))
        A(f's_add_u32 s{sg["s_a"]}, s{sg["s_a"]}, 4096')
        for n in range(5):
            A(f's_add_u32 m0, s71, {(c % nslots) * 20480 + n * 1024}')
            A(f'buffer_load_dwordx4 v{VW+n}, s[{sg["srd"]}:{sg["srd"]+3}], s{sg["s_w"]} offen lds', tag=('W', c))
        A(f's_add_u32 s{sg["s_w"]}, s{sg["s_w"]}, {64*1280}')
    def rd(S, f):
        c, st = divmod(S, 2)
        slot = c % nslots
        b = WF + (S % 2) * 20 + 4 * f
        off = (slot % 3) * 20480 + st * 5120 + f * 32
        A(f'ds_read_b64_tr_b16 v[{b}:{b+1}], v{VRD + slot // 3} offset:{off}')
        A(f'ds_read_b64_tr_b16 v[{b+2}:{b+3}], v{VRD + slot // 3} offset:{off + 8 * 160}')
    npre = min(N, NPRE, (63 - len(A.vm)) // 9)
    for c in range(npre): issue(c)
    nxt = npre
    if mid: mid()
    A.wait_tag(('W', 0)); A.barrier()
    for f in range(5): rd(0, f)
    for S in range(2 * N):
        c, st = divmod(S, 2)
        sg, i = chunks[c]
        if st == 1 and c + 1 < N:
            A.wait_tag(('W', c + 1)); A.barrier()
        for f in range(5):
            b = WF + (S % 2) * 20 + 4 * f
            for u in range(2):
                acc = sg['acc'] + 20 * u + 4 * f
                first = (i == 0 and st == 0)
                cc = '0' if (first and not (sg.get('init') and u == 0)) else f'v[{acc}:{acc+3}]'
                ab = 16 * (c % 8) + 8 * st + 4 * u
                A(f'v_mfma_f32_16x16x32_bf16 v[{acc}:{acc+3}], v[{b}:{b+3}], a[{ab}:{ab+3}], {cc}')
            if S + 1 < 2 * N: rd(S + 1, f)
        if st == 1 and nxt < N and nxt - nslots <= c - 1 and len(A.vm) + 9 <= 63:
            issue(nxt); nxt += 1
    assert nxt == N

def e2_reduce(A, accs, VX, t):
    A(f'v_lshlrev_b32 v{VX}, 4, v0')
    A(f's_mul_i32 s83, s{S_WAVE}, {5120*len(accs)}')
    A(f's_xor_b32 s84, s{S_WAVE}, 2'); A(f's_mul_i32 s84, s84, {5120*len(accs)}')
    A(f'v_add_u32 v{VX+1}, s84, v{VX}'); A(f'v_add_u32 v{VX}, s83, v{VX}')
    A.waitcnt(lg=0); A.barrier()
    for k, acc in enumerate(accs):
        for f in range(5):
            A(f'ds_write_b128 v{VX}, v[{acc+20+4*f}:{acc+23+4*f}] offset:{k*5120+f*1024}')
    A.waitcnt(lg=0); A.barrier()
    for k, acc in enumerate(accs):
        for f in range(5):
            A(f'ds_read_b128 v[{t+20*k+4*f}:{t+20*k+4*f+3}], v{VX+1} offset:{k*5120+f*1024}')
    for k, acc in enumerate(accs):
        for i in range(0, 20, 2):
            A(f'v_pk_add_f32 v[{acc+i}:{acc+i+1}], v[{acc+i}:{acc+i+1}], v[{t+20*k+i}:{t+20*k+i+1}]')

def e2_map(A):
    A('s_and_b32 s61, s2, 7'); A('s_lshr_b32 s62, s2, 3')
    A('s_lshr_b32 s63, s61, 1'); A('s_lshl_b32 s63, s63, 3'); A('s_lshr_b32 s64, s62, 2'); A('s_add_u32 s63, s63, s64')
    A('s_and_b32 s64, s62, 3'); A('s_lshl_b32 s64, s64, 1'); A('s_and_b32 s65, s61, 1'); A('s_add_u32 s64, s64, s65')

def e2_dlayout_voff(A, v, t):
    A(f'v_bfe_u32 v{t}, v0, 4, 1'); A(f'v_lshlrev_b32 v{t}, 9, v{t}')
    A(f'v_and_b32 v{v}, 15, v0'); A(f'v_lshl_add_u32 v{t}, v{v}, 4, v{t}')
    A(f'v_lshrrev_b32 v{v}, 5, v0'); A(f'v_lshl_add_u32 v{t}, v{v}, 3, v{t}')
    A('s_lshl_b32 s83, s81, 8')
    A(f'v_add_u32 v{v}, s83, v{t}')

def unpack_init(A, acc, src):
    A('s_mov_b32 s85, 0xffff0000')
    for i in range(10):
        A(f'v_lshlrev_b32 v{acc+2*i}, 16, v{src+i}')
        A(f'v_and_b32 v{acc+2*i+1}, s85, v{src+i}')

def k2(A):
    name = 'k2_kernel'
    prologue(A, name, 256, 10)
    ACC, WF, VW, VRD, VA = 64, 16, 8, 4, 14
    e2_map(A)
    srd(A, SRD_W, S_W2, 640 * 1280)
    srd(A, SRD_W2, S_W3, 640 * 3072)
    e2_setup(A, VW, VRD, VA, 56)
    A('s_lshl_b32 s74, s63, 1'); A('s_add_u32 s74, s74, s82')
    A('s_mul_i32 s75, s74, 40960')
    A('s_mul_i32 s76, s81, 20480'); A('s_add_u32 s76, s76, s75'); A(f's_add_u32 s76, s76, {HS}')
    A('s_mul_i32 s77, s81, 320'); A('s_lshl_b32 s78, s82, 5'); A('s_add_u32 s77, s77, s78'); A('s_mul_i32 s77, s77, 1280')
    A('s_mul_i32 s78, s64, 160'); A('s_add_u32 s77, s77, s78')
    e2_dlayout_voff(A, 13, 56)
    A('s_mul_i32 s78, s64, 5120'); A('s_add_u32 s78, s78, s75')
    A('s_add_u32 s79, s78, 4096')
    for f in range(5):
        A(f'buffer_load_dwordx2 v[{104+2*f}:{105+2*f}], v13, s[{SRD_WS}:{SRD_WS+3}], s{78 if f<4 else 79} offen offset:{(f%4)*1024}')
    def mid():
        unpack_init(A, ACC, 104)
    engine2(A, [dict(nch=5, srd=SRD_W, s_a=76, s_w=77, acc=ACC, init=True)], WF, VW, VRD, VA, mid=mid)
    A('s_lshl_b32 s86, s64, 2'); A(f's_add_u32 s86, s86, s{S_WAVE}')
    A('s_lshl_b32 s87, s86, 12'); A(f's_add_u32 s87, s87, {KVS}')
    A('v_and_b32 v56, 31, v0'); A('v_min_u32 v56, 20, v56'); A('v_lshlrev_b32 v56, 2, v56')
    A('v_lshrrev_b32 v57, 5, v0'); A('v_lshl_add_u32 v56, v57, 9, v56')
    for r in range(16):
        j, i = divmod(r, 4)
        A(f'buffer_load_dword v{128+r}, v56, s[{SRD_WS}:{SRD_WS+3}], s87 offen offset:{(8*j+i)*128}')
    A('v_lshlrev_b32 v58, 4, v0')
    A('s_mul_i32 s88, s63, 81920'); A('s_mul_i32 s89, s64, 5'); A(f's_add_u32 s89, s89, s{S_WAVE}'); A('s_lshl_b32 s89, s89, 10')
    A('s_add_u32 s89, s89, s88'); A(f's_add_u32 s89, s89, {PQ}'); A('s_add_u32 s90, s89, 40960')
    for tt in range(2):
        for a_ in range(2):
            b = 144 + 8 * tt + 4 * a_
            A(f'buffer_load_dwordx4 v[{b}:{b+3}], v58, s[{SRD_WS}:{SRD_WS+3}], s{89+tt} offen offset:{a_*1024}')
    A('s_mul_i32 s91, s2, 2731'); A('s_lshr_b32 s91, s91, 16')
    A('s_mul_i32 s92, s91, 24'); A('s_sub_u32 s92, s2, s92')
    A('s_lshl_b32 s93, s91, 2'); A(f's_add_u32 s93, s93, s{S_WAVE}'); A(f's_mul_i32 s93, s93, {16*3072}')
    A('s_lshl_b32 s94, s92, 7'); A('s_add_u32 s93, s93, s94')
    A('v_lshrrev_b32 v59, 3, v0'); A('v_mul_u32_u24 v59, 3072, v59'); A('v_and_b32 v60, 7, v0'); A('v_lshl_add_u32 v59, v60, 4, v59')
    A(f's_lshl_b32 s94, s{S_WAVE}, 11'); A(f's_add_u32 s94, s94, {104*1024}')
    A('s_mov_b32 m0, s94')
    A(f'buffer_load_dwordx4 v59, s[{SRD_W2}:{SRD_W2+3}], s93 offen lds', tag='cs')
    A('s_add_u32 m0, s94, 1024'); A(f's_add_u32 s93, s93, {8*3072}')
    A(f'buffer_load_dwordx4 v59, s[{SRD_W2}:{SRD_W2+3}], s93 offen lds', tag='cs')
    e2_reduce(A, [ACC], 60, 104)
    pack(A, 16, ACC, 20)
    A(f's_add_u32 s78, s78, {X1}'); A(f's_add_u32 s79, s79, {X1}')
    for f in range(5):
        A(f'buffer_store_dwordx2 v[{16+2*f}:{17+2*f}], v13, s[{SRD_WS}:{SRD_WS+3}], s{78 if f<4 else 79} offen offset:{(f%4)*1024}')
    A('v_mov_b32 v26, 0x3f803f80'); A('v_mov_b32 v28, 0'); A('v_mov_b32 v29, 0')
    for i in range(10):
        A(f'v_dot2c_f32_bf16 v28, v{16+i}, v26')
        A(f'v_dot2c_f32_bf16 v29, v{16+i}, v{16+i}')
    for sw in ('v_permlane16_swap_b32', 'v_permlane32_swap_b32'):
        A('v_mov_b32 v30, v28'); A('v_mov_b32 v31, v29')
        A(f'{sw} v28, v30'); A(f'{sw} v29, v31')
        A('v_add_f32 v28, v28, v30'); A('v_add_f32 v29, v29, v31')
    A('v_lshlrev_b32 v30, 3, v0'); A(f'v_mov_b32 v31, {OOB}')
    A('v_cmp_gt_u32 vcc, 16, v0'); A('v_cndmask_b32 v30, v31, v30, vcc')
    A('s_lshl_b32 s83, s74, 1'); A('s_add_u32 s83, s83, s81'); A('s_lshl_b32 s83, s83, 7')
    A('s_lshl_b32 s84, s64, 14'); A('s_add_u32 s83, s83, s84'); A(f's_add_u32 s83, s83, {ST1}')
    A(f'buffer_store_dwordx2 v[28:29], v30, s[{SRD_WS}:{SRD_WS+3}], s83 offen')
    pack(A, 32, 128, 16)
    for tt in range(2):
        d = 64 + 16 * tt
        A(f'v_mfma_f32_32x32x16_bf16 v[{d}:{d+15}], v[32:35], v[{144+8*tt}:{147+8*tt}], 0')
        A(f'v_mfma_f32_32x32x16_bf16 v[{d}:{d+15}], v[36:39], v[{148+8*tt}:{151+8*tt}], v[{d}:{d+15}]')
    A('v_bfe_u32 v40, v0, 2, 2'); A('v_lshrrev_b32 v41, 5, v0'); A('v_lshl_add_u32 v40, v41, 2, v40'); A('v_lshlrev_b32 v40, 7, v40')
    A('v_bfe_u32 v41, v0, 4, 1'); A('v_lshl_add_u32 v40, v41, 5, v40'); A('v_and_b32 v41, 3, v0'); A('v_lshl_add_u32 v40, v41, 3, v40')
    A('v_add_u32 v40, s94, v40')
    A.wait_tag('cs')
    for t in range(2):
        A(f'ds_read_b64_tr_b16 v[{44+4*t}:{45+4*t}], v40 offset:{64*t}')
        A(f'ds_read_b64_tr_b16 v[{46+4*t}:{47+4*t}], v40 offset:{64*t+1024}')
    for i in range(4): A(f'v_mov_b32 v{52+i}, 0x3f803f80')
    A(f's_mul_i32 s83, s{S_WAVE}, 5')
    A('v_lshrrev_b32 v41, 5, v0'); A('v_add_u32 v41, s83, v41')
    A('v_and_b32 v42, 31, v0'); A('v_lshlrev_b32 v42, 4, v42')
    for j in range(3):
        A(f'v_add_u32 v43, {2*j}, v41')
        A(f'v_lshrrev_b32 v{56+j}, 2, v43'); A(f'v_lshl_add_u32 v{56+j}, v{56+j}, 10, v42')
        A('v_and_b32 v59, 1, v43'); A(f'v_lshl_add_u32 v{56+j}, v59, 9, v{56+j}')
        A('v_bfe_u32 v59, v43, 1, 1'); A(f'v_lshl_add_u32 v{56+j}, v59, 3, v{56+j}')
    A('v_cmp_gt_u32 vcc, 32, v0'); A('v_cndmask_b32 v58, v31, v58, vcc')
    for t in range(2):
        d = 128 + 16 * t
        A(f'v_mfma_f32_32x32x16_bf16 v[{d}:{d+15}], v[52:55], v[{44+4*t}:{47+4*t}], 0')
    A('s_mul_i32 s83, s64, 5120'); A('s_add_u32 s83, s83, s88'); A(f's_add_u32 s83, s83, {OO}'); A('s_add_u32 s84, s83, 40960')
    for tt in range(2):
        d = 64 + 16 * tt
        A(f'v_add_f32 v{d+12}, {f2u(1e-6)}, v{d+12}')
        A(f'v_rcp_f32 v{d+12}, v{d+12}')
        for i in range(0, 12, 2):
            A(f'v_pk_mul_f32 v[{d+i}:{d+i+1}], v[{d+i}:{d+i+1}], v[{d+12}:{d+13}] op_sel_hi:[1,0]')
        pack(A, 16 + 6 * tt, d, 12)
        for j in range(3):
            A(f'buffer_store_dwordx2 v[{16+6*tt+2*j}:{17+6*tt+2*j}], v{56+j}, s[{SRD_WS}:{SRD_WS+3}], s{83+tt} offen')
    A('v_cndmask_b32 v128, v144, v128, vcc')
    A('v_lshlrev_b32 v40, 2, v0')
    A('s_lshl_b32 s83, s92, 8'); A(f's_add_u32 s83, s83, {CS3}')
    A(f'buffer_atomic_add_f32 v128, v40, s[{SRD_WS}:{SRD_WS+3}], s83 offen')
    epilogue(A, name)
    return kd(name, 160 + 128, 160), f'; @launch kernel={name} grid=(256,1,1) block=(256,1,1) lds={112*1024}'

def k3(A):
    name = 'k3_kernel'
    prologue(A, name, 256, 10)
    ACC, WF, VW, VRD, VA = 64, 16, 8, 4, 7
    A('s_and_b32 s61, s2, 7'); A('s_lshr_b32 s62, s2, 3')
    A('s_lshr_b32 s63, s61, 1'); A('s_lshl_b32 s63, s63, 2'); A('s_lshr_b32 s64, s62, 3'); A('s_add_u32 s63, s63, s64')
    A('s_and_b32 s64, s62, 7'); A('s_and_b32 s65, s61, 1'); A('s_lshl_b32 s65, s65, 3'); A('s_add_u32 s64, s64, s65')
    srd(A, SRD_W, S_W3, 640 * 3072)
    for n in range(3):
        A(f'v_add_u32 v56, {64*n}, v0')
        div_magic(A, 57, 58, 56, 12, 59)
        A('v_mul_u32_u24 v57, 3072, v57')
        A(f'v_lshl_add_u32 v{VW+n}, v58, 4, v57')
    e1_lane_setup(A, 3, VRD, 2, VA, 56)
    A(f's_mul_i32 s72, s{S_WAVE}, {16*3072}'); A('s_mul_i32 s67, s64, 192'); A('s_add_u32 s72, s72, s67')
    A(f's_mov_b32 s73, {64*3072}')
    A('s_lshl_b32 s74, s63, 2'); A(f's_add_u32 s74, s74, s{S_WAVE}')
    A('s_mul_i32 s75, s74, 40960'); A(f's_add_u32 s75, s75, {X1}')
    A('v_and_b32 v56, 31, v0'); A('v_lshlrev_b32 v56, 3, v56'); A('v_lshrrev_b32 v57, 5, v0'); A('v_lshl_add_u32 v56, v57, 16, v56')
    A('s_lshl_b32 s76, s74, 8'); A(f's_add_u32 s76, s76, {ST1}')
    for p in range(4):
        A(f'buffer_load_dwordx2 v[{40+2*p}:{41+2*p}], v56, s[{SRD_WS}:{SRD_WS+3}], s76 offen')
        if p < 3: A('s_add_u32 s76, s76, 16384')
    A('v_lshlrev_b32 v57, 4, v57')
    A('s_mul_i32 s77, s64, 384'); A(f's_add_u32 s77, s77, {CS3}')
    for u in range(12):
        A(f'buffer_load_dwordx4 v[{ACC+4*u}:{ACC+4*u+3}], v57, s[{SRD_WS}:{SRD_WS+3}], s77 offen offset:{32*u}')
    def mid():
        A('v_pk_add_f32 v[40:41], v[40:41], v[42:43]'); A('v_pk_add_f32 v[44:45], v[44:45], v[46:47]')
        A('v_pk_add_f32 v[40:41], v[40:41], v[44:45]')
        A('v_mov_b32 v42, v40'); A('v_mov_b32 v43, v41')
        A('v_permlane32_swap_b32 v40, v42'); A('v_permlane32_swap_b32 v41, v43')
        A('v_pk_add_f32 v[40:41], v[40:41], v[42:43]')
        A(f'v_mul_f32 v40, {f2u(-1.0/640)}, v40')
        A(f'v_mul_f32 v41, {f2u(1.0/640)}, v41')
        A('v_fma_f32 v41, -v40, v40, v41')
        A('v_max_f32 v41, 0, v41')
        A(f'v_add_f32 v41, {f2u(1e-5)}, v41')
        A('v_rsq_f32 v60, v41'); A('v_sqrt_f32 v62, v41')
        for i in range(0, 48, 2):
            A(f'v_pk_mul_f32 v[{ACC+i}:{ACC+i+1}], v[{ACC+i}:{ACC+i+1}], v[40:41] op_sel_hi:[1,0]')
        A('v_mul_f32 v58, v60, v60'); A('v_mul_f32 v58, v58, v60')
        A(f'v_mul_f32 v58, {f2u(GC2)}, v58'); A(f'v_mul_f32 v56, {f2u(GC1)}, v60')
    engine1(A, 3, 10, ACC, WF, VW, VRD, VA, 75, 72, 73, first_c0=False, mid=mid)
    A(f's_mul_i32 s80, s74, {96*1024}'); A('s_mul_i32 s81, s64, 6144'); A('s_add_u32 s80, s80, s81'); A(f's_add_u32 s80, s80, {H2}')
    for t in range(3):
        gelu_pk(A, ACC + 16 * t, 16, 56, 58, 62, 112)
        d = 24 + 8 * (t % 2)
        pack(A, d, ACC + 16 * t, 16)
        if t == 2: A('s_add_u32 s80, s80, 4096')
        for hh in range(2):
            A(f'buffer_store_dwordx4 v[{d+4*hh}:{d+4*hh+3}], v{VA}, s[{SRD_WS}:{SRD_WS+3}], s80 offen offset:{((2*t+hh)%4)*1024}')
    epilogue(A, name)
    return kd(name, 128 + 160, 128), f'; @launch kernel={name} grid=(256,1,1) block=(256,1,1) lds={120*1024}'

def k4(A):
    name = 'k4_kernel'
    prologue(A, name, 256, 16)
    ACS, ACB, WF, VW, VRD, VA = 64, 104, 16, 8, 4, 14
    e2_map(A)
    srd(A, SRD_W, S_WO, 640 * 1280)
    srd(A, SRD_W2, S_W4, 1536 * 1280)
    srd(A, SRD_X, S_X, 2048 * 1280)
    srd(A, SRD_OUT, S_OUT, 2048 * 1280)
    e2_setup(A, VW, VRD, VA, 56)
    A('s_lshl_b32 s74, s63, 1'); A('s_add_u32 s74, s74, s82')
    A('s_mul_i32 s75, s74, 40960')
    A('s_mul_i32 s76, s81, 20480'); A('s_add_u32 s76, s76, s75'); A(f's_add_u32 s76, s76, {OO}')
    A('s_mul_i32 s78, s64, 160')
    A('s_mul_i32 s77, s81, 320'); A('s_lshl_b32 s79, s82, 5'); A('s_add_u32 s77, s77, s79'); A('s_mul_i32 s77, s77, 1280'); A('s_add_u32 s77, s77, s78')
    A(f's_mul_i32 s86, s74, {96*1024}'); A(f's_mul_i32 s87, s81, {48*1024}'); A('s_add_u32 s86, s86, s87'); A(f's_add_u32 s86, s86, {H2}')
    A('s_mul_i32 s87, s81, 768'); A('s_add_u32 s87, s87, s79'); A('s_mul_i32 s87, s87, 1280'); A('s_add_u32 s87, s87, s78')
    e2_dlayout_voff(A, 13, 56)
    A('s_mul_i32 s88, s64, 5120'); A('s_add_u32 s88, s88, s75'); A(f's_add_u32 s88, s88, {X1}'); A('s_add_u32 s89, s88, 4096')
    for f in range(5):
        A(f'buffer_load_dwordx2 v[{144+2*f}:{145+2*f}], v13, s[{SRD_WS}:{SRD_WS+3}], s{88 if f<4 else 89} offen offset:{(f%4)*1024}')
    A(f'v_mov_b32 v56, {OOB}'); A('v_cmp_gt_u32 vcc, 32, v0'); A(f'v_cndmask_b32 v7, v56, v{VW+2}, vcc')
    A('s_lshl_b32 s90, s74, 1'); A('s_add_u32 s90, s90, s81'); A(f's_mul_i32 s90, s90, {16*1280}'); A('s_add_u32 s90, s90, s78')
    for n in range(3):
        A(f'buffer_load_dwordx4 v[{156+4*n}:{159+4*n}], v{VW+n if n<2 else 7}, s[{SRD_X}:{SRD_X+3}], s90 offen')
    def mid():
        unpack_init(A, ACB, 144)
    engine2(A, [dict(nch=5, srd=SRD_W, s_a=76, s_w=77, acc=ACS), dict(nch=12, srd=SRD_W2, s_a=86, s_w=87, acc=ACB, init=True)], WF, VW, VRD, VA, mid=mid)
    e2_reduce(A, [ACS, ACB], 60, 16)
    A(f'v_mov_b32 v56, {f2u(-LOG2E)}')
    T = 16
    for i in range(0, 20, 2): A(f'v_pk_mul_f32 v[{T+i}:{T+i+1}], v[{ACB+i}:{ACB+i+1}], v[56:57] op_sel_hi:[1,0]')
    for i in range(20): A(f'v_exp_f32 v{T+i}, v{T+i}')
    for i in range(0, 20, 2): A(f'v_pk_add_f32 v[{T+i}:{T+i+1}], v[{T+i}:{T+i+1}], 1.0 op_sel_hi:[1,0]')
    for i in range(20): A(f'v_rcp_f32 v{T+i}, v{T+i}')
    for i in range(0, 20, 2): A(f'v_pk_mul_f32 v[{ACB+i}:{ACB+i+1}], v[{ACB+i}:{ACB+i+1}], v[{ACS+i}:{ACS+i+1}]')
    for i in range(0, 20, 2): A(f'v_pk_mul_f32 v[{ACB+i}:{ACB+i+1}], v[{ACB+i}:{ACB+i+1}], v[{T+i}:{T+i+1}]')
    A('v_and_b32 v58, 15, v0'); A('v_mul_u32_u24 v58, 336, v58'); A('v_lshrrev_b32 v59, 4, v0'); A('v_lshl_add_u32 v58, v59, 4, v58')
    A(f's_lshl_b32 s83, s{S_WAVE}, 13'); A('s_add_u32 s83, s83, 65536'); A('v_add_u32 v58, s83, v58')
    for f in range(5):
        A(f'ds_write_b128 v58, v[{ACB+4*f}:{ACB+4*f+3}] offset:{64*f}')
    for n in range(3):
        A(f'v_add_u32 v60, {64*n}, v0')
        div_magic(A, 61, 62, 60, 10, 63)
        A('v_mul_u32_u24 v61, 336, v61'); A('v_lshl_add_u32 v61, v62, 5, v61'); A(f'v_add_u32 v{40+n}, s83, v61')
    A.waitcnt(lg=0)
    for n in range(3):
        A(f'ds_read_b128 v[{64+8*n}:{67+8*n}], v{40+n}')
        A(f'ds_read_b128 v[{68+8*n}:{71+8*n}], v{40+n} offset:16')
    A('s_mov_b32 s85, 0xffff0000')
    for n in range(3):
        for i in range(4):
            A(f'v_lshlrev_b32 v{16+2*i}, 16, v{156+4*n+i}'); A(f'v_and_b32 v{17+2*i}, s85, v{156+4*n+i}')
        for i in range(4):
            A(f'v_pk_add_f32 v[{64+8*n+2*i}:{65+8*n+2*i}], v[{64+8*n+2*i}:{65+8*n+2*i}], v[{16+2*i}:{17+2*i}]')
        pack(A, 24 + 4 * n, 64 + 8 * n, 8)
        A(f'buffer_store_dwordx4 v[{24+4*n}:{27+4*n}], v{VW+n if n<2 else 7}, s[{SRD_OUT}:{SRD_OUT+3}], s90 offen')
    epilogue(A, name)
    return kd(name, 168 + 128, 168), f'; @launch kernel={name} grid=(256,1,1) block=(256,1,1) lds=163840'

def main(out):
    hdr = open('cdna_kernels/' + NAME + '.s.ref').read().split('; Override launch')[0]
    body = []; launches = []
    for k in (k0, k1, k2, k3, k4):
        A = Asm()
        kdt, launch = k(A)
        body.append(A.text() + kdt); launches.append(launch)
        print(k.__name__, A.stats, 'nops', A.nops, file=sys.stderr)
    txt = hdr + '\n'.join(launches) + '\n.amdgcn_target "amdgcn-amd-amdhsa--gfx950"\n.text\n' + ''.join(body)
    open(out, 'w').write(txt)

if __name__ == '__main__':
    main(sys.argv[1] if len(sys.argv) > 1 else 'cdna_kernels/' + NAME + '.s')
```

```python
import re, copy

REG_RE = re.compile(r'^(-|abs\()?([vas])(?:(\d+)|\[(\d+):(\d+)\])\)?$')
TRANS = ('v_exp_f32', 'v_log_f32', 'v_rcp_f32', 'v_rsq_f32', 'v_sqrt_f32', 'v_sin_f32', 'v_cos_f32')

def regs_of(tok):
    tok = tok.strip()
    if tok in ('vcc',): return [('s', 106), ('s', 107)]
    if tok == 'exec': return [('s', 126), ('s', 127)]
    if tok == 'm0': return [('s', 124)]
    m = REG_RE.match(tok)
    if not m: return []
    f = m.group(2)
    if m.group(3) is not None: return [(f, int(m.group(3)))]
    return [(f, i) for i in range(int(m.group(4)), int(m.group(5)) + 1)]

def split_ops(s):
    out, depth, cur = [], 0, ''
    for ch in s:
        if ch in '[(': depth += 1
        if ch in '])': depth -= 1
        if ch == ',' and depth == 0:
            out.append(cur.strip()); cur = ''
        else: cur += ch
    if cur.strip(): out.append(cur.strip())
    return out

class Ins:
    __slots__ = ('text', 'op', 'wr', 'rd', 'cls', 'passes', 'srcc', 'ab', 'size', 'mods')

def parse(text):
    t = text.split(';')[0].strip()
    parts = t.split(None, 1)
    op = parts[0]
    rest = parts[1] if len(parts) > 1 else ''
    ops = split_ops(rest)
    mods = ''
    if ops:
        last = ops[-1].split(None, 1)
        if len(last) > 1 and not op.startswith('s_waitcnt'):
            ops[-1] = last[0]; mods = last[1]
    I = Ins(); I.text = text; I.op = op; I.mods = mods; I.passes = 0; I.srcc = []; I.ab = []
    R = [regs_of(o) for o in ops]
    flat = lambda x: [r for y in x for r in y]
    base = re.sub(r'_(e32|e64|dpp|sdwa)$', '', op)
    if op.startswith('v_mfma'):
        I.cls = 'mfma'; I.wr = R[0]; I.rd = flat(R[1:]); I.srcc = R[3]; I.ab = R[1] + R[2]
        I.passes = 8 if '32x32' in op else 4
    elif op.startswith('ds_read') or op.startswith('ds_bpermute') or op.startswith('ds_swizzle'):
        I.cls = 'ds'; I.wr = R[0]; I.rd = flat(R[1:])
    elif op.startswith('ds_'):
        I.cls = 'ds'; I.wr = []; I.rd = flat(R)
    elif op.startswith('buffer_load') or op.startswith('global_load'):
        I.cls = 'vmem'
        if ' lds' in (' ' + mods) or 'load_lds' in op:
            I.wr = []; I.rd = flat(R) + [('s', 124)]
        else:
            I.wr = R[0]; I.rd = flat(R[1:])
    elif op.startswith('buffer_atomic') or op.startswith('global_atomic'):
        I.cls = 'vmem'; I.rd = flat(R); I.wr = R[0] if 'sc0' in mods else []
    elif op.startswith('buffer_') or op.startswith('global_'):
        I.cls = 'vmem'; I.wr = []; I.rd = flat(R)
    elif op.startswith('s_load') or op.startswith('s_memtime') or op.startswith('s_memrealtime'):
        I.cls = 'smem'; I.wr = R[0]; I.rd = flat(R[1:])
    elif op.startswith('v_'):
        I.cls = 'valu'
        if base.startswith('v_permlane') and 'swap' in base:
            I.wr = R[0] + R[1]; I.rd = R[0] + R[1]
        elif base.startswith('v_cmp'):
            I.wr = R[0]; I.rd = flat(R[1:])
            if base.startswith('v_cmpx'): I.wr = I.wr + regs_of('exec')
        elif base in ('v_add_co_u32', 'v_sub_co_u32', 'v_addc_co_u32'):
            I.wr = R[0] + R[1]; I.rd = flat(R[2:])
        else:
            I.wr = R[0]; I.rd = flat(R[1:])
            if base in ('v_fmac_f32', 'v_dot2c_f32_bf16') or op.endswith('_dpp'): I.rd = I.rd + R[0]
    elif op.startswith('s_'):
        I.cls = 'salu'
        if op.startswith('s_cmp') or op.startswith('s_cbranch') or op in ('s_branch', 's_barrier', 's_nop', 's_waitcnt', 's_endpgm', 's_sleep', 's_setprio', 's_bitcmp1_b32', 's_bitcmp0_b32'):
            I.wr = []; I.rd = flat(R)
        else:
            I.wr = R[0] if R else []; I.rd = flat(R[1:])
            if 'saveexec' in op: I.wr = I.wr + regs_of('exec')
    else:
        raise ValueError('unknown op ' + text)
    return I

class Asm:
    def __init__(self):
        self.lines = []
        self.hist = []
        self.pos = 0
        self.vm = []
        self.lg = []
        self.smem = False
        self.nops = 0
        self.stats = {}
        self.inloop = False
    def save(self): return (list(self.hist), self.pos, list(self.vm), list(self.lg), self.smem)
    def restore(self, st): self.hist, self.pos, self.vm, self.lg, self.smem = list(st[0]), st[1], list(st[2]), list(st[3]), st[4]
    def reset(self): self.hist = []; self.vm = []; self.lg = []; self.smem = False
    def raw(self, s): self.lines.append(s)
    def label(self, s): self.lines.append(s + ':')
    def comment(self, s): self.lines.append('    ; ' + s)
    def _emit(self, text, n=1):
        self.lines.append('    ' + text); self.pos += n
    def nop(self, states):
        while states > 0:
            k = min(states, 16); self._emit(f's_nop {k-1}', k); states -= k; self.nops += 1
    def waitcnt(self, vm=None, lg=None):
        s = []
        if vm is not None and vm < len(self.vm):
            s.append(f'vmcnt({min(vm,63)})'); self.vm = self.vm[len(self.vm) - min(vm,63):] if vm else []
        if lg is not None and (lg < len(self.lg) or (lg == 0 and self.smem)):
            k = min(lg, 15)
            s.append(f'lgkmcnt({k})'); self.lg = self.lg[len(self.lg) - k:] if k else []
            if k == 0: self.smem = False
        if s: self._emit('s_waitcnt ' + ' '.join(s))
    def wait_tag(self, tag):
        idx = max([i for i, (t, _) in enumerate(self.vm) if t == tag], default=None)
        if idx is not None: self.waitcnt(vm=len(self.vm) - 1 - idx)
    def wait_lds_tag(self, tag):
        idx = max([i for i, (t, _) in enumerate(self.lg) if t == tag], default=None)
        if idx is not None: self.waitcnt(lg=len(self.lg) - 1 - idx)
    def need(self, I):
        req = 0
        rd, wr = set(I.rd), set(I.wr)
        base = re.sub(r'_(e32|e64|dpp|sdwa)$', '', I.op)
        for P, ppos in self.hist:
            d = self.pos - ppos - 1
            if d >= 20: continue
            pw = set(P.wr); n = 0
            pbase = re.sub(r'_(e32|e64|dpp|sdwa)$', '', P.op)
            if P.cls == 'valu':
                vw = {r for r in pw if r[0] != 's'}; sw = {r for r in pw if r[0] == 's'}
                if I.cls == 'mfma' and vw & rd: n = max(n, 3 if pbase.startswith('v_dot') else 2)
                if pbase.startswith('v_dot') and I.cls in ('valu', 'vmem', 'ds') and (vw & (rd | wr)):
                    same_c = (pbase == base)
                    n = max(n, 0 if same_c and not (vw & set(I.rd[:-1] if base != 'v_dot2c_f32_bf16' else I.rd[:-1])) else 3)
                if I.cls == 'vmem' and sw & rd: n = max(n, 5)
                if I.cls == 'valu' and sw & rd: n = max(n, 4 if base in ('v_readlane_b32', 'v_writelane_b32') else 2)
                if I.cls == 'valu' and I.op.startswith('v_cndmask') and ('s', 106) in sw: n = max(n, 2)
                if I.cls == 'salu' and sw & rd: n = max(n, 1)
                if base in ('v_readfirstlane_b32', 'v_readlane_b32') and vw & rd: n = max(n, 1)
                if (I.op.endswith('_dpp') or base.startswith('v_permlane')) and vw & rd: n = max(n, 2)
                if pbase in TRANS and I.cls == 'valu' and base not in TRANS and vw & rd: n = max(n, 1)
                if pbase in TRANS and I.cls in ('vmem', 'ds') and vw & rd: n = max(n, 1)
                if ('s', 126) in sw:
                    if I.cls == 'mfma': n = max(n, 4)
                    if I.op.endswith('_dpp'): n = max(n, 5)
                    if base.startswith('v_permlane') or base in ('v_readfirstlane_b32', 'v_readlane_b32'): n = max(n, 4)
                if ('sdwa' in P.op or ('op_sel:' in P.mods and not P.op.startswith('v_pk'))) and I.cls == 'valu' and vw & (rd | wr): n = max(n, 1)
            elif P.cls == 'mfma':
                big = {8: 12, 4: 8}[P.passes]
                if I.cls == 'mfma':
                    if pw & set(I.ab): n = max(n, big)
                    if pw & set(I.srcc) and not (list(P.wr) == list(I.srcc) and P.passes == I.passes): n = max(n, big - 2)
                    if pw & wr and not (pw & set(I.srcc)): n = max(n, big - 2)
                elif I.cls in ('valu', 'vmem', 'ds'):
                    if pw & (rd | wr): n = max(n, big)
                    if I.cls == 'valu' and set(P.srcc) & wr: n = max(n, {8: 7, 4: 3}[P.passes])
            elif P.cls == 'salu':
                if ('s', 124) in pw and ('s', 124) in rd and I.cls in ('vmem', 'ds'): n = max(n, 1)
            elif P.cls == 'vmem':
                if ('store' in P.op) and ('x3' in P.op or 'x4' in P.op) and (set(P.rd) & wr) and I.cls == 'valu': n = max(n, 2)
            if n - d > req: req = n - d
        return req
    def __call__(self, text, tag=None):
        import os
        ex = os.environ.get('EXP', '')
        if isinstance(tag, tuple):
            if ('skip' + str(tag[0])) in ex: return
            if 'noA' in ex and tag[0] in ('A', 'X'): return
            if 'noW' in ex and (tag[0].startswith('W') or tag[0] == 'P1'): return
        if isinstance(tag, tuple) and (('oobA' in ex and tag[0] in ('A', 'X')) or ('oobW' in ex and tag[0].startswith('W'))):
            text = re.sub(r'(v\d+), (s\[\d+:\d+\])', r'v197, \2', text)
        if 'nomf' in ex and self.inloop and (text.startswith('v_mfma') or text.startswith('ds_read_b64_tr') or (text.startswith('ds_read_b128') and 'v[144:147]' not in text)): return
        if 'nods' in ex and text.startswith('ds_read_b64_tr') and self.inloop: return
        I = parse(text)
        touched = set(I.rd) | set(I.wr)
        vi = max([i for i, (_, r) in enumerate(self.vm) if r & touched], default=None)
        li = max([i for i, (_, r) in enumerate(self.lg) if r & touched], default=None)
        self.waitcnt(vm=None if vi is None else len(self.vm) - 1 - vi,
                     lg=None if li is None else (0 if self.smem else len(self.lg) - 1 - li))
        n = self.need(I)
        if n > 0: self.nop(n)
        self.lines.append('    ' + text)
        self.hist.append((I, self.pos)); self.pos += 1
        if len(self.hist) > 24: self.hist = self.hist[-24:]
        if I.cls == 'vmem':
            self.vm.append((tag, set(I.wr)))
            assert len(self.vm) <= 63, 'too many outstanding vmem ops: %d' % len(self.vm)
        elif I.cls == 'ds': self.lg.append((tag, set(I.wr)))
        elif I.cls == 'smem': self.lg.append((tag, set(I.wr))); self.smem = True
        self.stats[I.cls] = self.stats.get(I.cls, 0) + 1
    def barrier(self):
        import os
        if 'nobar' in os.environ.get('EXP', '') and self.inloop: return
        self._emit('s_barrier')
    def text(self): return '\n'.join(self.lines) + '\n'

def vr(b, n=1, f='v'):
    return f'{f}{b}' if n == 1 else f'{f}[{b}:{b+n-1}]'
def ar(b, n=1): return vr(b, n, 'a')
def sr(b, n=1): return vr(b, n, 's')
```

```python
import struct, sys, math, os
from asmlib import *

NAME = 'recurrent_scan__linear_attn_block__mixer_s_mlp__prompt'
KN = NAME + '_kernel'
def f2u(x): return '0x%08x' % struct.unpack('<I', struct.pack('<f', x))[0]
def env(n, d): return int(os.environ.get(n, d))
LOG2E = 1.4426950408889634
GC1 = -2.0 * LOG2E * math.sqrt(2.0 / math.pi)
GC2 = GC1 * 0.044715
EPS = 1e-5
PQ, HS, X1, OO, SS, H2, W4F = 0x0, 0x280000, 0x500000, 0x780000, 0xA00000, 0xC80000, 0x1280000
KVS, CS3 = 0x1480000, 0x14A0000
ST0, ST1 = 0x14C0000, 0x14D0000
FAST, SLOW, GEN = 0x1500000, 0x1510000, 0x1520000
STAMP_BASE = 0x1900000
WS_SIZE = 0x2000000
OOB = 0x40000000
PH0, PHR, PH1, PH2X, PH2O, PH3 = range(6)
STAMP = env('STAMP', 0)
SC = 'sc1'
S_X, S_WQKV, S_WO, S_W1, S_W2, S_W3, S_W4, S_OUT, S_WS = 16, 18, 20, 24, 26, 28, 30, 32, 36
SRD_WS, SRD_W, SRD_X, SRD_OUT, SRD_T = 40, 44, 48, 52, 56
S_WAVE, S_RG, S_M, S_EP, S_FASTOK, S_Q = 60, 61, 62, 63, 64, 65
S_LW = 66
S_RW, S_RSTEP, S_REND, S_RTOT = 67, 68, 69, 70
S_FW, S_FEND, S_FTOT = 71, 72, 73
S_AO, S_AEND, S_ATOT = 74, 75, 76
S_KW, S_MW, S_TT1, S_TT2, S_C2 = 77, 78, 79, 80, 81
T0 = 82
S_ROT1, S_ROT2, S_ROT4 = 12, 13, 14
S_TILE2, S_ROWS2, S_LX, S_PAIR = 38, 15, 39, 3
WS = f's[{SRD_WS}:{SRD_WS+3}]'
XS = f's[{SRD_X}:{SRD_X+3}]'
V_L16, VW, VA, V_EP, WF, ACC, VRD = 4, 5, 10, 15, 16, 64, 148
VW2, KX, KX1, VOOB = 192, 200, 212, 197
SLOT = 20480
XRING, SPARE = 5 * SLOT, 5 * SLOT + 49152
EXT = 163840 - 2560
CSST = XRING + 41984

def stamp(A, i):
    if i in (7, 12, 18, 23): A.inloop = True
    if i in (8, 13, 19, 24): A.inloop = False
    if not STAMP: return
    A.lines.append('    s_memtime s[8:9]')
    A.lines.append('    s_waitcnt lgkmcnt(0)'); A.lg = []
    A.lines.append(f'    v_writelane_b32 v3, s8, {i}')
def stamp_out(A):
    if not STAMP: return
    L = A.lines.append
    L('    s_waitcnt vmcnt(0)')
    stamp(A, 29)
    L('    s_memrealtime s[8:9]'); L('    s_waitcnt lgkmcnt(0)')
    L('    v_writelane_b32 v3, s8, 31'); L('    v_writelane_b32 v3, s10, 30')
    L(f'    s_lshl_b32 s8, s{S_Q}, 2'); L(f'    s_add_u32 s8, s8, s{S_WAVE}'); L('    s_lshl_b32 s8, s8, 7')
    L(f'    s_add_u32 s8, s8, {STAMP_BASE}')
    L('    v_lshlrev_b32 v1, 2, v0'); L('    v_cmp_gt_u32 vcc, 32, v0'); L('    s_and_saveexec_b64 s[6:7], vcc')
    L(f'    buffer_store_dword v3, v1, {WS}, s8 offen')

def srd(A, d, base, size):
    A(f's_mov_b32 s{d}, s{base}'); A(f's_mov_b32 s{d+1}, s{base+1}')
    A(f's_mov_b32 s{d+2}, {size}'); A(f's_mov_b32 s{d+3}, 0x20000')

def allreduce32(A, v, t):
    A(f'v_add_f32_dpp v{v}, v{v}, v{v} quad_perm:[1,0,3,2] row_mask:0xf bank_mask:0xf')
    A(f'v_add_f32_dpp v{v}, v{v}, v{v} quad_perm:[2,3,0,1] row_mask:0xf bank_mask:0xf')
    A(f'v_add_f32_dpp v{v}, v{v}, v{v} row_half_mirror row_mask:0xf bank_mask:0xf')
    A(f'v_add_f32_dpp v{v}, v{v}, v{v} row_mirror row_mask:0xf bank_mask:0xf')
    A(f'v_mov_b32 v{t}, v{v}')
    A(f'v_permlane16_swap_b32 v{v}, v{t}')
    A(f'v_add_f32 v{v}, v{v}, v{t}')

def gelu_pk(A, y, n, c1, c2, ir, t):
    for i in range(0, n, 2): A(f'v_pk_mul_f32 v[{t+i}:{t+i+1}], v[{y+i}:{y+i+1}], v[{y+i}:{y+i+1}]')
    for i in range(0, n, 2): A(f'v_pk_fma_f32 v[{t+i}:{t+i+1}], v[{t+i}:{t+i+1}], v[{c2}:{c2+1}], v[{c1}:{c1+1}] op_sel_hi:[1,0,0]')
    for i in range(0, n, 2): A(f'v_pk_mul_f32 v[{t+i}:{t+i+1}], v[{t+i}:{t+i+1}], v[{y+i}:{y+i+1}]')
    for i in range(n): A(f'v_exp_f32 v{t+i}, v{t+i}')
    for i in range(0, n, 2): A(f'v_pk_fma_f32 v[{t+i}:{t+i+1}], v[{t+i}:{t+i+1}], v[{ir}:{ir+1}], v[{ir}:{ir+1}] op_sel_hi:[1,0,0]')
    for i in range(n): A(f'v_rcp_f32 v{t+i}, v{t+i}')
    for i in range(0, n, 2): A(f'v_pk_mul_f32 v[{y+i}:{y+i+1}], v[{y+i}:{y+i+1}], v[{t+i}:{t+i+1}]')
def gelu_consts(A, r):
    A(f'v_mul_f32 v58, v{r}, v{r}'); A(f'v_mul_f32 v58, v58, v{r}'); A(f'v_mul_f32 v58, {f2u(GC2)}, v58')
    A(f'v_rcp_f32 v62, v{r}'); A(f'v_mul_f32 v56, {f2u(GC1)}, v{r}')
def phi_pk(A, y, n, rl, dl, r, t):
    for i in range(0, n, 2): A(f'v_pk_mul_f32 v[{t+i}:{t+i+1}], v[{y+i}:{y+i+1}], v[{rl}:{rl+1}] op_sel_hi:[1,0]')
    for i in range(n): A(f'v_exp_f32_e64 v{t+i}, v{t+i} clamp')
    for i in range(n): A(f'v_max_f32 v{y+i}, v{dl}, v{y+i}')
    for i in range(0, n, 2): A(f'v_pk_fma_f32 v[{y+i}:{y+i+1}], v[{y+i}:{y+i+1}], v[{r}:{r+1}], v[{t+i}:{t+i+1}] op_sel_hi:[1,0,1]')
def pack(A, dst, y, n):
    for i in range(0, n, 2): A(f'v_cvt_pk_bf16_f32 v{dst+i//2}, v{y+i}, v{y+i+1}')
def unpack(A, dst, src, n):
    A(f's_mov_b32 s{T0}, 0xffff0000')
    for i in range(n):
        A(f'v_lshlrev_b32 v{dst+2*i}, 16, v{src+i}'); A(f'v_and_b32 v{dst+2*i+1}, s{T0}, v{src+i}')
def div_magic(A, q, r, idx, d, t):
    magic = (65536 + d - 1) // d
    A(f'v_mul_u32_u24 v{q}, {magic}, v{idx}'); A(f'v_lshrrev_b32 v{q}, 16, v{q}')
    A(f'v_mul_u32_u24 v{t}, {d}, v{q}'); A(f'v_sub_u32 v{r}, v{idx}, v{t}')
def split_hilo(A, dst, c, t):
    A(f'v_cvt_pk_bf16_f32 v{t}, v{c}, v{c}'); A(f'v_lshlrev_b32 v{t}, 16, v{t}'); A(f'v_sub_f32 v{t}, v{c}, v{t}')
    A(f'v_cvt_pk_bf16_f32 v{dst}, v{c}, v{t}')
def neg_mean_frag(A, dst, m, t):
    A(f'v_cvt_pk_bf16_f32 v{dst}, -v{m}, -v{m}'); A(f'v_lshlrev_b32 v{t}, 16, v{dst}'); A(f'v_add_f32 v{t}, v{m}, v{t}')
    A(f'v_cvt_pk_bf16_f32 v{t}, -v{t}, -v{t}')
    A('v_cmp_gt_u32 vcc, 32, v0'); A(f'v_cndmask_b32 v{dst}, v{t}, v{dst}, vcc')

def advance(A, off, step, end, tot):
    A(f's_add_u32 s{off}, s{off}, {step}'); A(f's_cmp_ge_u32 s{off}, s{end}')
    A(f's_cselect_b32 s{T0+15}, s{tot}, 0'); A(f's_sub_u32 s{off}, s{off}, s{T0+15}')
def set_stream(A, off, end, tot, base_reg, rot_reg, step, n):
    if isinstance(step, int): A(f's_mov_b32 s{tot}, {n*step}')
    else: A(f's_mul_i32 s{tot}, {step}, {n}')
    A(f's_add_u32 s{end}, s{base_reg}, s{tot}')
    A(f's_mul_i32 s{off}, s{rot_reg}, {step}'); A(f's_add_u32 s{off}, s{off}, s{base_reg}')
def raw_ops(A, slot, tag, vw=VW):
    def op(n):
        A(f's_add_u32 m0, s{S_LW}, {slot * SLOT + n * 1024}')
        A(f'buffer_load_dwordx4 v{vw+n}, s[{SRD_W}:{SRD_W+3}], s{S_RW} offen lds', tag=tag)
        if n == 4: advance(A, S_RW, f's{S_RSTEP}', S_REND, S_RTOT)
    return [lambda n=n: op(n) for n in range(5)]
def frag_ops(A, slot, tag):
    def op(n):
        if n in (0, 4): A(f's_add_u32 m0, s{S_LW}, {slot * SLOT + (1024 if n == 4 else 0)}')
        if n == 4: A(f's_add_u32 s{T0+14}, s{S_FW}, 1024')
        so = f's{S_FW}' if n < 4 else f's{T0+14}'
        A(f'buffer_load_dwordx4 v{V_L16}, {WS}, {so} offen offset:{(n if n < 4 else 3) * 1024} {SC} lds', tag=tag)
        if n == 4: advance(A, S_FW, 10240, S_FEND, S_FTOT)
    return [lambda n=n: op(n) for n in range(5)]
def run(ops):
    for o in ops: o()

lbl = [0]
def newl(p):
    lbl[0] += 1; return f'L_{p}_{lbl[0]}'
def flag_store(A, ph, fast=True):
    l = newl('fs')
    A(f's_cmp_lg_u32 s{S_WAVE}, 0'); A(f's_cbranch_scc1 {l}')
    A(f's_lshl_b32 s{T0+10}, s{S_RG}, 9'); A(f's_lshl_b32 s{T0+11}, s{S_M}, 2'); A(f's_add_u32 s{T0+10}, s{T0+10}, s{T0+11}')
    A(f's_add_u32 s{T0+10}, s{T0+10}, {FAST + ph * 64}')
    A(f's_lshl_b32 s{T0+11}, s{S_Q}, 2'); A(f's_add_u32 s{T0+11}, s{T0+11}, {SLOW + ph * 1024}')
    A('s_mov_b64 exec, 1')
    if fast: A.lines.append(f'    buffer_store_dword v{V_EP}, v{V_L16}, {WS}, s{T0+10} offen')
    A.lines.append(f'    buffer_store_dword v{V_EP}, v{V_L16}, {WS}, s{T0+11} offen sc1')
    A('s_mov_b64 exec, -1')
    A.label(l)
def publish(A, ph):
    A.vm.append(('x', set())); A.lg.append(('x', set()))
    A.waitcnt(vm=0, lg=0); A.barrier()
    flag_store(A, ph)
def wait_local(A, ph, mask):
    done, slow, lf, ls = newl('wd'), newl('wsl'), newl('wf'), newl('ws')
    A(f's_cmp_lg_u32 s{S_WAVE}, 0'); A(f's_cbranch_scc1 {done}')
    A(f's_mov_b32 s{T0+2}, {ph}')
    A('v_lshlrev_b32 v1, 2, v0')
    A(f's_lshl_b32 s{T0}, s{S_RG}, 9'); A(f's_lshl_b32 s{T0+1}, s{T0+2}, 6'); A(f's_add_u32 s{T0}, s{T0}, s{T0+1}'); A(f's_add_u32 s{T0}, s{T0}, {FAST}')
    A(f's_mov_b64 exec, {mask}')
    A(f's_mov_b32 s{T0+3}, 0')
    A(f's_cmp_eq_u32 s{S_FASTOK}, 0'); A(f's_cbranch_scc1 {slow}')
    L = A.lines.append
    A.label(lf)
    L(f'    buffer_load_dword v2, v1, {WS}, s{T0} offen sc1'); L(f'    s_add_u32 s{T0+3}, s{T0+3}, 1'); L('    s_waitcnt vmcnt(0)')
    L(f'    v_cmp_ne_u32 vcc, v2, v{V_EP}'); L(f'    s_cbranch_vccz {done}')
    L(f'    s_cmp_lt_u32 s{T0+3}, 96'); L(f'    s_cbranch_scc1 {lf}')
    L(f'    s_mov_b32 s{S_FASTOK}, 0')
    A.label(slow)
    L(f'    s_lshl_b32 s{T0}, s{S_RG}, 6'); L(f'    s_lshl_b32 s{T0+1}, s{T0+2}, 10'); L(f'    s_add_u32 s{T0}, s{T0}, s{T0+1}'); L(f'    s_add_u32 s{T0}, s{T0}, {SLOW}')
    A.label(ls)
    L(f'    buffer_load_dword v2, v1, {WS}, s{T0} offen sc1'); L(f'    s_add_u32 s{T0+3}, s{T0+3}, 1'); L('    s_waitcnt vmcnt(0)')
    L(f'    v_cmp_ne_u32 vcc, v2, v{V_EP}'); L(f'    s_cbranch_vccz {done}')
    L(f'    s_cmp_lt_u32 s{T0+3}, 200000'); L(f'    s_cbranch_scc1 {ls}')
    A.label(done)
    A('s_mov_b64 exec, -1')
    A.waitcnt(lg=0)
    A.barrier()
def global_check_issue(A, ph, r):
    A(f's_mov_b32 s{T0+13}, {SLOW + ph * 1024}')
    A(f'buffer_load_dwordx4 v[{r}:{r+3}], v{V_L16}, {WS}, s{T0+13} offen sc1')
def global_check(A, ph, r):
    done, lp = newl('gd'), newl('gl')
    for i in range(4): A(f'v_xor_b32 v{r+i}, v{r+i}, v{V_EP}')
    A(f'v_or3_b32 v{r}, v{r}, v{r+1}, v{r+2}'); A(f'v_or_b32 v{r}, v{r}, v{r+3}')
    A(f'v_cmp_ne_u32 vcc, 0, v{r}')
    L = A.lines.append
    L(f'    s_cbranch_vccz {done}')
    L(f'    s_mov_b32 s{T0+12}, 0'); L(f'    s_mov_b32 s{T0+13}, {SLOW + ph * 1024}')
    A.label(lp)
    L('    s_sleep 4')
    L(f'    buffer_load_dwordx4 v[{r}:{r+3}], v{V_L16}, {WS}, s{T0+13} offen sc1')
    L(f'    s_add_u32 s{T0+12}, s{T0+12}, 1'); L('    s_waitcnt vmcnt(0)')
    for i in range(4): L(f'    v_xor_b32 v{r+i}, v{r+i}, v{V_EP}')
    L(f'    v_or3_b32 v{r}, v{r}, v{r+1}, v{r+2}'); L(f'    v_or_b32 v{r}, v{r}, v{r+3}')
    L(f'    v_cmp_ne_u32 vcc, 0, v{r}'); L(f'    s_cbranch_vccz {done}')
    L(f'    s_cmp_lt_u32 s{T0+12}, 100000'); L(f'    s_cbranch_scc1 {lp}')
    A.label(done)

class Pacer:
    def __init__(self, A, ops, every):
        self.A, self.ops, self.every, self.acc, self.busy = A, list(ops), every, 0, False
    def __call__(self, text, tag=None):
        self.A(text, tag)
        self.acc += 2 if text.split()[0].replace('_e64', '') in TRANS else 1
        if self.acc >= self.every and self.ops:
            self.acc = 0; self.ops.pop(0)()
    def flush(self):
        while self.ops: self.ops.pop(0)()
    def __getattr__(self, n): return getattr(self.A, n)

def interleave(pend, k, total, state):
    while pend and state['done'] * total < k * state['n']:
        pend.pop(0)(); state['done'] += 1

def engine1(A, NT, slots, wtag, extra, hooks, D, swz=False, st0=0):
    RS = NT * 64
    def a_ops(c):
        def op(ks):
            s = 4 * c + ks
            A(f'buffer_load_dwordx4 a[{4*s}:{4*s+3}], v{V_L16}, {WS}, s{S_AO} offen offset:{ks*1024} {SC}', tag=('A', c))
            if ks == 3: advance(A, S_AO, 4096, S_AEND, S_ATOT)
        return [lambda ks=ks: op(ks) for ks in range(4)]
    def rd(s, t):
        c, ks = divmod(s, 4); slot = slots[c]
        b = WF + (s % 2) * 20 + 4 * t
        off = (slot % 3) * SLOT + ks * 5120 + (0 if swz else t * 64)
        base = VRD + (slot // 3) * (4 if swz else 1) + (t if swz else 0)
        A(f'ds_read_b64_tr_b16 v[{b}:{b+1}], v{base} offset:{off}')
        A(f'ds_read_b64_tr_b16 v[{b+2}:{b+3}], v{base} offset:{off + 8 * RS}')
    for c in range(D): run(a_ops(c))
    A.wait_tag((wtag, 0)); A.barrier()
    stamp(A, st0)
    for t in range(NT): rd(0, t)
    for s in range(40):
        c, ks = divmod(s, 4)
        if ks == 0:
            pend = (a_ops(c + D) if c + D < 10 else []) + extra.get(c, [])
            state = dict(n=len(pend), done=0)
        if ks == 3 and c + 1 < 10:
            if ('bar', c + 1) in hooks: hooks[('bar', c + 1)]()
            A.wait_tag((wtag, c + 1)); A.barrier()
            if ('post', c + 1) in hooks: hooks[('post', c + 1)]()
        for t in range(NT):
            b = WF + (s % 2) * 20 + 4 * t
            cc = '0' if s == 0 else f'v[{ACC+16*t}:{ACC+16*t+15}]'
            A(f'v_mfma_f32_32x32x16_bf16 v[{ACC+16*t}:{ACC+16*t+15}], v[{b}:{b+3}], a[{4*s}:{4*s+3}], {cc}')
            if s + 1 < 40: rd(s + 1, t)
            interleave(pend, ks * NT + t + 1, 4 * NT, state)
    stamp(A, st0 + 1)
def e1_rd_setup(A, RS, swz):
    A('v_bfe_u32 v56, v0, 2, 2'); A('v_lshrrev_b32 v57, 5, v0'); A('v_lshl_add_u32 v58, v57, 2, v56')
    A(f'v_mul_u32_u24 v58, {RS}, v58')
    A('v_bfe_u32 v57, v0, 4, 1'); A('v_lshl_add_u32 v58, v57, 5, v58')
    A('v_and_b32 v57, 3, v0'); A('v_lshl_add_u32 v58, v57, 3, v58')
    if not swz:
        for g in range(3): A(f'v_add_u32 v{VRD+g}, {g*3*SLOT}, v58')
    else:
        A('v_lshl_add_u32 v58, v56, 6, v58')
        for g in range(3):
            A(f'v_add_u32 v{VRD+4*g}, {g*3*SLOT}, v58')
            for t in range(1, 4): A(f'v_xor_b32 v{VRD+4*g+t}, {64*t}, v{VRD+4*g}')

def engine2(A, N, slots, wtag, extra, hooks, D, raw, st0=0):
    def a_ops(c):
        def op(st, u):
            b = 16 * (c % 10) + 8 * st + 4 * u
            A(f'buffer_load_dwordx4 a[{b}:{b+3}], v{VA+u}, {WS}, s{S_AO} offen offset:{st*2048} {SC}', tag=('A', c))
            if st == 1 and u == 1: advance(A, S_AO, 4096, S_AEND, S_ATOT)
        return [lambda st=st, u=u: op(st, u) for st in range(2) for u in range(2)]
    def rd(S, f):
        c, st = divmod(S, 2); slot = slots[c]
        b = WF + (S % 2) * 20 + 4 * f
        if raw:
            base = VRD + 2 * (slot // 3) + (1 if f < 4 else 0)
            off = (slot % 3) * SLOT + st * 5120 + (64 * (f // 2) + 16 * (f % 2) if f < 4 else 128)
            A(f'ds_read_b64_tr_b16 v[{b}:{b+1}], v{base} offset:{off}')
            A(f'ds_read_b64_tr_b16 v[{b+2}:{b+3}], v{base} offset:{off + 8 * 160}')
        else:
            A(f'ds_read_b128 v[{b}:{b+3}], v{VRD + slot // 3} offset:{(slot % 3) * SLOT + st * 5120 + f * 1024}')
    for c in range(D): run(a_ops(c))
    A.wait_tag((wtag, 0)); A.barrier()
    stamp(A, st0)
    for f in range(5): rd(0, f)
    for S in range(2 * N):
        c, st = divmod(S, 2)
        if st == 0:
            pend = (a_ops(c + D) if c + D < N else []) + extra.get(c, [])
            state = dict(n=len(pend), done=0)
        if st == 1 and c + 1 < N:
            if ('bar', c + 1) in hooks: hooks[('bar', c + 1)]()
            A.wait_tag((wtag, c + 1)); A.barrier()
            if ('post', c + 1) in hooks: hooks[('post', c + 1)]()
        for f in range(5):
            b = WF + (S % 2) * 20 + 4 * f
            for u in range(2):
                acc = ACC + 20 * u + 4 * f
                cc = '0' if (S == 0 and u == 1) else f'v[{acc}:{acc+3}]'
                ab = 16 * (c % 10) + 8 * st + 4 * u
                A(f'v_mfma_f32_16x16x32_bf16 v[{acc}:{acc+3}], v[{b}:{b+3}], a[{ab}:{ab+3}], {cc}')
            if S + 1 < 2 * N: rd(S + 1, f)
            interleave(pend, st * 5 + f + 1, 10, state)
    stamp(A, st0 + 1)
def tr160_bases(A, nat, pair, sbase):
    A('v_bfe_u32 v56, v0, 2, 3'); A('v_lshrrev_b32 v57, 5, v0'); A('v_lshl_add_u32 v56, v57, 4, v56'); A('v_mul_u32_u24 v56, 160, v56')
    A(f'v_add_u32 v56, s{sbase}, v56')
    A('v_and_b32 v57, 3, v0'); A(f'v_lshl_add_u32 v{nat}, v57, 3, v56')
    A('v_and_b32 v57, 2, v0'); A(f'v_lshl_add_u32 v{pair}, v57, 3, v{nat}')
def e2_setup(A, raw):
    A(f's_mul_i32 s{T0}, s{S_KW}, 10240')
    if raw:
        tr160_bases(A, VRD, VRD + 1, T0)
        A(f'v_add_u32 v{VRD+2}, {3*SLOT}, v{VRD}'); A(f'v_add_u32 v{VRD+3}, {3*SLOT}, v{VRD+1}')
    else:
        A(f'v_add_u32 v{VRD}, s{T0}, v{V_L16}'); A(f'v_add_u32 v{VRD+1}, {3*SLOT}, v{VRD}'); A(f'v_add_u32 v{VRD+2}, {6*SLOT}, v{VRD}')
def e2_va_setup(A):
    A('v_lshrrev_b32 v56, 4, v0'); A('v_lshlrev_b32 v56, 9, v56')
    A('v_and_b32 v57, 15, v0'); A('v_lshlrev_b32 v57, 4, v57')
    A(f's_lshl_b32 s{T0}, s{S_KW}, 8'); A(f'v_add_u32 v57, s{T0}, v57')
    A(f'v_add_u32 v{VA}, v56, v57'); A(f'v_xor_b32 v{VA+1}, 256, v{VA}')
    A('v_and_b32 v56, 512, v56'); A('v_add_u32 v57, v56, v57')
    A('v_lshrrev_b32 v56, 5, v0'); A(f'v_lshl_add_u32 v{VA+2}, v56, 3, v57')
def e2_reduce(A, slot, t, between=None):
    A(f's_add_u32 s{T0}, s{S_LW}, {slot*SLOT}')
    A(f's_xor_b32 s{T0+1}, s{S_WAVE}, 2'); A(f's_mul_i32 s{T0+1}, s{T0+1}, 5120'); A(f's_add_u32 s{T0+1}, s{T0+1}, {slot*SLOT}')
    A(f'v_add_u32 v56, s{T0}, v{V_L16}'); A(f'v_add_u32 v57, s{T0+1}, v{V_L16}')
    for f in range(5): A(f'ds_write_b128 v56, v[{ACC+20+4*f}:{ACC+23+4*f}] offset:{f*1024}')
    A.waitcnt(lg=0); A.barrier()
    for f in range(5): A(f'ds_read_b128 v[{t+4*f}:{t+4*f+3}], v57 offset:{f*1024}')
    if between: between()
    for i in range(0, 20, 2): A(f'v_pk_add_f32 v[{ACC+i}:{ACC+i+1}], v[{ACC+i}:{ACC+i+1}], v[{t+i}:{t+i+1}]')

def kernel(A):
    D1, D2 = env('D1', 2), env('D2', 3)
    PACE = env('PACE', 20)
    A.raw(f'.globl {KN}\n.p2align 8\n.type {KN},@function\n{KN}:')
    A('s_cmp_ge_u32 s2, 256'); A('s_cbranch_scc1 L_end')
    if STAMP:
        A.lines.append('    s_memrealtime s[10:11]'); A.lines.append('    v_mov_b32 v3, 0')
    stamp(A, 0)
    A('s_load_dwordx16 s[16:31], s[0:1], 0'); A('s_load_dwordx4 s[32:35], s[0:1], 64'); A('s_load_dwordx2 s[36:37], s[0:1], 80')
    A('s_getpc_b64 s[4:5]'); A.label('L_pc')
    A('s_lshr_b32 s3, s2, 3'); A('s_lshl_b32 s3, s3, 11')
    A('v_and_b32 v1, 15, v0'); A('v_lshl_add_u32 v1, v1, 7, s3'); A('v_min_u32 v1, L_end-L_pc, v1')
    A('global_load_dword v2, v1, s[4:5]')
    A.vm = [('pf', set())]
    A('v_lshrrev_b32 v1, 6, v0'); A('v_and_b32 v0, 63, v0')
    A(f'v_readfirstlane_b32 s{S_WAVE}, v1')
    A(f'v_lshlrev_b32 v{V_L16}, 4, v0'); A(f'v_mov_b32 v{VOOB}, {OOB}')
    A(f's_and_b32 s{T0}, s2, 7'); A(f's_lshl_b32 s{S_RG}, s{T0}, 1'); A(f's_lshr_b32 s{T0}, s2, 7'); A(f's_add_u32 s{S_RG}, s{S_RG}, s{T0}')
    A(f's_lshr_b32 s{S_M}, s2, 3'); A(f's_and_b32 s{S_M}, s{S_M}, 15')
    A(f's_lshl_b32 s{S_Q}, s{S_RG}, 4'); A(f's_add_u32 s{S_Q}, s{S_Q}, s{S_M}')
    A(f's_mov_b32 s{S_FASTOK}, {env("FASTOK", 1)}')
    A(f's_mul_i32 s{S_LW}, s{S_WAVE}, 5120')
    A(f's_lshr_b32 s{S_KW}, s{S_WAVE}, 1'); A(f's_and_b32 s{S_MW}, s{S_WAVE}, 1')
    A(f's_lshl_b32 s{S_TT1}, s{S_RG}, 2'); A(f's_add_u32 s{S_TT1}, s{S_TT1}, s{S_WAVE}')
    A(f's_lshr_b32 s{T0}, s{S_M}, 3'); A(f's_lshl_b32 s{T0}, s{T0}, 1'); A(f's_lshl_b32 s{S_TT2}, s{S_RG}, 2')
    A(f's_add_u32 s{S_TT2}, s{S_TT2}, s{T0}'); A(f's_add_u32 s{S_TT2}, s{S_TT2}, s{S_MW}')
    A(f's_and_b32 s{S_C2}, s{S_M}, 7')
    A(f's_and_b32 s{T0}, s{S_RG}, 1'); A(f's_mul_i32 s{S_ROT1}, s{T0}, {env("ROTS", 0)}')
    A(f's_lshr_b32 s{T0+1}, s{S_RG}, 1'); A(f's_mul_i32 s{T0+2}, s{T0+1}, {env("ROTX", 10)}'); A(f's_lshr_b32 s{T0+2}, s{T0+2}, 3'); A(f's_add_u32 s{S_ROT1}, s{S_ROT1}, s{T0+2}')
    if env('ROTM', 0): A(f's_add_u32 s{S_ROT1}, s{S_ROT1}, s{S_M}')
    for _ in range(2 if env('ROTM', 0) else 1):
        A(f's_cmp_ge_u32 s{S_ROT1}, 10'); A(f's_cselect_b32 s{T0+2}, 10, 0'); A(f's_sub_u32 s{S_ROT1}, s{S_ROT1}, s{T0+2}')
    A(f's_lshl_b32 s{T0}, s{T0}, 1'); A(f's_lshr_b32 s{T0+2}, s{S_M}, 3'); A(f's_add_u32 s{T0}, s{T0}, s{T0+2}')
    A(f's_mul_i32 s{S_ROT2}, s{T0}, {env("ROTU", 1)}'); A(f's_mul_i32 s{S_ROT4}, s{T0}, {3*env("ROTU", 1)}')
    A(f's_cmp_ge_u32 s{S_M}, 12')
    A(f's_cselect_b32 s{T0+8}, 1, 3'); A(f's_cselect_b32 s{T0+9}, 12, 0')
    A(f's_mul_i32 s{T0+7}, s{T0+8}, 1280')
    A(f's_sub_u32 s{T0+9}, s{S_M}, s{T0+9}'); A(f's_mul_i32 s{T0+9}, s{T0+9}, 320')
    A(f's_sub_u32 s{T0+5}, s{S_M}, 4'); A(f's_mul_i32 s{T0+6}, s{T0+5}, 160'); A(f's_add_u32 s{T0+6}, s{T0+6}, 1280')
    A(f's_cmp_lt_u32 s{T0+5}, 8')
    A(f's_cselect_b32 s{T0+9}, s{T0+6}, s{T0+9}'); A(f's_cselect_b32 s{T0+5}, 1120, 0')
    A(f'v_mov_b32 v60, s{T0+5}')
    for n in range(5):
        A(f'v_add_u32 v56, {64*n}, v0'); div_magic(A, 57, 58, 56, 20, 59)
        A(f'v_mul_lo_u32 v57, v57, s{T0+7}'); A('v_cmp_lt_u32 vcc, 9, v58'); A('v_lshl_add_u32 v57, v58, 4, v57')
        A('v_cndmask_b32 v59, 0, v60, vcc')
        A(f'v_add_u32 v{VW+n}, v57, v59')
    A(f's_lshl_b32 s{T0+6}, s{S_WAVE}, 4'); A(f's_mul_i32 s{T0+6}, s{T0+6}, s{T0+7}'); A(f's_add_u32 s{T0+6}, s{T0+6}, s{T0+9}')
    A(f's_lshl_b32 s{S_RSTEP}, s{T0+7}, 6')
    set_stream(A, S_RW, S_REND, S_RTOT, T0 + 6, S_ROT1, f's{S_RSTEP}', 10)
    A(f's_sub_u32 s{T0}, s{S_M}, 12'); A(f's_lshr_b32 s{T0+1}, s{T0}, 1'); A(f's_add_u32 s{T0+1}, s{T0+1}, 1'); A(f's_sub_u32 s{T0+2}, 0, s{T0+1}')
    A(f's_bitcmp1_b32 s{S_M}, 0'); A(f's_cselect_b32 s{T0+1}, s{T0+1}, s{T0+2}')
    A(f's_cmp_ge_u32 s{S_M}, 12'); A(f's_cselect_b32 s{T0+1}, s{T0+1}, 0')
    A(f's_lshl_b32 s{S_PAIR}, s{S_TT1}, 5'); A(f's_add_u32 s{S_PAIR}, s{S_PAIR}, s{T0+1}')
    A('v_lshrrev_b32 v56, 3, v0'); A('v_lshrrev_b32 v57, 4, v0'); A('v_and_b32 v58, 7, v0'); A('v_xor_b32 v58, v58, v57'); A('v_lshlrev_b32 v58, 4, v58')
    A(f'v_add_u32 v56, s{S_PAIR}, v56')
    for n in range(4):
        if n: A('v_add_u32 v56, 8, v56'); A('v_xor_b32 v58, 64, v58')
        A('v_mul_u32_u24 v57, 1280, v56'); A('v_cmp_gt_u32 vcc, 2048, v56'); A('v_add_u32 v57, v57, v58')
        A(f'v_cndmask_b32 v{VA+n}, v{VOOB}, v57, vcc')
    A(f's_mov_b32 s{T0}, 0')
    set_stream(A, S_AO, S_AEND, S_ATOT, T0, S_ROT1, 128, 10)
    A(f's_lshl_b32 s{S_LX}, s{S_WAVE}, 12'); A(f's_add_u32 s{S_LX}, s{S_LX}, {XRING}')
    A('v_lshrrev_b32 v40, 5, v0'); A(f's_lshl_b32 s{T0}, s{S_WAVE}, 1'); A(f'v_add_u32 v41, s{T0}, v40')
    A('v_and_b32 v42, 31, v0')
    A('v_mul_u32_u24 v43, 1280, v41'); A('v_lshl_add_u32 v43, v42, 4, v43')
    A('v_cmp_gt_u32 vcc, 16, v42'); A(f'v_cndmask_b32 v44, v{VOOB}, v43, vcc')
    A.waitcnt(lg=0)
    stamp(A, 1)
    srd(A, SRD_X, S_X, 2048 * 1280)
    A(f's_mul_i32 s{T0}, s{S_Q}, 10240')
    A(f'buffer_load_dwordx4 v[16:19], v43, {XS}, s{T0} offen')
    A(f'buffer_load_dwordx4 v[20:23], v43, {XS}, s{T0} offen offset:512')
    A(f'buffer_load_dwordx4 v[24:27], v44, {XS}, s{T0} offen offset:1024')
    A(f's_cmp_ge_u32 s{S_M}, 12')
    A(f's_cselect_b32 s{SRD_W}, s{S_W1}, s{S_WQKV}'); A(f's_cselect_b32 s{SRD_W+1}, s{S_W1+1}, s{S_WQKV+1}')
    A(f's_mul_i32 s{SRD_W+2}, s{T0+8}, {640*1280}'); A(f's_mov_b32 s{SRD_W+3}, 0x20000')
    def x_ops(c):
        def op(n):
            A(f's_add_u32 m0, s{S_LX}, {(c % 3) * 16384 + n * 1024}')
            A(f'buffer_load_dwordx4 v{VA+n}, {XS}, s{S_AO} offen lds', tag=('X', c))
            if n == 3: advance(A, S_AO, 128, S_AEND, S_ATOT)
        return [lambda n=n: op(n) for n in range(4)]
    W1 = lambda p: raw_ops(A, p % 5, ('W1', p))
    run(W1(0))
    srd(A, SRD_WS, S_WS, WS_SIZE)
    A('v_bfe_u32 v56, v0, 2, 2'); A('v_lshl_add_u32 v58, v40, 3, v56'); A('v_mul_u32_u24 v58, 320, v58')
    A('v_bfe_u32 v57, v0, 4, 1'); A('v_lshl_add_u32 v58, v57, 5, v58'); A('v_and_b32 v57, 3, v0'); A('v_lshl_add_u32 v58, v57, 3, v58')
    A('v_bfe_u32 v59, v0, 1, 3'); A('v_xor_b32 v59, v59, v40')
    A('v_lshlrev_b32 v60, 7, v42'); A(f'v_add_u32 v60, s{S_LX}, v60')
    for p in range(4):
        A(f's_add_u32 s{T0}, s{S_WAVE}, {p}'); A(f's_and_b32 s{T0}, s{T0}, 3'); A(f's_mul_i32 s{T0+1}, s{T0}, 5120'); A(f's_lshl_b32 s{T0}, s{T0}, 1')
        A(f'v_add_u32 v{VRD+2*p}, s{T0+1}, v58'); A(f'v_add_u32 v{VRD+2*p+1}, {3*SLOT}, v{VRD+2*p}')
        A(f'v_xor_b32 v61, s{T0}, v59'); A(f'v_lshl_add_u32 v{VRD+8+p}, v61, 4, v60')
    SEL, CSA, XF = 160, 164, 184
    A('v_bfe_u32 v56, v0, 2, 1'); A('v_bfe_u32 v57, v0, 4, 1'); A('v_cmp_eq_u32 s[6:7], v56, v57'); A('v_mov_b32 v56, 0x3f803f80')
    for i in range(4): A(f'v_cndmask_b32 v{SEL+i}, 0, v56, s[6:7]')
    A(f's_mul_i32 s{T0+3}, s{S_WAVE}, 2816'); A(f's_add_u32 s{T0+3}, s{T0+3}, {SPARE}')
    for n in range(5):
        A(f'v_add_u32 v56, {64*n}, v0'); div_magic(A, 57, 58, 56, 10, 59)
        A('v_mul_u32_u24 v59, 1280, v57'); A(f'v_lshl_add_u32 v{VW2+n}, v58, 4, v59')
        if n < 3: A('v_mul_u32_u24 v59, 176, v57'); A('v_lshl_add_u32 v59, v58, 4, v59'); A(f'v_add_u32 v{45+n}, s{T0+3}, v59')
    A('v_cmp_gt_u32 s[6:7], 32, v0'); A(f'v_cndmask_b32 v{VW2+6}, v{VOOB}, v{VW2+2}, s[6:7]')
    A('v_lshlrev_b32 v56, 4, v42'); A(f'v_add_u32 v56, {163840-1024}, v56'); A('v_cndmask_b32 v47, v56, v47, s[6:7]')
    A('v_and_b32 v48, 15, v0'); A('v_mul_u32_u24 v48, 176, v48'); A('v_lshrrev_b32 v56, 4, v0'); A('v_lshl_add_u32 v48, v56, 3, v48'); A(f'v_add_u32 v48, s{T0+3}, v48')
    A('v_lshl_add_u32 v49, v40, 4, v48')
    A(f's_mul_i32 s{S_TILE2}, s{S_TT2}, 40960'); A(f's_mul_i32 s{T0}, s{S_C2}, 5120'); A(f's_add_u32 s{S_TILE2}, s{S_TILE2}, s{T0}')
    A(f's_lshl_b32 s{S_ROWS2}, s{S_TT2}, 1'); A(f's_add_u32 s{S_ROWS2}, s{S_ROWS2}, s{S_KW}')
    A(f's_mul_i32 s{S_ROWS2}, s{S_ROWS2}, {16*1280}'); A(f's_mul_i32 s{T0}, s{S_C2}, 160'); A(f's_add_u32 s{S_ROWS2}, s{S_ROWS2}, s{T0}')
    run(x_ops(0))
    A(f's_mov_b32 s{T0+1}, {GEN}'); A('v_mov_b32 v1, 0')
    A(f'buffer_load_dword v{V_EP}, v1, {WS}, s{T0+1} offen sc1')
    stamp(A, 2)
    F = 64
    unpack(A, F, 16, 12)
    A(f'v_pk_add_f32 v[56:57], v[{F}:{F+1}], v[{F+2}:{F+3}]')
    for i in range(2, 12): A(f'v_pk_add_f32 v[56:57], v[56:57], v[{F+2*i}:{F+1+2*i}]')
    A('v_add_f32 v56, v56, v57')
    run(W1(1))
    allreduce32(A, 56, 57)
    A(f'v_mul_f32 v60, {f2u(1.0/640)}, v56')
    A('v_cndmask_b32 v58, 0, v60, vcc')
    for i in range(12):
        m = 60 if i < 8 else 58
        A(f'v_pk_add_f32 v[{F+2*i}:{F+1+2*i}], v[{F+2*i}:{F+1+2*i}], v[{m}:{m+1}] op_sel_hi:[1,0] neg_lo:[0,1] neg_hi:[0,1]')
    A(f'v_pk_mul_f32 v[56:57], v[{F}:{F+1}], v[{F}:{F+1}]')
    for i in range(1, 12): A(f'v_pk_fma_f32 v[56:57], v[{F+2*i}:{F+1+2*i}], v[{F+2*i}:{F+1+2*i}], v[56:57]')
    A('v_add_f32 v56, v56, v57')
    allreduce32(A, 56, 57)
    A(f'v_mul_f32 v56, {f2u(1.0/640)}, v56'); A(f'v_add_f32 v56, {f2u(EPS)}, v56'); A('v_rsq_f32 v61, v56')
    A('v_cmp_eq_u32 vcc, 0, v42'); A('v_lshlrev_b32 v57, 3, v41'); A(f'v_cndmask_b32 v57, v{VOOB}, v57, vcc')
    A(f's_lshl_b32 s{T0}, s{S_Q}, 6'); A(f's_add_u32 s{T0}, s{T0}, {ST0}')
    A(f'buffer_store_dwordx2 v[60:61], v57, {WS}, s{T0} offen {SC}')
    for i in range(4): A(f'v_mov_b32 v{28+i}, 0')
    A(f's_lshl_b32 s{T0}, s{S_Q}, 10'); A(f's_add_u32 s{T0}, s{T0}, {KVS}')
    A(f's_cmp_eq_u32 s{S_WAVE}, 3'); A(f's_cselect_b32 s{T0}, s{T0}, {OOB}')
    A(f'buffer_store_dwordx4 v[28:31], v{V_L16}, {WS}, s{T0} offen {SC}')
    run(x_ops(1))
    for i in range(5): A(f'v_mov_b32 v{KX1+i}, v{45+i}')
    stamp(A, 3)
    def misc_loads():
        for n in range(3): A(f'buffer_load_dwordx4 v[{KX+4*n}:{KX+3+4*n}], v{VW2+n if n<2 else VW2+6}, {XS}, s{S_ROWS2} offen')
        A(f's_lshl_b32 s{T0+1}, s{S_RG}, 9'); A(f's_add_u32 s{T0+1}, s{T0+1}, {FAST}'); A('v_lshlrev_b32 v1, 3, v0')
        A(f'buffer_load_dword v2, v1, {WS}, s{T0+1} offen sc1')
    def xt_write():
        for n in range(3): A(f'ds_write_b128 v{KX1+n}, v[{KX+4*n}:{KX+3+4*n}]')
        A(f'v_mov_b32 v56, v{KX1+3}'); A(f'v_mov_b32 v57, v{KX1+4}')
    def xt_read():
        for f in range(5):
            base, off = (57, 64 * (f // 2) + 16 * (f % 2)) if f < 4 else (56, 128)
            A(f'ds_read_b64 v[{KX1+2*f}:{KX1+1+2*f}], v{base} offset:{off}')
    def stat_load():
        A(f'v_and_b32 v144, 31, v0'); A(f'v_add_u32 v144, s{S_PAIR}, v144'); A('v_cmp_gt_u32 vcc, 2048, v144'); A('v_lshlrev_b32 v144, 3, v144')
        A(f'v_cndmask_b32 v144, v{VOOB}, v144, vcc'); A(f's_mov_b32 s{T0}, {ST0}')
        A(f'buffer_load_dwordx2 v[60:61], v144, {WS}, s{T0} offen {SC}')
        A(f's_lshl_b32 s{T0}, s{S_TT2}, 1'); A(f's_add_u32 s{T0}, s{T0}, s{S_KW}'); A(f's_lshl_b32 s{T0}, s{T0}, 7'); A(f's_add_u32 s{T0}, s{T0}, {ST0}')
        A('v_and_b32 v144, 15, v0'); A('v_lshlrev_b32 v144, 3, v144')
        A(f'buffer_load_dwordx2 v[222:223], v144, {WS}, s{T0} offen {SC}')
        l = newl('gen')
        A(f's_add_u32 s{T0}, s{S_Q}, s{S_WAVE}'); A(f's_cmp_lg_u32 s{T0}, 0'); A(f's_cbranch_scc1 {l}')
        A(f's_mov_b32 s{T0}, {GEN}'); A('s_mov_b64 exec, 1')
        A.lines.append(f'    buffer_store_dword v{V_EP}, v{V_L16}, {WS}, s{T0} offen sc1')
        A('s_mov_b64 exec, -1'); A.label(l)
    def w2_stream():
        srd(A, SRD_W, S_W2, 640 * 1280)
        A(f's_mul_i32 s{T0}, s{S_KW}, 320'); A(f's_lshl_b32 s{T0+1}, s{S_MW}, 5'); A(f's_add_u32 s{T0}, s{T0}, s{T0+1}'); A(f's_mul_i32 s{T0}, s{T0}, 1280')
        A(f's_mul_i32 s{T0+1}, s{S_C2}, 160'); A(f's_add_u32 s{T0}, s{T0}, s{T0+1}')
        A(f's_mov_b32 s{S_RSTEP}, {64*1280}')
        set_stream(A, S_RW, S_REND, S_RTOT, T0, S_ROT2, 64 * 1280, 5)
    W2 = lambda p: raw_ops(A, p, ('W2', p), VW2)
    DW = env('DW', 2)
    if DW == 3: run(W1(2))
    extra = {c: (W1(c + DW) if c + DW < 10 else []) + (x_ops(c + 2) if c + 2 < 10 else []) for c in range(10)}
    extra[2] = extra[2] + [misc_loads]
    extra[5] = extra[5] + [xt_write]; extra[6] = [xt_read] + extra[6] + [lambda: global_check_issue(A, PH0, 144)]
    n21 = env('P1W2', 1)
    extra[8] = extra[8] + [w2_stream]
    for k in range(n21): extra[10 - n21 + k] = extra[10 - n21 + k] + W2(k)
    hooks = {('post', 2): lambda: (A(f'v_add_u32 v{V_EP}, 1, v{V_EP}'), flag_store(A, PH0, False)), ('bar', 8): lambda: (global_check(A, PH0, 144), stat_load())}
    TP = [[0, 4], [1], [2], [3]]
    def rdw(s, t):
        c, p = divmod(s, 4); slot = c % 5
        b = WF + (s % 2) * 20 + 4 * t
        off = (slot % 3) * SLOT + t * 64
        A(f'ds_read_b64_tr_b16 v[{b}:{b+1}], v{VRD + 2*p + slot // 3} offset:{off}')
        A(f'ds_read_b64_tr_b16 v[{b+2}:{b+3}], v{VRD + 2*p + slot // 3} offset:{off + 4 * 320}')
    def rdx(s):
        c, p = divmod(s, 4)
        b = XF + 4 * (s % 2)
        A(f'ds_read_b128 v[{b}:{b+3}], v{VRD+8+p} offset:{(c % 3) * 16384}')
    A.wait_tag(('X', 0)); A.barrier()
    stamp(A, 7)
    rdx(0)
    for t in range(5): rdw(0, t)
    for s in range(40):
        c, p = divmod(s, 4)
        if p == 0:
            pend = extra[c]; state = dict(n=len(pend), done=0)
        if p == 3 and c + 1 < 10:
            if ('bar', c + 1) in hooks: hooks[('bar', c + 1)]()
            A.wait_tag(('X', c + 1)); A.wait_tag(('W1', c + 1)); A.barrier()
            if ('post', c + 1) in hooks: hooks[('post', c + 1)]()
        xb = XF + 4 * (s % 2)
        for t in range(5):
            b = WF + (s % 2) * 20 + 4 * t
            cc = '0' if s == 0 else f'v[{ACC+16*t}:{ACC+16*t+15}]'
            A(f'v_mfma_f32_32x32x16_bf16 v[{ACC+16*t}:{ACC+16*t+15}], v[{b}:{b+3}], v[{xb}:{xb+3}], {cc}')
            if t in TP[p]:
                cc = '0' if c == 0 else f'v[{CSA+4*t}:{CSA+4*t+3}]'
                A(f'v_mfma_f32_16x16x32_bf16 v[{CSA+4*t}:{CSA+4*t+3}], v[{SEL}:{SEL+3}], v[{b}:{b+3}], {cc}')
            if s + 1 < 40:
                if t == 0: rdx(s + 1)
                rdw(s + 1, t)
            interleave(pend, p * 5 + t + 1, 20, state)
    stamp(A, 8)
    A(f'v_and_b32 v57, 31, v0'); A('v_lshlrev_b32 v57, 4, v57'); A(f'v_add_u32 v57, {EXT}, v57')
    A(f's_lshl_b32 s{T0}, s{S_WAVE}, 2'); A(f'v_add_u32 v58, s{T0}, v57')
    for t in (0, 4, 1, 2, 3):
        split_hilo(A, 20 + t, CSA + 4 * t, 56)
        A(f'ds_write_b32 v58, v{20+t} offset:{512*t}')
    neg_mean_frag(A, 16, 60, 56)
    for i in range(1, 4): A(f'v_mov_b32 v{16+i}, v16')
    A.waitcnt(lg=0); A.barrier()
    for t in range(5): A(f'ds_read_b128 v[{28+4*t}:{31+4*t}], v57 offset:{512*t}')
    A(f'v_max_f32 v60, {f2u(1e-30)}, v61')
    A(f's_mul_i32 s{S_LX}, s{S_TT1}, 40960')
    for t in range(5):
        A(f'v_mfma_f32_32x32x16_bf16 v[{ACC+16*t}:{ACC+16*t+15}], v[{28+4*t}:{31+4*t}], v[16:19], v[{ACC+16*t}:{ACC+16*t+15}]')
    T = 160
    SO = T0 + 9
    def store_tiles(P, nt, fn):
        for t in range(nt):
            fn(t)
            d = 24 + 8 * (t % 2)
            pack(P, d, ACC + 16 * t, 16)
            if t in (2, 4): A(f's_add_u32 s{SO}, s{SO}, 4096')
            if t == nt - 1: P.flush()
            for hh in range(2):
                A(f'buffer_store_dwordx4 v[{d+4*hh}:{d+4*hh+3}], v{V_L16}, {WS}, s{SO} offen offset:{((2*t+hh)%4)*1024} {SC}')
    w2rest = lambda: [o for p in range(n21, 5) for o in W2(p)]
    A(f's_cmp_lt_u32 s{S_M}, 12'); A('s_cbranch_scc1 L_p1_qkv')
    st = A.save()
    A('v_mul_f32 v56, v60, v60'); A(f'v_mov_b32 v57, {f2u(1.0+EPS)}'); A(f'v_fmac_f32 v57, {f2u(-EPS)}, v56'); A('v_rsq_f32 v57, v57'); A('v_mul_f32 v60, v60, v57')
    gelu_consts(A, 60)
    A(f's_sub_u32 s{SO}, s{S_M}, 12'); A(f's_mul_i32 s{SO}, s{SO}, 10240'); A(f's_add_u32 s{SO}, s{SO}, s{S_LX}'); A(f's_add_u32 s{SO}, s{SO}, {HS}')
    P = Pacer(A, w2rest(), PACE)
    store_tiles(P, 5, lambda t: gelu_pk(P, ACC + 16 * t, 16, 56, 58, 62, T))
    stamp(A, 9)
    publish(A, PH1)
    A('s_branch L_p1_done')
    A.label('L_p1_qkv'); A.restore(st)
    A(f'v_mul_f32 v56, {f2u(LOG2E)}, v60'); A('v_rcp_f32 v58, v60'); A(f'v_mul_f32 v58, {f2u(1e-6)}, v58')
    A(f's_cmp_ge_u32 s{S_M}, 4'); A('s_cbranch_scc1 L_p1_kv')
    st = A.save()
    srd(A, SRD_T, S_W4, 1536 * 1280)
    A(f's_lshl_b32 s{T0+5}, s{S_RG}, 2'); A(f's_add_u32 s{T0+5}, s{T0+5}, s{S_M}')
    A(f's_mul_i32 s{T0+7}, s{T0+5}, {32*1280}'); A(f's_mul_i32 s{T0+8}, s{S_WAVE}, 160'); A(f's_add_u32 s{T0+7}, s{T0+7}, s{T0+8}'); A(f's_add_u32 s{T0+8}, s{T0+7}, 640')
    A(f's_mul_i32 s{S_PAIR}, s{S_WAVE}, 48'); A(f's_add_u32 s{S_PAIR}, s{S_PAIR}, s{T0+5}'); A(f's_mul_i32 s{S_PAIR}, s{S_PAIR}, 5120'); A(f's_add_u32 s{S_PAIR}, s{S_PAIR}, {W4F}')
    A(f's_cmp_lt_u32 s{T0+5}, 48'); A(f's_cselect_b32 s{S_PAIR}, s{S_PAIR}, {OOB}')
    def qside(hf, n):
        A(f's_add_u32 m0, s{S_LW}, {XRING + hf * SLOT + n * 1024}')
        A(f'buffer_load_dwordx4 v{VW2+n}, s[{SRD_T}:{SRD_T+3}], s{T0+7+hf} offen lds', tag='side')
    A(f's_mul_i32 s{SO}, s{S_M}, 10240'); A(f's_add_u32 s{SO}, s{SO}, s{S_LX}'); A(f's_add_u32 s{SO}, s{SO}, {PQ}')
    P = Pacer(A, [lambda hf=hf, n=n: qside(hf, n) for hf in range(2) for n in range(5)] + w2rest(), env('PACEQ', 12))
    store_tiles(P, 5, lambda t: phi_pk(P, ACC + 16 * t, 16, 56, 58, 60, T))
    stamp(A, 9)
    A.wait_tag('side')
    A(f's_add_u32 s{T0+3}, s{S_LW}, {XRING}')
    tr160_bases(A, 58, 59, T0 + 3)
    for hf in range(2):
        for f in range(5):
            base, off = (59, 64 * (f // 2) + 16 * (f % 2)) if f < 4 else (58, 128)
            d = 64 + 20 * hf + 4 * f
            A(f'ds_read_b64_tr_b16 v[{d}:{d+1}], v{base} offset:{off + hf*SLOT}')
            A(f'ds_read_b64_tr_b16 v[{d+2}:{d+3}], v{base} offset:{off + 8*160 + hf*SLOT}')
    for hf in range(2):
        A(f's_add_u32 s{T0}, s{S_PAIR}, {hf*4*48*5120}'); A(f's_add_u32 s{T0+1}, s{T0}, 1024')
        for f in range(5):
            d = 64 + 20 * hf + 4 * f
            A(f'buffer_store_dwordx4 v[{d}:{d+3}], v{V_L16}, {WS}, s{T0 if f<4 else T0+1} offen offset:{(f if f<4 else 3)*1024} {SC}')
    publish(A, PH1)
    A('s_branch L_p1_done')
    A.label('L_p1_kv'); A.restore(st)
    srd(A, SRD_T, S_W3, 640 * 3072)
    A(f's_lshl_b32 s{T0+2}, s{S_RG}, 3'); A(f's_add_u32 s{T0+2}, s{T0+2}, s{S_M}'); A(f's_sub_u32 s{T0+2}, s{T0+2}, 4')
    A(f's_mul_i32 s{T0+5}, s{T0+2}, 2731'); A(f's_lshr_b32 s{T0+5}, s{T0+5}, 16')
    A(f's_mul_i32 s{T0+6}, s{T0+5}, 24'); A(f's_sub_u32 s{T0+6}, s{T0+2}, s{T0+6}')
    A(f's_lshl_b32 s{T0+5}, s{T0+5}, 2'); A(f's_add_u32 s{T0+5}, s{T0+5}, s{S_WAVE}'); A(f's_mul_i32 s{T0+7}, s{T0+5}, {32*3072}')
    A(f's_lshl_b32 s{T0+8}, s{T0+6}, 7'); A(f's_add_u32 s{T0+7}, s{T0+7}, s{T0+8}')
    A(f's_lshl_b32 s{S_PAIR}, s{T0+6}, 8'); A(f's_add_u32 s{S_PAIR}, s{S_PAIR}, {CS3}')
    A(f's_cmp_lt_u32 s{T0+2}, 120'); A(f's_cselect_b32 s{S_PAIR}, s{S_PAIR}, {OOB}')
    A('v_lshrrev_b32 v144, 3, v0'); A('v_mul_u32_u24 v144, 3072, v144'); A('v_and_b32 v145, 7, v0'); A('v_lshl_add_u32 v144, v145, 4, v144')
    A(f's_lshl_b32 s{T0+8}, s{S_WAVE}, 12'); A(f's_add_u32 s{T0+8}, s{T0+8}, {CSST}')
    def kside(n):
        A(f's_add_u32 m0, s{T0+8}, {n * 1024}')
        A(f'buffer_load_dwordx4 v144, s[{SRD_T}:{SRD_T+3}], s{T0+7} offen lds', tag='side')
        A(f's_add_u32 s{T0+7}, s{T0+7}, {8*3072}')
    P = Pacer(A, w2rest() + [lambda n=n: kside(n) for n in range(4)], env('PACEK', 10))
    phi_pk(P, ACC, 20, 56, 58, 60, T); phi_pk(P, ACC + 20, 20, 56, 58, 60, T)
    for i in range(40, 80, 2): P(f'v_pk_mul_f32 v[{ACC+i}:{ACC+i+1}], v[{ACC+i}:{ACC+i+1}], v[60:61] op_sel_hi:[1,0]')
    pack(P, 16, ACC, 80)
    A(f's_lshl_b32 s{T0}, s{S_WAVE}, 5'); P('v_and_b32 v56, 31, v0'); P(f'v_add_u32 v56, s{T0}, v56'); P('v_mul_u32_u24 v56, 328, v56'); P(f'v_add_u32 v56, {XRING}, v56')
    P('v_lshrrev_b32 v57, 5, v0'); P('v_lshl_add_u32 v57, v57, 3, v56')
    P('v_mov_b32 v58, 0x3f803f80'); P('v_mov_b32 v59, 0x3f803f80')
    for u in range(20): P(f'ds_write_b64 v57, v[{16+2*u}:{17+2*u}] offset:{16*u}')
    A('ds_write_b64 v56, v[58:59] offset:320')
    P('v_bfe_u32 v60, v0, 2, 2'); P('v_lshrrev_b32 v61, 5, v0'); P('v_lshl_add_u32 v60, v61, 2, v60'); P('v_lshlrev_b32 v145, 7, v60'); P('v_mul_u32_u24 v60, 328, v60'); P(f'v_add_u32 v60, {XRING}, v60')
    P('v_bfe_u32 v61, v0, 4, 1'); P('v_and_b32 v62, 3, v0'); P('v_lshl_add_u32 v61, v61, 2, v62')
    P('v_lshlrev_b32 v62, 3, v61')
    P('v_add_u32 v145, v145, v62'); P(f'v_add_u32 v145, s{T0+8}, v145')
    P(f'v_add_u32 v63, s{T0}, v62'); P('v_add_u32 v63, v63, v60')
    A(f's_mul_i32 s{T0+1}, s{S_WAVE}, 40'); A(f's_add_u32 s{T0+1}, s{T0+1}, 160'); P(f'v_add_u32 v62, s{T0+1}, v62')
    P('v_cmp_gt_u32 vcc, 5, v61'); P('v_mov_b32 v61, 320'); P('v_cndmask_b32 v62, v61, v62, vcc'); P('v_add_u32 v62, v62, v60')
    A.waitcnt(lg=0); A.barrier()
    for ks in range(8):
        for t in range(2):
            A(f'ds_read_b64_tr_b16 v[{64+8*ks+2*t}:{65+8*ks+2*t}], v63 offset:{(16*ks+8*t)*328}')
            A(f'ds_read_b64_tr_b16 v[{68+8*ks+2*t}:{69+8*ks+2*t}], v62 offset:{(16*ks+8*t)*328}')
    A('v_and_b32 v16, 31, v0'); A('v_lshrrev_b32 v17, 5, v0')
    A('v_lshlrev_b32 v18, 2, v16'); A('v_lshl_add_u32 v18, v17, 9, v18')
    A(f's_lshl_b32 s{T0+1}, s{S_WAVE}, 2'); A(f'v_subrev_u32 v16, s{T0+1}, v16')
    A('v_cmp_gt_u32 vcc, 20, v16'); A(f'v_cndmask_b32 v18, v{VOOB}, v18, vcc')
    A('v_cmp_gt_u32 vcc, 32, v0'); A(f'v_cndmask_b32 v19, v{VOOB}, v18, vcc')
    for ks in range(8):
        A(f'v_mfma_f32_32x32x16_bf16 v[160:175], v[{68+8*ks}:{71+8*ks}], v[{64+8*ks}:{67+8*ks}], {"0" if ks==0 else "v[160:175]"}')
    P.flush()
    A(f's_sub_u32 s{T0}, s{S_M}, 4'); A(f's_lshl_b32 s{T0}, s{T0}, 2'); A(f's_add_u32 s{T0}, s{T0}, s{S_WAVE}'); A(f's_lshl_b32 s{T0}, s{T0}, 12'); A(f's_add_u32 s{T0}, s{T0}, {KVS}')
    for r in range(12):
        j, i = divmod(r, 4)
        A(f'buffer_atomic_add_f32 v{160+r}, v{18 if r <= 8 else 19}, {WS}, s{T0} offen offset:{(8*j+i)*128}')
    stamp(A, 9)
    A.wait_tag('side')
    for ks in range(2):
        for t in range(2):
            b = 24 + 8 * ks + 4 * t
            A(f'ds_read_b64_tr_b16 v[{b}:{b+1}], v145 offset:{2048*ks+64*t}'); A(f'ds_read_b64_tr_b16 v[{b+2}:{b+3}], v145 offset:{2048*ks+64*t+1024}')
    for i in range(4): A(f'v_mov_b32 v{20+i}, 0x3f803f80')
    for ks in range(2):
        for t in range(2):
            d = 64 + 16 * t; b = 24 + 8 * ks + 4 * t
            A(f'v_mfma_f32_32x32x16_bf16 v[{d}:{d+15}], v[20:23], v[{b}:{b+3}], {"0" if ks==0 else f"v[{d}:{d+15}]"}')
    A('v_lshlrev_b32 v56, 2, v0')
    A('v_cndmask_b32 v64, v80, v64, vcc')
    A(f'buffer_atomic_add_f32 v64, v56, {WS}, s{S_PAIR} offen')
    publish(A, PH1)
    A.label('L_p1_done'); A.hist = []; A.nop(2)
    stamp(A, 10)
    e2_setup(A, True); e2_va_setup(A)
    l1, l2 = newl('p3s'), newl('p3e')
    A(f's_cmp_ge_u32 s{S_M}, 12'); A(f's_cbranch_scc1 {l1}')
    srd(A, SRD_W, S_W3, 640 * 3072)
    A('v_lshrrev_b32 v144, 4, v0'); A('v_bfe_u32 v145, v0, 2, 2'); A('v_xor_b32 v145, v145, v144'); A('v_mul_u32_u24 v144, 3072, v144')
    A('v_lshl_add_u32 v144, v145, 6, v144'); A('v_and_b32 v145, 3, v0'); A(f'v_lshl_add_u32 v{VW}, v145, 4, v144')
    for n in range(1, 4): A(f'v_add_u32 v{VW+n}, {n*4*3072}, v{VW}')
    A(f'v_mov_b32 v{VW+4}, v{VOOB}')
    A(f's_mov_b32 s{S_RSTEP}, {64*3072}'); A(f's_mul_i32 s{T0}, s{S_WAVE}, {16*3072}'); A(f's_lshl_b32 s{T0+1}, s{S_M}, 8')
    A(f's_branch {l2}')
    A.label(l1)
    srd(A, SRD_W, S_WO, 640 * 1280)
    A(f's_mov_b32 s{S_RSTEP}, {64*1280}'); A(f's_mul_i32 s{T0}, s{S_WAVE}, {16*1280}'); A(f's_sub_u32 s{T0+1}, s{S_M}, 12'); A(f's_mul_i32 s{T0+1}, s{T0+1}, 320')
    A.label(l2)
    A(f's_add_u32 s{T0}, s{T0}, s{T0+1}')
    set_stream(A, S_RW, S_REND, S_RTOT, T0, S_ROT1, f's{S_RSTEP}', 10)
    A(f's_mul_i32 s{T0}, s{S_KW}, 20480'); A(f's_mul_i32 s{T0+1}, s{S_TT2}, 40960'); A(f's_add_u32 s{T0}, s{T0}, s{T0+1}'); A(f's_add_u32 s{T0}, s{T0}, {HS}')
    set_stream(A, S_AO, S_AEND, S_ATOT, T0, S_ROT2, 4096, 5)
    A(f's_mul_i32 s{T0}, s{S_C2}, 48'); A(f's_mul_i32 s{T0+1}, s{S_KW}, 24'); A(f's_add_u32 s{T0}, s{T0}, s{T0+1}'); A(f's_add_u32 s{T0}, s{T0}, s{S_MW}')
    A(f's_mul_i32 s{T0}, s{T0}, 5120'); A(f's_add_u32 s{T0}, s{T0}, {W4F}')
    set_stream(A, S_FW, S_FEND, S_FTOT, T0, S_ROT4, 10240, 12)
    W3S = [7, 6, 5, 1, 2, 3, 4, 0, 7, 6]
    W3 = lambda p: raw_ops(A, W3S[p], ('W3', p))
    unpack(A, ACC, KX1, 10)
    A('v_mul_f32 v62, v222, v223'); A('v_mov_b32 v60, v223')
    for i in range(0, 20, 2): A(f'v_pk_fma_f32 v[{ACC+i}:{ACC+i+1}], v[{ACC+i}:{ACC+i+1}], v[60:61], v[62:63] op_sel_hi:[1,0,0] neg_lo:[0,0,1] neg_hi:[0,0,1]')
    A(f's_mul_i32 s{T0}, s{S_WAVE}, 5')
    A('v_lshrrev_b32 v57, 5, v0'); A(f'v_add_u32 v58, s{T0}, v57')
    A('v_and_b32 v59, 31, v0'); A('v_min_u32 v179, 20, v59'); A('v_lshlrev_b32 v179, 7, v179'); A('v_lshl_add_u32 v179, v57, 4, v179')
    A('v_lshlrev_b32 v59, 4, v59')
    for j in range(3):
        A(f'v_add_u32 v56, {2*j}, v58')
        A(f'v_lshrrev_b32 v{176+j}, 2, v56'); A(f'v_lshl_add_u32 v{176+j}, v{176+j}, 10, v59')
        A('v_and_b32 v57, 1, v56'); A(f'v_lshl_add_u32 v{176+j}, v57, 9, v{176+j}')
        A('v_bfe_u32 v57, v56, 1, 1'); A(f'v_lshl_add_u32 v{176+j}, v57, 3, v{176+j}')
    A('v_cmp_gt_u32 vcc, 32, v0'); A('v_add_u32 v59, 12288, v59'); A('v_cndmask_b32 v178, v59, v178, vcc')
    A(f's_mul_i32 s{T0}, s{S_MW}, 5120'); A(f's_mul_i32 s{T0+1}, s{S_KW}, 3072'); A(f's_add_u32 s{T0}, s{T0}, s{T0+1}'); A(f'v_add_u32 v180, s{T0}, v{V_L16}')
    A('v_lshlrev_b32 v181, 3, v0'); A('v_cmp_gt_u32 vcc, 16, v0'); A(f'v_cndmask_b32 v181, v{VOOB}, v181, vcc')
    n1 = env('S1BG', 0)
    for p in range(n1): run(W3(p))
    wait_local(A, PH1, 0xf000)
    stamp(A, 11)
    extra = {}
    n2l = env('P2W3', 3)
    for k, p in enumerate(range(n1, n2l)): extra[5 - (n2l - n1) + k] = W3(p)
    extra[4] = extra.get(4, []) + [lambda: global_check_issue(A, PH1, 144)]
    engine2(A, 5, [0, 1, 2, 3, 4], 'W2', extra, {}, D2, True, st0=12)
    e2_reduce(A, 0, 104)
    pack(A, KX1, ACC, 20)
    A(f's_add_u32 s{T0}, s{S_TILE2}, {X1}'); A(f's_add_u32 s{T0+1}, s{T0}, 4096')
    A(f'buffer_store_dwordx4 v[{KX1}:{KX1+3}], v{VA}, {WS}, s{T0} offen {SC}')
    A(f'buffer_store_dwordx4 v[{KX1+4}:{KX1+7}], v{VA}, {WS}, s{T0} offen offset:2048 {SC}')
    A(f'buffer_store_dwordx2 v[{KX1+8}:{KX1+9}], v{VA+2}, {WS}, s{T0+1} offen {SC}', tag='x1')
    stamp(A, 14)
    global_check(A, PH1, 144)
    A(f's_lshl_b32 s{T0}, s{S_C2}, 2'); A(f's_add_u32 s{T0}, s{T0}, s{S_WAVE}'); A(f's_lshl_b32 s{T0}, s{T0}, 12'); A(f's_add_u32 s{T0}, s{T0}, {KVS}')
    for j in range(4): A(f'buffer_load_dwordx4 v[{128+4*j}:{131+4*j}], v179, {WS}, s{T0} offen offset:{32*j} {SC}')
    A(f's_mul_i32 s{T0+4}, s{S_MW}, 40960'); A(f's_sub_u32 s{T0+4}, s{S_TILE2}, s{T0+4}')
    A(f's_lshl_b32 s{T0}, s{S_WAVE}, 10'); A(f's_add_u32 s{T0}, s{T0}, s{T0+4}'); A(f's_add_u32 s{T0}, s{T0}, {PQ}'); A(f's_add_u32 s{T0+1}, s{T0}, 40960')
    for tt in range(2):
        for a_ in range(2):
            b = 160 + 8 * tt + 4 * a_
            A(f'buffer_load_dwordx4 v[{b}:{b+3}], v{V_L16}, {WS}, s{T0+tt} offen offset:{a_*1024} {SC}')
    A('v_mov_b32 v26, 0x3f803f80'); A('v_mov_b32 v28, 0'); A('v_mov_b32 v29, 0')
    for i in range(10):
        A(f'v_dot2c_f32_bf16 v28, v{KX1+i}, v26'); A(f'v_dot2c_f32_bf16 v29, v{KX1+i}, v{KX1+i}')
    for sw in ('v_permlane16_swap_b32', 'v_permlane32_swap_b32'):
        A('v_mov_b32 v30, v28'); A('v_mov_b32 v31, v29'); A(f'{sw} v28, v30'); A(f'{sw} v29, v31')
        A('v_add_f32 v28, v28, v30'); A('v_add_f32 v29, v29, v31')
    A(f's_lshl_b32 s{T0}, s{S_TT2}, 1'); A(f's_add_u32 s{T0}, s{T0}, s{S_KW}'); A(f's_lshl_b32 s{T0}, s{T0}, 7')
    A(f's_lshl_b32 s{T0+1}, s{S_C2}, 14'); A(f's_add_u32 s{T0}, s{T0}, s{T0+1}'); A(f's_add_u32 s{T0}, s{T0}, {ST1}')
    A(f'buffer_store_dwordx2 v[28:29], v181, {WS}, s{T0} offen {SC}')
    nxt3 = n2l
    for _ in range(env('S2A', 1)): run(W3(nxt3)); nxt3 += 1
    A(f's_cmp_ge_u32 s{S_M}, 12'); A(f's_cselect_b32 s{T0}, {OO-X1}, 0')
    A(f's_add_u32 s{T0}, s{T0}, s{S_LX}'); A(f's_add_u32 s{T0}, s{T0}, {X1}')
    set_stream(A, S_AO, S_AEND, S_ATOT, T0, S_ROT1, 4096, 10)
    A.wait_tag('x1'); A.waitcnt(lg=0); A.barrier()
    flag_store(A, PH2X)
    stamp(A, 15)
    pack(A, 32, 128, 16)
    for tt in range(2):
        d = 64 + 16 * tt
        A(f'v_mfma_f32_32x32x16_bf16 v[{d}:{d+15}], v[32:35], v[{160+8*tt}:{163+8*tt}], 0')
        A(f'v_mfma_f32_32x32x16_bf16 v[{d}:{d+15}], v[36:39], v[{164+8*tt}:{167+8*tt}], v[{d}:{d+15}]')
    A(f's_mul_i32 s{T0+1}, s{S_KW}, 3072'); A(f's_add_u32 s{T0}, s{S_TILE2}, s{T0+1}'); A(f's_add_u32 s{T0}, s{T0}, {OO}')
    A(f's_cmp_eq_u32 s{S_KW}, 0'); A(f's_cselect_b32 s{T0+1}, s{T0}, {OOB}')
    for tt in range(2):
        d = 64 + 16 * tt
        A(f'v_add_f32 v{d+12}, {f2u(1e-6)}, v{d+12}'); A(f'v_rcp_f32 v{d+12}, v{d+12}')
        for i in range(0, 12, 2): A(f'v_pk_mul_f32 v[{d+i}:{d+i+1}], v[{d+i}:{d+i+1}], v[{d+12}:{d+13}] op_sel_hi:[1,0]')
        pack(A, 16 + 6 * tt, d, 12)
        for j in range(3): A(f'ds_write_b64 v{176+j}, v[{16+6*tt+2*j}:{17+6*tt+2*j}] offset:{5120*tt}')
    A.waitcnt(lg=0); A.barrier()
    for n in range(3): A(f'ds_read_b128 v[{16+4*n}:{19+4*n}], v180 offset:{1024*n}')
    for n in range(3): A(f'buffer_store_dwordx4 v[{16+4*n}:{19+4*n}], v{V_L16}, {WS}, s{T0 if n<2 else T0+1} offen offset:{1024*n} {SC}', tag='o')
    stamp(A, 16)
    W4S = [5, 1, 2, 3, 4, 0, 7, 6, 5, 1, 2, 3]
    W4 = lambda p: frag_ops(A, W4S[p], ('W4', p))
    np4 = env('P3W4', 1)
    GC = env('P3GC', 7)
    def p3_extra(n3):
        ex = {}
        c = 0
        for p in range(n3, 10):
            c = max(c, {8: 2, 9: 3}.get(p, 0))
            assert c <= p - 2
            ex[c] = W3(p); c += 1
        for k in range(np4): ex[10 - np4 + k] = ex.get(10 - np4 + k, []) + W4(k)
        ex[GC - 2] = ex.get(GC - 2, []) + [lambda: global_check_issue(A, PH2O, 144)]
        return ex
    A(f's_cmp_ge_u32 s{S_M}, 12'); A('s_cbranch_scc1 L_p3_s')
    st = A.save()
    e1_rd_setup(A, 256, True)
    wait_local(A, PH2X, 0xffff)
    stamp(A, 17)
    def p3_loads():
        global_check(A, PH2O, 144)
        A('v_and_b32 v56, 31, v0'); A('v_lshlrev_b32 v58, 2, v56'); A('v_lshlrev_b32 v56, 3, v56'); A('v_lshrrev_b32 v57, 5, v0'); A('v_lshl_add_u32 v56, v57, 16, v56')
        A(f's_lshl_b32 s{T0}, s{S_TT1}, 8'); A(f's_add_u32 s{T0}, s{T0}, {ST1}')
        for p in range(4):
            A(f'buffer_load_dwordx2 v[{160+2*p}:{161+2*p}], v56, {WS}, s{T0} offen {SC}')
            if p < 3: A(f's_add_u32 s{T0}, s{T0}, 16384')
        A(f's_lshl_b32 s{T0}, s{S_M}, 9'); A(f's_add_u32 s{T0}, s{T0}, {CS3}')
        for t in range(4): A(f'buffer_load_dword v{168+t}, v58, {WS}, s{T0} offen offset:{128*t} {SC}')
    def p3_prep():
        A('v_add_f32 v160, v160, v162'); A('v_add_f32 v161, v161, v163'); A('v_add_f32 v164, v164, v166'); A('v_add_f32 v165, v165, v167')
        A('v_add_f32 v160, v160, v164'); A('v_add_f32 v161, v161, v165')
        A('v_mov_b32 v162, v160'); A('v_mov_b32 v163, v161')
        A('v_permlane32_swap_b32 v160, v162'); A('v_permlane32_swap_b32 v161, v163')
        A('v_add_f32 v160, v160, v162'); A('v_add_f32 v161, v161, v163')
        A(f'v_mul_f32 v160, {f2u(1.0/640)}, v160'); A(f'v_mul_f32 v161, {f2u(1.0/640)}, v161')
        neg_mean_frag(A, 172, 160, 56)
        for i in range(1, 4): A(f'v_mov_b32 v{172+i}, 0')
        for t in range(4):
            split_hilo(A, 176 + 4 * t, 168 + t, 56)
            for i in range(1, 4): A(f'v_mov_b32 v{176+4*t+i}, 0')
        A('v_fma_f32 v161, -v160, v160, v161'); A('v_max_f32 v161, 0, v161'); A(f'v_add_f32 v161, {f2u(EPS)}, v161')
        A('v_rsq_f32 v60, v161')
        gelu_consts(A, 60)
    class Rec:
        def __init__(s2): s2.ops = []
        def __call__(s2, text, tag=None): s2.ops.append(text)
    real = A; R = Rec(); A = R; p3_prep(); A = real
    prep_ops = [lambda t3=R.ops[i:i+3]: [A(x) for x in t3] for i in range(0, len(R.ops), 3)]
    ex = p3_extra(nxt3)
    ex[9] = prep_ops + ex.get(9, [])
    engine1(A, 4, W3S, 'W3', ex, {('post', 1): lambda: flag_store(A, PH2O), ('bar', GC): p3_loads}, D1, swz=True, st0=18)
    for t in range(4):
        A(f'v_mfma_f32_32x32x16_bf16 v[{ACC+16*t}:{ACC+16*t+15}], v[{176+4*t}:{179+4*t}], v[172:175], v[{ACC+16*t}:{ACC+16*t+15}]')
    A.barrier()
    A(f's_mul_i32 s{SO}, s{S_TT1}, {96*1024}'); A(f's_lshl_b32 s{T0+1}, s{S_M}, 13'); A(f's_add_u32 s{SO}, s{SO}, s{T0+1}'); A(f's_add_u32 s{SO}, s{SO}, {H2}')
    n4e = env('E3W4', 6)
    w4e = lambda: [o for p in range(np4, n4e) for o in W4(p)]
    P = Pacer(A, w4e(), env('PACE3', 16))
    store_tiles(P, 4, lambda t: gelu_pk(P, ACC + 16 * t, 16, 56, 58, 62, 40))
    A('s_branch L_p3_done')
    A.label('L_p3_s'); A.restore(st)
    e1_rd_setup(A, 320, False)
    A.wait_tag('o'); A.barrier()
    flag_store(A, PH2O)
    ns = nxt3
    for _ in range(env('S2S', 2)): run(W3(ns)); ns += 1
    wait_local(A, PH2O, 0xffff)
    stamp(A, 17)
    engine1(A, 5, W3S, 'W3', p3_extra(ns), {('bar', GC): lambda: global_check(A, PH2O, 144)}, D1, st0=18)
    A.barrier()
    A(f's_sub_u32 s{SO}, s{S_M}, 12'); A(f's_mul_i32 s{SO}, s{SO}, 10240'); A(f's_add_u32 s{SO}, s{SO}, s{S_LX}'); A(f's_add_u32 s{SO}, s{SO}, {SS}')
    P = Pacer(A, [], 1000)
    store_tiles(P, 5, lambda t: None)
    run(w4e())
    A.label('L_p3_done'); A.hist = []; A.nop(2)
    stamp(A, 20)
    e2_setup(A, False)
    unpack(A, ACC, KX1, 10)
    srd(A, SRD_OUT, S_OUT, 2048 * 1280)
    A(f's_mul_i32 s{T0}, s{S_TT2}, {96*1024}'); A(f's_mul_i32 s{T0+1}, s{S_KW}, {48*1024}'); A(f's_add_u32 s{T0}, s{T0}, s{T0+1}'); A(f's_add_u32 s{T0}, s{T0}, {H2}')
    set_stream(A, S_AO, S_AEND, S_ATOT, T0, S_ROT4, 4096, 12)
    publish(A, PH3)
    stamp(A, 21)
    n3 = env('S3BG', 1)
    for p in range(n4e, n4e + n3): run(W4(p))
    A(f's_lshl_b32 s{T0+1}, s{S_WAVE}, 13'); A(f's_add_u32 s{T0+1}, s{T0+1}, {6*SLOT}')
    for n in range(3):
        A(f'v_add_u32 v60, {64*n}, v0'); div_magic(A, 61, 62, 60, 10, 63)
        A('v_mul_u32_u24 v61, 336, v61'); A(f'v_lshl_add_u32 v61, v62, 5, v61'); A(f'v_add_u32 v{176+n}, s{T0+1}, v61')
    A('v_and_b32 v58, 15, v0'); A('v_mul_u32_u24 v58, 336, v58'); A('v_lshrrev_b32 v59, 4, v0'); A('v_lshl_add_u32 v58, v59, 4, v58')
    A(f'v_add_u32 v179, s{T0+1}, v58'); A('v_lshrrev_b32 v59, 5, v0'); A('v_lshl_add_u32 v180, v59, 5, v179')
    unpack(A, 152, KX, 12)
    wait_local(A, PH3, 0x0fff)
    stamp(A, 22)
    extra = {}
    c = 0
    for p in range(n4e + n3, 12):
        c = max(c, p - 6); extra[c] = W4(p); c += 1
    def s_load():
        wait_local(A, PH3, 0xf000)
        A(f's_add_u32 s{T0}, s{S_TILE2}, {SS}'); A(f's_add_u32 s{T0+1}, s{T0}, 4096')
        A(f'buffer_load_dwordx4 v[128:131], v{VA}, {WS}, s{T0} offen {SC}')
        A(f'buffer_load_dwordx4 v[132:135], v{VA}, {WS}, s{T0} offen offset:2048 {SC}')
        A(f'buffer_load_dwordx2 v[136:137], v{VA+2}, {WS}, s{T0+1} offen {SC}')
    engine2(A, 12, W4S, 'W4', extra, {('post', 11): s_load}, D2, False, st0=23)
    e2_reduce(A, 4, 16)
    A(f'v_mov_b32 v56, {f2u(-LOG2E)}')
    TT = 16
    for i in range(0, 20, 2): A(f'v_pk_mul_f32 v[{TT+i}:{TT+i+1}], v[{ACC+i}:{ACC+i+1}], v[56:57] op_sel_hi:[1,0]')
    for i in range(20): A(f'v_exp_f32 v{TT+i}, v{TT+i}')
    for i in range(0, 20, 2): A(f'v_pk_add_f32 v[{TT+i}:{TT+i+1}], v[{TT+i}:{TT+i+1}], 1.0 op_sel_hi:[1,0]')
    for i in range(20): A(f'v_rcp_f32 v{TT+i}, v{TT+i}')
    unpack(A, 84, 128, 10)
    for i in range(0, 20, 2): A(f'v_pk_mul_f32 v[{ACC+i}:{ACC+i+1}], v[{ACC+i}:{ACC+i+1}], v[{TT+i}:{TT+i+1}]')
    for i in range(0, 20, 2): A(f'v_pk_mul_f32 v[{ACC+i}:{ACC+i+1}], v[{ACC+i}:{ACC+i+1}], v[{84+i}:{85+i}]')
    for f in range(5):
        base, off = (180, 128 * (f // 2) + 32 * (f % 2)) if f < 4 else (179, 256)
        A(f'ds_write_b128 v{base}, v[{ACC+4*f}:{ACC+4*f+3}] offset:{off}')
    A.waitcnt(lg=0)
    for n in range(3):
        A(f'ds_read_b128 v[{64+8*n}:{67+8*n}], v{176+n}'); A(f'ds_read_b128 v[{68+8*n}:{71+8*n}], v{176+n} offset:16')
    for n in range(3):
        for i in range(4): A(f'v_pk_add_f32 v[{64+8*n+2*i}:{65+8*n+2*i}], v[{64+8*n+2*i}:{65+8*n+2*i}], v[{152+8*n+2*i}:{153+8*n+2*i}]')
        pack(A, 40 + 4 * n, 64 + 8 * n, 8)
        A(f'buffer_store_dwordx4 v[{40+4*n}:{43+4*n}], v{VW2+n if n<2 else VW2+6}, s[{SRD_OUT}:{SRD_OUT+3}], s{S_ROWS2} offen {os.environ.get("OUTMOD", "")}')
    stamp(A, 25)
    stamp_out(A)
    A.label('L_end'); A('s_endpgm')

def main(out):
    hdr = open('cdna_kernels/' + NAME + '.s.ref').read().split('; Override launch')[0]
    A = Asm(); kernel(A)
    print(A.stats, 'nops', A.nops, file=sys.stderr)
    kd = f""".section .rodata,"a"
.p2align 6
.amdhsa_kernel {KN}
  .amdhsa_next_free_vgpr 384
  .amdhsa_next_free_sgpr 102
  .amdhsa_accum_offset 224
  .amdhsa_group_segment_fixed_size 0
  .amdhsa_kernarg_size 88
  .amdhsa_user_sgpr_count 2
  .amdhsa_user_sgpr_kernarg_segment_ptr 1
  .amdhsa_system_sgpr_workgroup_id_x 1
.end_amdhsa_kernel
"""
    txt = hdr + '; @launch grid=(256,1,1) block=(256,1,1) lds=163840\n.amdgcn_target "amdgcn-amd-amdhsa--gfx950"\n.text\n' + A.text() + kd
    open(out, 'w').write(txt)

if __name__ == '__main__':
    main(sys.argv[1] if len(sys.argv) > 1 else 'cdna_kernels/' + NAME + '.s')
```

```python
import struct, sys, math, os
from asmlib import *

NAME = 'recurrent_scan__linear_attn_block__mixer_s_mlp__prompt'
KN = NAME + '_kernel'
def f2u(x): return '0x%08x' % struct.unpack('<I', struct.pack('<f', x))[0]
def env(n, d): return int(os.environ.get(n, d))
LOG2E = 1.4426950408889634
GC1 = -2.0 * LOG2E * math.sqrt(2.0 / math.pi)
GC2 = GC1 * 0.044715
EPS = 1e-5
PQ, HS, X1, OO, SS, H2, W4F = 0x0, 0x280000, 0x500000, 0x780000, 0xA00000, 0xC80000, 0x1280000
KVS, CS3 = 0x1480000, 0x14A0000
ST0, ST1 = 0x14C0000, 0x14D0000
FAST, SLOW, GEN = 0x1500000, 0x1510000, 0x1520000
STAMP_BASE = 0x1900000
WS_SIZE = 0x2000000
OOB = 0x40000000
PH0, PHR, PH1, PH2X, PH2O, PH3 = range(6)
STAMP = env('STAMP', 0)
SC = 'sc1'
SCS = os.environ.get('SCS', 'sc1')
ALI = 'sc1' if 'alias' in os.environ.get('EXP', '') else ''
S_X, S_WQKV, S_WO, S_W1, S_W2, S_W3, S_W4, S_OUT, S_WS = 16, 18, 20, 24, 26, 28, 30, 32, 36
SRD_WS, SRD_W, SRD_X, SRD_OUT, SRD_T = 40, 44, 48, 52, 56
S_WAVE, S_RG, S_M, S_EP, S_FASTOK, S_Q = 60, 61, 62, 63, 64, 65
S_LW = 66
S_RW, S_RSTEP, S_REND, S_RTOT = 67, 68, 69, 70
S_FW, S_FEND, S_FTOT = 71, 72, 73
S_AO, S_AEND, S_ATOT = 74, 75, 76
S_KW, S_MW, S_TT1, S_TT2, S_C2 = 77, 78, 79, 80, 81
T0 = 82
S_ROT1, S_ROT2, S_ROT4 = 12, 13, 14
S_TILE2, S_ROWS2, S_LX, S_PAIR = 38, 15, 39, 3
S_J1, S_TP1, S_ROT3, S_SD, S_SS = 63, 98, 99, 100, 101
WS = f's[{SRD_WS}:{SRD_WS+3}]'
XS = f's[{SRD_X}:{SRD_X+3}]'
V_L16, VW, VA, V_EP, WF, ACC, VRD = 4, 5, 10, 15, 16, 64, 148
VW2, KX, KX1, VOOB = 192, 200, 212, 197
SLOT = 20480
VK = 236
VS = 240
VR2, VO = 224, 228
XRING, SPARE = 5 * SLOT, 5 * SLOT + 49152
EXT = 163840 - 2560
CSST = XRING + 41984

def stamp(A, i):
    if i in (7, 12, 18, 23): A.inloop = True
    if i in (8, 13, 19, 24): A.inloop = False
    if not STAMP: return
    A.lines.append('    s_memtime s[8:9]')
    A.lines.append('    s_waitcnt lgkmcnt(0)'); A.lg = []
    A.lines.append(f'    v_writelane_b32 v3, s8, {i}')
def stamp_out(A):
    if not STAMP: return
    L = A.lines.append
    L('    s_waitcnt vmcnt(0)')
    stamp(A, 29)
    L('    s_memrealtime s[8:9]'); L('    s_waitcnt lgkmcnt(0)')
    L('    v_writelane_b32 v3, s8, 31'); L('    v_writelane_b32 v3, s10, 30'); L(f'    v_writelane_b32 v3, s{S_J1}, 28')
    L(f'    s_lshl_b32 s8, s{S_Q}, 2'); L(f'    s_add_u32 s8, s8, s{S_WAVE}'); L('    s_lshl_b32 s8, s8, 7')
    L(f'    s_add_u32 s8, s8, {STAMP_BASE}')
    L('    v_lshlrev_b32 v1, 2, v0'); L('    v_cmp_gt_u32 vcc, 32, v0'); L('    s_and_saveexec_b64 s[6:7], vcc')
    L(f'    buffer_store_dword v3, v1, {WS}, s8 offen')

def srd(A, d, base, size):
    A(f's_mov_b32 s{d}, s{base}'); A(f's_mov_b32 s{d+1}, s{base+1}')
    A(f's_mov_b32 s{d+2}, {size}'); A(f's_mov_b32 s{d+3}, 0x20000')

def allreduce32(A, v, t):
    A(f'v_add_f32_dpp v{v}, v{v}, v{v} quad_perm:[1,0,3,2] row_mask:0xf bank_mask:0xf')
    A(f'v_add_f32_dpp v{v}, v{v}, v{v} quad_perm:[2,3,0,1] row_mask:0xf bank_mask:0xf')
    A(f'v_add_f32_dpp v{v}, v{v}, v{v} row_half_mirror row_mask:0xf bank_mask:0xf')
    A(f'v_add_f32_dpp v{v}, v{v}, v{v} row_mirror row_mask:0xf bank_mask:0xf')
    A(f'v_mov_b32 v{t}, v{v}')
    A(f'v_permlane16_swap_b32 v{v}, v{t}')
    A(f'v_add_f32 v{v}, v{v}, v{t}')

def gelu_pk(A, y, n, c1, c2, ir, t):
    for i in range(0, n, 2): A(f'v_pk_mul_f32 v[{t+i}:{t+i+1}], v[{y+i}:{y+i+1}], v[{y+i}:{y+i+1}]')
    for i in range(0, n, 2): A(f'v_pk_fma_f32 v[{t+i}:{t+i+1}], v[{t+i}:{t+i+1}], v[{c2}:{c2+1}], v[{c1}:{c1+1}] op_sel_hi:[1,0,0]')
    for i in range(0, n, 2): A(f'v_pk_mul_f32 v[{t+i}:{t+i+1}], v[{t+i}:{t+i+1}], v[{y+i}:{y+i+1}]')
    for i in range(n): A(f'v_exp_f32 v{t+i}, v{t+i}')
    for i in range(0, n, 2): A(f'v_pk_fma_f32 v[{t+i}:{t+i+1}], v[{t+i}:{t+i+1}], v[{ir}:{ir+1}], v[{ir}:{ir+1}] op_sel_hi:[1,0,0]')
    for i in range(n): A(f'v_rcp_f32 v{t+i}, v{t+i}')
    for i in range(0, n, 2): A(f'v_pk_mul_f32 v[{y+i}:{y+i+1}], v[{y+i}:{y+i+1}], v[{t+i}:{t+i+1}]')
def gelu_consts(A, r):
    A(f'v_mul_f32 v58, v{r}, v{r}'); A(f'v_mul_f32 v58, v58, v{r}'); A(f'v_mul_f32 v58, {f2u(GC2)}, v58')
    A(f'v_rcp_f32 v62, v{r}'); A(f'v_mul_f32 v56, {f2u(GC1)}, v{r}')
def phi_pk(A, y, n, rl, dl, r, t):
    for i in range(0, n, 2): A(f'v_pk_mul_f32 v[{t+i}:{t+i+1}], v[{y+i}:{y+i+1}], v[{rl}:{rl+1}] op_sel_hi:[1,0]')
    for i in range(n): A(f'v_exp_f32_e64 v{t+i}, v{t+i} clamp')
    for i in range(n): A(f'v_max_f32 v{y+i}, v{dl}, v{y+i}')
    for i in range(0, n, 2): A(f'v_pk_fma_f32 v[{y+i}:{y+i+1}], v[{y+i}:{y+i+1}], v[{r}:{r+1}], v[{t+i}:{t+i+1}] op_sel_hi:[1,0,1]')
def pack(A, dst, y, n):
    for i in range(0, n, 2): A(f'v_cvt_pk_bf16_f32 v{dst+i//2}, v{y+i}, v{y+i+1}')
def unpack(A, dst, src, n):
    A(f's_mov_b32 s{T0}, 0xffff0000')
    for i in range(n):
        A(f'v_lshlrev_b32 v{dst+2*i}, 16, v{src+i}'); A(f'v_and_b32 v{dst+2*i+1}, s{T0}, v{src+i}')
def div_magic(A, q, r, idx, d, t):
    magic = (65536 + d - 1) // d
    A(f'v_mul_u32_u24 v{q}, {magic}, v{idx}'); A(f'v_lshrrev_b32 v{q}, 16, v{q}')
    A(f'v_mul_u32_u24 v{t}, {d}, v{q}'); A(f'v_sub_u32 v{r}, v{idx}, v{t}')
def split_hilo(A, dst, c, t):
    A(f'v_cvt_pk_bf16_f32 v{t}, v{c}, v{c}'); A(f'v_lshlrev_b32 v{t}, 16, v{t}'); A(f'v_sub_f32 v{t}, v{c}, v{t}')
    A(f'v_cvt_pk_bf16_f32 v{dst}, v{c}, v{t}')
def neg_mean_frag(A, dst, m, t):
    A(f'v_cvt_pk_bf16_f32 v{dst}, -v{m}, -v{m}'); A(f'v_lshlrev_b32 v{t}, 16, v{dst}'); A(f'v_add_f32 v{t}, v{m}, v{t}')
    A(f'v_cvt_pk_bf16_f32 v{t}, -v{t}, -v{t}')
    A('v_cmp_gt_u32 vcc, 32, v0'); A(f'v_cndmask_b32 v{dst}, v{t}, v{dst}, vcc')

def advance(A, off, step, end, tot):
    ex = os.environ.get('EXP', '')
    if ('aliasW' in ex and off in (S_RW, S_FW)) or ('aliasA' in ex and off == S_AO): return
    A(f's_add_u32 s{off}, s{off}, {step}'); A(f's_cmp_ge_u32 s{off}, s{end}')
    A(f's_cselect_b32 s{off}, s{tot}, s{off}')
def set_stream(A, off, end, tot, base_reg, rot_reg, step, n):
    A(f's_mov_b32 s{tot}, s{base_reg}')
    if isinstance(step, int): A(f's_add_u32 s{end}, s{base_reg}, {n*step}')
    else: A(f's_mul_i32 s{end}, {step}, {n}'); A(f's_add_u32 s{end}, s{end}, s{base_reg}')
    A(f's_mul_i32 s{off}, s{rot_reg}, {step}'); A(f's_add_u32 s{off}, s{off}, s{base_reg}')
def rot(A, dst, terms, n):
    terms = [(r, m) for r, m in terms if m]
    if not terms:
        A(f's_mov_b32 s{dst}, 0'); return
    for k, (reg, mul) in enumerate(terms):
        if k == 0: A(f's_mul_i32 s{dst}, s{reg}, {mul}')
        else: A(f's_mul_i32 s{T0+2}, s{reg}, {mul}'); A(f's_add_u32 s{dst}, s{dst}, s{T0+2}')
    A(f's_lshr_b32 s{dst}, s{dst}, 3')
    A(f's_mul_i32 s{T0+2}, s{dst}, {(65536 + n - 1) // n}'); A(f's_lshr_b32 s{T0+2}, s{T0+2}, 16'); A(f's_mul_i32 s{T0+2}, s{T0+2}, {n}'); A(f's_sub_u32 s{dst}, s{dst}, s{T0+2}')
def raw_ops(A, slot, tag, vw=VW):
    def op(n):
        A(f's_add_u32 m0, s{S_LW}, {slot * SLOT + n * 1024}')
        A(f'buffer_load_dwordx4 v{vw+n}, s[{SRD_W}:{SRD_W+3}], s{S_RW} offen {ALI} lds', tag=tag)
        if n == 4: advance(A, S_RW, f's{S_RSTEP}', S_REND, S_RTOT)
    return [lambda n=n: op(n) for n in range(5)]
def frag_ops(A, slot, tag):
    def op(n):
        if n in (0, 4): A(f's_add_u32 m0, s{S_LW}, {slot * SLOT + (1024 if n == 4 else 0)}')
        if n == 4: A(f's_add_u32 s{T0+14}, s{S_FW}, 1024')
        so = f's{S_FW}' if n < 4 else f's{T0+14}'
        A(f'buffer_load_dwordx4 v{V_L16}, {WS}, {so} offen offset:{(n if n < 4 else 3) * 1024} {SC} lds', tag=tag)
        if n == 4: advance(A, S_FW, 10240, S_FEND, S_FTOT)
    return [lambda n=n: op(n) for n in range(5)]
def run(ops):
    for o in ops: o()

lbl = [0]
def newl(p):
    lbl[0] += 1; return f'L_{p}_{lbl[0]}'
def flag_store(A, ph, fast=True):
    l = newl('fs'); l2 = newl('fs')
    A(f's_cmp_gt_u32 s{S_WAVE}, 1'); A(f's_cbranch_scc1 {l}')
    A('s_mov_b64 exec, 1')
    A(f's_cmp_eq_u32 s{S_WAVE}, 0'); A(f's_cbranch_scc1 {l2}')
    A(f's_lshl_b32 s{T0+11}, s{S_Q}, 2'); A(f's_add_u32 s{T0+11}, s{T0+11}, {SLOW + ph * 1024}')
    A.lines.append(f'    buffer_store_dword v{V_EP}, v{V_L16}, {WS}, s{T0+11} offen sc1')
    A(f's_branch {l}')
    A.label(l2)
    if fast:
        A(f's_lshl_b32 s{T0+10}, s{S_RG}, 9'); A(f's_lshl_b32 s{T0+11}, s{S_M}, 2'); A(f's_add_u32 s{T0+10}, s{T0+10}, s{T0+11}')
        A(f's_add_u32 s{T0+10}, s{T0+10}, {FAST + ph * 64}')
        A.lines.append(f'    buffer_store_dword v{V_EP}, v{V_L16}, {WS}, s{T0+10} offen')
    A.label(l)
    A('s_mov_b64 exec, -1')
def publish(A, ph):
    A.vm.append(('x', set())); A.lg.append(('x', set()))
    A.waitcnt(vm=0, lg=0); A.barrier()
    flag_store(A, ph)
def wait_local(A, ph, mask):
    done, slow, lf, ls = newl('wd'), newl('wsl'), newl('wf'), newl('ws')
    A(f's_cmp_lg_u32 s{S_WAVE}, 0'); A(f's_cbranch_scc1 {done}')
    A(f's_mov_b32 s{T0+2}, {ph}')
    A('v_lshlrev_b32 v1, 2, v0')
    A(f's_lshl_b32 s{T0}, s{S_RG}, 9'); A(f's_lshl_b32 s{T0+1}, s{T0+2}, 6'); A(f's_add_u32 s{T0}, s{T0}, s{T0+1}'); A(f's_add_u32 s{T0}, s{T0}, {FAST}')
    A(f's_mov_b64 exec, {mask}')
    A(f's_mov_b32 s{T0+3}, 0')
    A(f's_cmp_eq_u32 s{S_FASTOK}, 0'); A(f's_cbranch_scc1 {slow}')
    L = A.lines.append
    A.label(lf)
    L(f'    buffer_load_dword v2, v1, {WS}, s{T0} offen sc1'); L(f'    s_add_u32 s{T0+3}, s{T0+3}, 1'); L('    s_waitcnt vmcnt(0)')
    L(f'    v_cmp_ne_u32 vcc, v2, v{V_EP}'); L(f'    s_cbranch_vccz {done}')
    L(f'    s_cmp_lt_u32 s{T0+3}, 96'); L(f'    s_cbranch_scc1 {lf}')
    L(f'    s_mov_b32 s{S_FASTOK}, 0')
    A.label(slow)
    L(f'    s_lshl_b32 s{T0}, s{S_RG}, 6'); L(f'    s_lshl_b32 s{T0+1}, s{T0+2}, 10'); L(f'    s_add_u32 s{T0}, s{T0}, s{T0+1}'); L(f'    s_add_u32 s{T0}, s{T0}, {SLOW}')
    A.label(ls)
    L(f'    buffer_load_dword v2, v1, {WS}, s{T0} offen sc1'); L(f'    s_add_u32 s{T0+3}, s{T0+3}, 1'); L('    s_waitcnt vmcnt(0)')
    L(f'    v_cmp_ne_u32 vcc, v2, v{V_EP}'); L(f'    s_cbranch_vccz {done}')
    L(f'    s_cmp_lt_u32 s{T0+3}, 20000'); L(f'    s_cbranch_scc1 {ls}')
    A.label(done)
    A('s_mov_b64 exec, -1')
    A.waitcnt(lg=0)
    A.barrier()
def global_check_issue(A, ph, r):
    A(f's_mov_b32 s{T0+13}, {SLOW + ph * 1024}')
    A(f'buffer_load_dwordx4 v[{r}:{r+3}], v{V_L16}, {WS}, s{T0+13} offen sc1')
def global_check(A, ph, r, only_s=False):
    done, lp = newl('gd'), newl('gl')
    if only_s: A(f's_mov_b32 exec_lo, 0x88888888'); A(f's_mov_b32 exec_hi, 0x88888888')
    for i in range(4): A(f'v_xor_b32 v{r+i}, v{r+i}, v{V_EP}')
    A(f'v_or3_b32 v{r}, v{r}, v{r+1}, v{r+2}'); A(f'v_or_b32 v{r}, v{r}, v{r+3}')
    A(f'v_cmp_ne_u32 vcc, 0, v{r}')
    L = A.lines.append
    L(f'    s_cbranch_vccz {done}')
    L(f'    s_mov_b32 s{T0+12}, 0'); L(f'    s_mov_b32 s{T0+13}, {SLOW + ph * 1024}')
    A.label(lp)
    L('    s_sleep 16')
    L(f'    buffer_load_dwordx4 v[{r}:{r+3}], v{V_L16}, {WS}, s{T0+13} offen sc1')
    L(f'    s_add_u32 s{T0+12}, s{T0+12}, 1'); L('    s_waitcnt vmcnt(0)')
    for i in range(4): L(f'    v_xor_b32 v{r+i}, v{r+i}, v{V_EP}')
    L(f'    v_or3_b32 v{r}, v{r}, v{r+1}, v{r+2}'); L(f'    v_or_b32 v{r}, v{r}, v{r+3}')
    L(f'    v_cmp_ne_u32 vcc, 0, v{r}'); L(f'    s_cbranch_vccz {done}')
    L(f'    s_cmp_lt_u32 s{T0+12}, 10000'); L(f'    s_cbranch_scc1 {lp}')
    A.label(done)
    if only_s: A('s_mov_b64 exec, -1')

class Pacer:
    def __init__(self, A, ops, every):
        self.A, self.ops, self.every, self.acc, self.busy = A, list(ops), every, 0, False
    def __call__(self, text, tag=None):
        self.A(text, tag)
        self.acc += 2 if text.split()[0].replace('_e64', '') in TRANS else 1
        if self.acc >= self.every and self.ops:
            self.acc = 0; self.ops.pop(0)()
    def flush(self):
        while self.ops: self.ops.pop(0)()
    def __getattr__(self, n): return getattr(self.A, n)

def interleave(pend, k, total, state):
    while pend and state['done'] * total < k * state['n']:
        pend.pop(0)(); state['done'] += 1

def engine1(A, NT, slots, wtag, extra, hooks, D, swz=False, st0=0):
    RS = NT * 64
    def a_ops(c):
        def op(ks):
            s = 4 * c + ks
            A(f'buffer_load_dwordx4 a[{4*s}:{4*s+3}], v{V_L16}, {WS}, s{S_AO} offen offset:{ks*1024} {SC}', tag=('A', c))
            if ks == 3: advance(A, S_AO, 4096, S_AEND, S_ATOT)
        return [lambda ks=ks: op(ks) for ks in range(4)]
    def rd(s, t):
        c, ks = divmod(s, 4); slot = slots[c]
        b = WF + (s % 2) * 20 + 4 * t
        off = (slot % 3) * SLOT + ks * 5120 + (0 if swz else t * 64)
        base = VRD + (slot // 3) * (4 if swz else 1) + (t if swz else 0)
        A(f'ds_read_b64_tr_b16 v[{b}:{b+1}], v{base} offset:{off}')
        A(f'ds_read_b64_tr_b16 v[{b+2}:{b+3}], v{base} offset:{off + 8 * RS}')
    for c in range(D): run(a_ops(c))
    A.wait_tag((wtag, 0)); A.barrier()
    stamp(A, st0)
    for t in range(NT): rd(0, t)
    for s in range(40):
        c, ks = divmod(s, 4)
        if ks == 0:
            pend = (a_ops(c + D) if c + D < 10 else []) + extra.get(c, [])
            state = dict(n=len(pend), done=0)
        if ('step', s) in hooks: hooks[('step', s)]()
        if ks == 3 and c + 1 < 10:
            if ('bar', c + 1) in hooks: hooks[('bar', c + 1)]()
            A.wait_tag((wtag, c + 1)); A.barrier()
            if ('post', c + 1) in hooks: hooks[('post', c + 1)]()
        for t in range(NT):
            b = WF + (s % 2) * 20 + 4 * t
            cc = '0' if s == 0 else f'v[{ACC+16*t}:{ACC+16*t+15}]'
            A(f'v_mfma_f32_32x32x16_bf16 v[{ACC+16*t}:{ACC+16*t+15}], v[{b}:{b+3}], a[{4*s}:{4*s+3}], {cc}')
            if s + 1 < 40: rd(s + 1, t)
            interleave(pend, ks * NT + t + 1, 4 * NT, state)
    stamp(A, st0 + 1)
def e1_rd_setup(A, RS, swz):
    A('v_bfe_u32 v56, v0, 2, 2'); A('v_lshrrev_b32 v57, 5, v0'); A('v_lshl_add_u32 v58, v57, 2, v56')
    A(f'v_mul_u32_u24 v58, {RS}, v58')
    A('v_bfe_u32 v57, v0, 4, 1'); A('v_lshl_add_u32 v58, v57, 5, v58')
    A('v_and_b32 v57, 3, v0'); A('v_lshl_add_u32 v58, v57, 3, v58')
    if not swz:
        for g in range(3): A(f'v_add_u32 v{VRD+g}, {g*3*SLOT}, v58')
    else:
        A('v_lshl_add_u32 v58, v56, 6, v58')
        for g in range(3):
            A(f'v_add_u32 v{VRD+4*g}, {g*3*SLOT}, v58')
            for t in range(1, 4): A(f'v_xor_b32 v{VRD+4*g+t}, {64*t}, v{VRD+4*g}')

def engine2(A, N, slots, wtag, extra, hooks, D, raw, st0=0):
    def a_ops(c):
        def op(st, u):
            b = 16 * (c % 10) + 8 * st + 4 * u
            A(f'buffer_load_dwordx4 a[{b}:{b+3}], v{VA+u}, {WS}, s{S_AO} offen offset:{st*2048} {SC}', tag=('A', c))
            if st == 1 and u == 1: advance(A, S_AO, 4096, S_AEND, S_ATOT)
        return [lambda st=st, u=u: op(st, u) for st in range(2) for u in range(2)]
    def rd(S, f):
        c, st = divmod(S, 2); slot = slots[c]
        b = WF + (S % 2) * 20 + 4 * f
        if raw:
            base = VR2 + 2 * (slot // 3) + (1 if f < 4 else 0)
            off = (slot % 3) * SLOT + st * 5120 + (64 * (f // 2) + 16 * (f % 2) if f < 4 else 128)
            A(f'ds_read_b64_tr_b16 v[{b}:{b+1}], v{base} offset:{off}')
            A(f'ds_read_b64_tr_b16 v[{b+2}:{b+3}], v{base} offset:{off + 8 * 160}')
        else:
            A(f'ds_read_b128 v[{b}:{b+3}], v{VRD + slot // 3} offset:{(slot % 3) * SLOT + st * 5120 + f * 1024}')
    for c in range(D): run(a_ops(c))
    A.wait_tag((wtag, 0)); A.barrier()
    stamp(A, st0)
    for f in range(5): rd(0, f)
    for S in range(2 * N):
        c, st = divmod(S, 2)
        if st == 0:
            pend = (a_ops(c + D) if c + D < N else []) + extra.get(c, [])
            state = dict(n=len(pend), done=0)
        if st == 1 and c + 1 < N:
            if ('bar', c + 1) in hooks: hooks[('bar', c + 1)]()
            A.wait_tag((wtag, c + 1)); A.barrier()
            if ('post', c + 1) in hooks: hooks[('post', c + 1)]()
        for f in range(5):
            b = WF + (S % 2) * 20 + 4 * f
            for u in range(2):
                acc = ACC + 20 * u + 4 * f
                cc = '0' if (S == 0 and u == 1) else f'v[{acc}:{acc+3}]'
                ab = 16 * (c % 10) + 8 * st + 4 * u
                A(f'v_mfma_f32_16x16x32_bf16 v[{acc}:{acc+3}], v[{b}:{b+3}], a[{ab}:{ab+3}], {cc}')
            if S + 1 < 2 * N: rd(S + 1, f)
            interleave(pend, st * 5 + f + 1, 10, state)
    stamp(A, st0 + 1)
def tr160_bases(A, nat, pair, sbase):
    A('v_bfe_u32 v56, v0, 2, 3'); A('v_lshrrev_b32 v57, 5, v0'); A('v_lshl_add_u32 v56, v57, 4, v56'); A('v_mul_u32_u24 v56, 160, v56')
    A(f'v_add_u32 v56, s{sbase}, v56')
    A('v_and_b32 v57, 3, v0'); A(f'v_lshl_add_u32 v{nat}, v57, 3, v56')
    A('v_and_b32 v57, 2, v0'); A(f'v_lshl_add_u32 v{pair}, v57, 3, v{nat}')
def e2_setup(A, raw):
    A(f's_mul_i32 s{T0}, s{S_KW}, 10240')
    if raw:
        tr160_bases(A, VR2, VR2 + 1, T0)
        A(f'v_add_u32 v{VR2+2}, {3*SLOT}, v{VR2}'); A(f'v_add_u32 v{VR2+3}, {3*SLOT}, v{VR2+1}')
    else:
        A(f'v_add_u32 v{VRD}, s{T0}, v{V_L16}'); A(f'v_add_u32 v{VRD+1}, {3*SLOT}, v{VRD}'); A(f'v_add_u32 v{VRD+2}, {6*SLOT}, v{VRD}')
def e2_va_setup(A):
    A('v_lshrrev_b32 v56, 4, v0'); A('v_lshlrev_b32 v56, 9, v56')
    A('v_and_b32 v57, 15, v0'); A('v_lshlrev_b32 v57, 4, v57')
    A(f's_lshl_b32 s{T0}, s{S_KW}, 8'); A(f'v_add_u32 v57, s{T0}, v57')
    A(f'v_add_u32 v{VA}, v56, v57'); A(f'v_xor_b32 v{VA+1}, 256, v{VA}')
    A('v_and_b32 v56, 512, v56'); A('v_add_u32 v57, v56, v57')
    A('v_lshrrev_b32 v56, 5, v0'); A(f'v_lshl_add_u32 v{VA+2}, v56, 3, v57')
def e2_reduce(A, slot, t, between=None):
    for f in range(5): A(f'ds_write_b128 v{VO+6}, v[{ACC+20+4*f}:{ACC+23+4*f}] offset:{f*1024}')
    A.waitcnt(lg=0); A.barrier()
    for f in range(5): A(f'ds_read_b128 v[{t+4*f}:{t+4*f+3}], v{VO+7} offset:{f*1024}')
    if between: between()
    for i in range(0, 20, 2): A(f'v_pk_add_f32 v[{ACC+i}:{ACC+i+1}], v[{ACC+i}:{ACC+i+1}], v[{t+i}:{t+i+1}]')

def kernel(A):
    D1, D2 = env('D1', 2), env('D2', 3)
    PACE = env('PACE', 20)
    A.raw(f'.globl {KN}\n.p2align 8\n.type {KN},@function\n{KN}:')
    A('s_cmp_ge_u32 s2, 256'); A('s_cbranch_scc1 L_end')
    if STAMP:
        A.lines.append('    s_memrealtime s[10:11]'); A.lines.append('    v_mov_b32 v3, 0')
    stamp(A, 0)
    A('s_load_dwordx16 s[16:31], s[0:1], 0'); A('s_load_dwordx4 s[32:35], s[0:1], 64'); A('s_load_dwordx2 s[36:37], s[0:1], 80')
    A('s_getpc_b64 s[4:5]'); A.label('L_pc')
    A('s_lshr_b32 s3, s2, 3'); A('s_lshl_b32 s3, s3, 11')
    A('v_and_b32 v1, 15, v0'); A('v_lshl_add_u32 v1, v1, 7, s3'); A('v_min_u32 v1, L_end-L_pc, v1')
    A('global_load_dword v2, v1, s[4:5]')
    A.vm = [('pf', set())]
    A('v_lshrrev_b32 v1, 6, v0'); A('v_and_b32 v0, 63, v0')
    A(f'v_readfirstlane_b32 s{S_WAVE}, v1')
    A(f'v_lshlrev_b32 v{V_L16}, 4, v0'); A(f'v_mov_b32 v{VOOB}, {OOB}')
    A(f's_and_b32 s{T0}, s2, 7'); A(f's_lshl_b32 s{S_RG}, s{T0}, 1'); A(f's_lshr_b32 s{T0}, s2, 7'); A(f's_add_u32 s{S_RG}, s{S_RG}, s{T0}')
    A(f's_lshr_b32 s{S_M}, s2, 3'); A(f's_and_b32 s{S_M}, s{S_M}, 15')
    A(f's_lshl_b32 s{S_Q}, s{S_RG}, 4'); A(f's_add_u32 s{S_Q}, s{S_Q}, s{S_M}')
    A(f's_mov_b32 s{S_FASTOK}, {env("FASTOK", 1)}')
    A(f's_mul_i32 s{S_LW}, s{S_WAVE}, 5120')
    A(f's_lshr_b32 s{S_KW}, s{S_WAVE}, 1'); A(f's_and_b32 s{S_MW}, s{S_WAVE}, 1')
    A(f's_lshl_b32 s{S_TT1}, s{S_RG}, 2'); A(f's_add_u32 s{S_TT1}, s{S_TT1}, s{S_WAVE}')
    A(f's_lshr_b32 s{T0}, s{S_M}, 3'); A(f's_lshl_b32 s{T0}, s{T0}, 1'); A(f's_lshl_b32 s{S_TT2}, s{S_RG}, 2')
    A(f's_add_u32 s{S_TT2}, s{S_TT2}, s{T0}'); A(f's_add_u32 s{S_TT2}, s{S_TT2}, s{S_MW}')
    A(f's_and_b32 s{S_C2}, s{S_M}, 7')
    A(f's_mov_b32 s{S_J1}, s{S_M}'); A(f's_mov_b32 s{S_TP1}, s{S_RG}')
    if env('MAP1', 1):
        A(f's_and_b32 s{T0}, s{S_RG}, 1'); A(f's_mul_i32 s{T0}, s{T0}, 12'); A(f's_add_u32 s{T0}, s{T0}, s{S_M}')
        A(f's_mul_i32 s{T0+1}, s{T0}, 43'); A(f's_lshr_b32 s{T0+1}, s{T0+1}, 8')
        A(f's_mul_i32 s{T0+2}, s{T0+1}, 6'); A(f's_sub_u32 s{T0}, s{T0}, s{T0+2}')
        A(f's_and_b32 s{T0+2}, s{S_RG}, 12'); A(f's_add_u32 s{T0+1}, s{T0+1}, s{T0+2}')
        A(f's_bfe_u32 s{T0+2}, s{S_RG}, 0x10001'); A(f's_mul_i32 s{T0+2}, s{T0+2}, 6'); A(f's_add_u32 s{T0}, s{T0}, s{T0+2}')
        A(f's_cmp_lt_u32 s{S_M}, 12'); A(f's_cselect_b32 s{S_J1}, s{T0}, s{S_M}'); A(f's_cselect_b32 s{S_TP1}, s{T0+1}, s{S_RG}')
    A(f's_lshr_b32 s{T0+3}, s{S_RG}, 1'); A(f's_and_b32 s{T0+6}, s{S_TP1}, 3')
    rot(A, S_ROT1, [(T0 + 3, env('R1X', 10)), (T0 + 6, env('R1S', 0)), (S_J1, env('R1M', 0))], 10)
    A(f's_lshl_b32 s{S_TP1}, s{S_TP1}, 2'); A(f's_add_u32 s{S_TP1}, s{S_TP1}, s{S_WAVE}')
    def late_rots():
        A(f's_lshr_b32 s{T0+3}, s{S_RG}, 1'); A(f's_and_b32 s{T0+4}, s{S_RG}, 1')
        A(f's_lshl_b32 s{T0+5}, s{T0+4}, 1'); A(f's_lshr_b32 s{T0+2}, s{S_M}, 3'); A(f's_add_u32 s{T0+5}, s{T0+5}, s{T0+2}')
        rot(A, S_ROT3, [(T0 + 3, env('R3X', 10)), (T0 + 4, env('R3S', 0)), (S_M, env('R3M', 0))], 10)
        rot(A, S_ROT2, [(T0 + 3, env('R2X', 5)), (T0 + 5, env('R2U', 0)), (S_C2, env('R2C', 0))], 5)
        rot(A, S_ROT4, [(T0 + 3, env('R4X', 0)), (T0 + 5, env('R4U', 0)), (S_C2, env('R4C', 0))], 12)
    A(f's_cmp_ge_u32 s{S_M}, 12')
    A(f's_cselect_b32 s{T0+8}, 1, 3'); A(f's_cselect_b32 s{T0+9}, 12, 0')
    A(f's_mul_i32 s{T0+7}, s{T0+8}, 1280')
    A(f's_sub_u32 s{T0+9}, s{S_J1}, s{T0+9}'); A(f's_mul_i32 s{T0+9}, s{T0+9}, 320')
    A(f's_sub_u32 s{T0+5}, s{S_J1}, 4'); A(f's_mul_i32 s{T0+6}, s{T0+5}, 160'); A(f's_add_u32 s{T0+6}, s{T0+6}, 1280')
    A(f's_cmp_lt_u32 s{T0+5}, 8')
    A(f's_cselect_b32 s{T0+9}, s{T0+6}, s{T0+9}'); A(f's_cselect_b32 s{T0+5}, 1120, 0')
    A(f'v_mov_b32 v60, s{T0+5}')
    for n in range(5):
        A(f'v_add_u32 v56, {64*n}, v0'); div_magic(A, 57, 58, 56, 20, 59)
        A(f'v_mul_lo_u32 v57, v57, s{T0+7}'); A('v_cmp_lt_u32 vcc, 9, v58'); A('v_lshl_add_u32 v57, v58, 4, v57')
        A('v_cndmask_b32 v59, 0, v60, vcc')
        A(f'v_add_u32 v{VW+n}, v57, v59')
    A(f's_lshl_b32 s{T0+6}, s{S_WAVE}, 4'); A(f's_mul_i32 s{T0+6}, s{T0+6}, s{T0+7}'); A(f's_add_u32 s{T0+6}, s{T0+6}, s{T0+9}')
    A(f's_lshl_b32 s{S_RSTEP}, s{T0+7}, 6')
    set_stream(A, S_RW, S_REND, S_RTOT, T0 + 6, S_ROT1, f's{S_RSTEP}', 10)
    A(f's_sub_u32 s{T0}, s{S_M}, 12'); A(f's_lshr_b32 s{T0+1}, s{T0}, 1'); A(f's_add_u32 s{T0+1}, s{T0+1}, 1'); A(f's_sub_u32 s{T0+2}, 0, s{T0+1}')
    A(f's_bitcmp1_b32 s{S_M}, 0'); A(f's_cselect_b32 s{T0+1}, s{T0+1}, s{T0+2}')
    A(f's_cmp_ge_u32 s{S_M}, 12'); A(f's_cselect_b32 s{T0+1}, s{T0+1}, 0')
    A(f's_lshl_b32 s{S_PAIR}, s{S_TP1}, 5'); A(f's_add_u32 s{S_PAIR}, s{S_PAIR}, s{T0+1}')
    A('v_lshrrev_b32 v56, 3, v0'); A('v_lshrrev_b32 v57, 4, v0'); A('v_and_b32 v58, 7, v0'); A('v_xor_b32 v58, v58, v57'); A('v_lshlrev_b32 v58, 4, v58')
    A(f'v_add_u32 v56, s{S_PAIR}, v56')
    for n in range(4):
        if n: A('v_add_u32 v56, 8, v56'); A('v_xor_b32 v58, 64, v58')
        A('v_mul_u32_u24 v57, 1280, v56'); A('v_cmp_gt_u32 vcc, 2048, v56'); A('v_add_u32 v57, v57, v58')
        A(f'v_cndmask_b32 v{VA+n}, v{VOOB}, v57, vcc')
    A(f's_mov_b32 s{T0}, 0')
    set_stream(A, S_AO, S_AEND, S_ATOT, T0, S_ROT1, 128, 10)
    A(f's_lshl_b32 s{S_LX}, s{S_WAVE}, 12'); A(f's_add_u32 s{S_LX}, s{S_LX}, {XRING}')
    A('v_lshrrev_b32 v40, 5, v0'); A(f's_lshl_b32 s{T0}, s{S_WAVE}, 1'); A(f'v_add_u32 v41, s{T0}, v40')
    A('v_and_b32 v42, 31, v0')
    A('v_mul_u32_u24 v43, 1280, v41'); A('v_lshl_add_u32 v43, v42, 4, v43')
    A('v_cmp_gt_u32 vcc, 16, v42'); A(f'v_cndmask_b32 v44, v{VOOB}, v43, vcc')
    A.waitcnt(lg=0)
    stamp(A, 1)
    srd(A, SRD_X, S_X, 2048 * 1280)
    A(f's_mul_i32 s{T0}, s{S_Q}, 10240')
    A(f'buffer_load_dwordx4 v[16:19], v43, {XS}, s{T0} offen')
    A(f'buffer_load_dwordx4 v[20:23], v43, {XS}, s{T0} offen offset:512')
    A(f'buffer_load_dwordx4 v[24:27], v44, {XS}, s{T0} offen offset:1024')
    A(f's_cmp_ge_u32 s{S_M}, 12')
    A(f's_cselect_b32 s{SRD_W}, s{S_W1}, s{S_WQKV}'); A(f's_cselect_b32 s{SRD_W+1}, s{S_W1+1}, s{S_WQKV+1}')
    A(f's_mul_i32 s{SRD_W+2}, s{T0+8}, {640*1280}'); A(f's_mov_b32 s{SRD_W+3}, 0x20000')
    def x_ops(c):
        def op(n):
            A(f's_add_u32 m0, s{S_LX}, {(c % 3) * 16384 + n * 1024}')
            A(f'buffer_load_dwordx4 v{VA+n}, {XS}, s{S_AO} offen {ALI} lds', tag=('X', c))
            if n == 3: advance(A, S_AO, 128, S_AEND, S_ATOT)
        return [lambda n=n: op(n) for n in range(4)]
    W1 = lambda p: raw_ops(A, p % 5, ('W1', p))
    run(W1(0))
    srd(A, SRD_WS, S_WS, WS_SIZE)
    late_rots()
    A('v_bfe_u32 v56, v0, 2, 2'); A('v_lshl_add_u32 v58, v40, 3, v56'); A('v_mul_u32_u24 v58, 320, v58')
    A('v_bfe_u32 v57, v0, 4, 1'); A('v_lshl_add_u32 v58, v57, 5, v58'); A('v_and_b32 v57, 3, v0'); A('v_lshl_add_u32 v58, v57, 3, v58')
    A('v_bfe_u32 v59, v0, 1, 3'); A('v_xor_b32 v59, v59, v40')
    A('v_lshlrev_b32 v60, 7, v42'); A(f'v_add_u32 v60, s{S_LX}, v60')
    for p in range(4):
        A(f's_add_u32 s{T0}, s{S_WAVE}, {p}'); A(f's_and_b32 s{T0}, s{T0}, 3'); A(f's_mul_i32 s{T0+1}, s{T0}, 5120'); A(f's_lshl_b32 s{T0}, s{T0}, 1')
        A(f'v_add_u32 v{VRD+2*p}, s{T0+1}, v58'); A(f'v_add_u32 v{VRD+2*p+1}, {3*SLOT}, v{VRD+2*p}')
        A(f'v_xor_b32 v61, s{T0}, v59'); A(f'v_lshl_add_u32 v{VRD+8+p}, v61, 4, v60')
    SEL, CSA, XF = 160, 164, 184
    A('v_bfe_u32 v56, v0, 2, 1'); A('v_bfe_u32 v57, v0, 4, 1'); A('v_cmp_eq_u32 s[6:7], v56, v57'); A('v_mov_b32 v56, 0x3f803f80')
    for i in range(4): A(f'v_cndmask_b32 v{SEL+i}, 0, v56, s[6:7]')
    A(f's_mul_i32 s{T0+3}, s{S_WAVE}, 2816'); A(f's_add_u32 s{T0+3}, s{T0+3}, {SPARE}')
    for n in range(5):
        A(f'v_add_u32 v56, {64*n}, v0'); div_magic(A, 57, 58, 56, 10, 59)
        A('v_mul_u32_u24 v59, 1280, v57'); A(f'v_lshl_add_u32 v{VW2+n}, v58, 4, v59')
        if n < 3: A('v_mul_u32_u24 v59, 176, v57'); A('v_lshl_add_u32 v59, v58, 4, v59'); A(f'v_add_u32 v{45+n}, s{T0+3}, v59')
    A('v_cmp_gt_u32 s[6:7], 32, v0'); A(f'v_cndmask_b32 v{VW2+6}, v{VOOB}, v{VW2+2}, s[6:7]')
    A('v_lshlrev_b32 v56, 4, v42'); A(f'v_add_u32 v56, {163840-1024}, v56'); A('v_cndmask_b32 v47, v56, v47, s[6:7]')
    A('v_and_b32 v48, 15, v0'); A('v_mul_u32_u24 v48, 176, v48'); A('v_lshrrev_b32 v56, 4, v0'); A('v_lshl_add_u32 v48, v56, 3, v48'); A(f'v_add_u32 v48, s{T0+3}, v48')
    A('v_lshl_add_u32 v49, v40, 4, v48')
    A(f's_mul_i32 s{S_TILE2}, s{S_TT2}, 40960'); A(f's_mul_i32 s{T0}, s{S_C2}, 5120'); A(f's_add_u32 s{S_TILE2}, s{S_TILE2}, s{T0}')
    A(f's_lshl_b32 s{S_ROWS2}, s{S_TT2}, 1'); A(f's_add_u32 s{S_ROWS2}, s{S_ROWS2}, s{S_KW}')
    A(f's_mul_i32 s{S_ROWS2}, s{S_ROWS2}, {16*1280}'); A(f's_mul_i32 s{T0}, s{S_C2}, 160'); A(f's_add_u32 s{S_ROWS2}, s{S_ROWS2}, s{T0}')
    run(x_ops(0))
    e2_setup(A, True)
    A(f's_mul_i32 s{T0}, s{S_C2}, 48'); A(f's_mul_i32 s{T0+1}, s{S_KW}, 24'); A(f's_add_u32 s{T0}, s{T0}, s{T0+1}'); A(f's_add_u32 s{T0}, s{T0}, s{S_MW}')
    A(f's_mul_i32 s{T0}, s{T0}, 5120'); A(f's_add_u32 s{T0}, s{T0}, {W4F}')
    set_stream(A, S_FW, S_FEND, S_FTOT, T0, S_ROT4, 10240, 12)
    A(f's_mul_i32 s{T0}, s{S_WAVE}, 5')
    A(f'v_add_u32 v58, s{T0}, v40')
    A('v_min_u32 v56, 20, v42'); A(f'v_subrev_u32 v57, s{S_WAVE}, v40')
    for j in range(4):
        A(f'v_add_u32 v59, {2*j}, v57'); A('v_cmp_gt_u32 s[6:7], 5, v59'); A('v_mad_u32_u24 v59, v59, 21, v56'); A('v_lshlrev_b32 v59, 4, v59')
        A(f'v_cndmask_b32 v{VK+j}, v{VOOB}, v59, s[6:7]')
    A('v_lshlrev_b32 v59, 4, v42')
    for j in range(3):
        A(f'v_add_u32 v56, {2*j}, v58')
        A(f'v_lshrrev_b32 v{VO+j}, 2, v56'); A(f'v_lshl_add_u32 v{VO+j}, v{VO+j}, 10, v59')
        A('v_and_b32 v57, 1, v56'); A(f'v_lshl_add_u32 v{VO+j}, v57, 9, v{VO+j}')
        A('v_bfe_u32 v57, v56, 1, 1'); A(f'v_lshl_add_u32 v{VO+j}, v57, 3, v{VO+j}')
    A('v_cmp_gt_u32 s[6:7], 32, v0'); A('v_add_u32 v59, 12288, v59'); A(f'v_cndmask_b32 v{VO+2}, v59, v{VO+2}, s[6:7]')
    A(f's_mul_i32 s{T0}, s{S_MW}, 5120'); A(f's_mul_i32 s{T0+1}, s{S_KW}, 3072'); A(f's_add_u32 s{T0}, s{T0}, s{T0+1}'); A(f'v_add_u32 v{VO+4}, s{T0}, v{V_L16}')
    A(f'v_lshlrev_b32 v{VO+5}, 3, v0'); A('v_cmp_gt_u32 s[6:7], 16, v0'); A(f'v_cndmask_b32 v{VO+5}, v{VOOB}, v{VO+5}, s[6:7]')
    A(f's_xor_b32 s{T0+1}, s{S_WAVE}, 2'); A(f's_mul_i32 s{T0+1}, s{T0+1}, 5120')
    A(f'v_add_u32 v{VO+6}, s{S_LW}, v{V_L16}'); A(f'v_add_u32 v{VO+7}, s{T0+1}, v{V_L16}')
    A(f's_mov_b32 s{T0+1}, {GEN}'); A('v_mov_b32 v1, 0')
    A(f'buffer_load_dword v{V_EP}, v1, {WS}, s{T0+1} offen sc1')
    stamp(A, 2)
    F = 64
    unpack(A, F, 16, 12)
    A(f'v_pk_add_f32 v[56:57], v[{F}:{F+1}], v[{F+2}:{F+3}]')
    for i in range(2, 12): A(f'v_pk_add_f32 v[56:57], v[56:57], v[{F+2*i}:{F+1+2*i}]')
    A('v_add_f32 v56, v56, v57')
    run(W1(1))
    allreduce32(A, 56, 57)
    A(f'v_mul_f32 v60, {f2u(1.0/640)}, v56')
    A('v_cndmask_b32 v58, 0, v60, vcc')
    for i in range(12):
        m = 60 if i < 8 else 58
        A(f'v_pk_add_f32 v[{F+2*i}:{F+1+2*i}], v[{F+2*i}:{F+1+2*i}], v[{m}:{m+1}] op_sel_hi:[1,0] neg_lo:[0,1] neg_hi:[0,1]')
    A(f'v_pk_mul_f32 v[56:57], v[{F}:{F+1}], v[{F}:{F+1}]')
    for i in range(1, 12): A(f'v_pk_fma_f32 v[56:57], v[{F+2*i}:{F+1+2*i}], v[{F+2*i}:{F+1+2*i}], v[56:57]')
    A('v_add_f32 v56, v56, v57')
    allreduce32(A, 56, 57)
    A(f'v_mul_f32 v56, {f2u(1.0/640)}, v56'); A(f'v_add_f32 v56, {f2u(EPS)}, v56'); A('v_rsq_f32 v61, v56')
    A('v_cmp_eq_u32 vcc, 0, v42'); A('v_lshlrev_b32 v57, 3, v41'); A(f'v_cndmask_b32 v57, v{VOOB}, v57, vcc')
    A(f's_lshl_b32 s{T0}, s{S_Q}, 6'); A(f's_add_u32 s{T0}, s{T0}, {ST0}')
    A(f'buffer_store_dwordx2 v[60:61], v57, {WS}, s{T0} offen {SC}')
    for i in range(4): A(f'v_mov_b32 v{28+i}, 0')
    A(f's_lshl_b32 s{T0}, s{S_Q}, 10'); A(f's_add_u32 s{T0}, s{T0}, {KVS}')
    A(f's_cmp_eq_u32 s{S_WAVE}, 3'); A(f's_cselect_b32 s{T0}, s{T0}, {OOB}')
    A(f'buffer_store_dwordx4 v[28:31], v{V_L16}, {WS}, s{T0} offen {SC}')
    run(x_ops(1))
    for i in range(5): A(f'v_mov_b32 v{KX1+i}, v{45+i}')
    stamp(A, 3)
    def misc_loads():
        for n in range(3): A(f'buffer_load_dwordx4 v[{KX+4*n}:{KX+3+4*n}], v{VW2+n if n<2 else VW2+6}, {XS}, s{S_ROWS2} offen')
        A(f's_lshl_b32 s{T0+1}, s{S_RG}, 9'); A(f's_add_u32 s{T0+1}, s{T0+1}, {FAST}'); A('v_lshlrev_b32 v1, 3, v0')
        A(f'buffer_load_dword v2, v1, {WS}, s{T0+1} offen sc1')
    def xt_write():
        for n in range(3): A(f'ds_write_b128 v{KX1+n}, v[{KX+4*n}:{KX+3+4*n}]')
        A(f'v_mov_b32 v56, v{KX1+3}'); A(f'v_mov_b32 v57, v{KX1+4}')
    def xt_read():
        for f in range(5):
            base, off = (57, 64 * (f // 2) + 16 * (f % 2)) if f < 4 else (56, 128)
            A(f'ds_read_b64 v[{KX1+2*f}:{KX1+1+2*f}], v{base} offset:{off}')
    def stat_load():
        A(f'v_and_b32 v144, 31, v0'); A(f'v_add_u32 v144, s{S_PAIR}, v144'); A('v_cmp_gt_u32 vcc, 2048, v144'); A('v_lshlrev_b32 v144, 3, v144')
        A(f'v_cndmask_b32 v144, v{VOOB}, v144, vcc'); A(f's_mov_b32 s{T0}, {ST0}')
        A(f'buffer_load_dwordx2 v[60:61], v144, {WS}, s{T0} offen {SC}')
        A(f's_lshl_b32 s{T0}, s{S_TT2}, 1'); A(f's_add_u32 s{T0}, s{T0}, s{S_KW}'); A(f's_lshl_b32 s{T0}, s{T0}, 7'); A(f's_add_u32 s{T0}, s{T0}, {ST0}')
        A('v_and_b32 v144, 15, v0'); A('v_lshlrev_b32 v144, 3, v144')
        A(f'buffer_load_dwordx2 v[222:223], v144, {WS}, s{T0} offen {SC}')
        l = newl('gen')
        A(f's_add_u32 s{T0}, s{S_Q}, s{S_WAVE}'); A(f's_cmp_lg_u32 s{T0}, 0'); A(f's_cbranch_scc1 {l}')
        A(f's_mov_b32 s{T0}, {GEN}'); A('s_mov_b64 exec, 1')
        A.lines.append(f'    buffer_store_dword v{V_EP}, v{V_L16}, {WS}, s{T0} offen sc1')
        A('s_mov_b64 exec, -1'); A.label(l)
    def w2_stream():
        srd(A, SRD_W, S_W2, 640 * 1280)
        A(f's_mul_i32 s{T0}, s{S_KW}, 320'); A(f's_lshl_b32 s{T0+1}, s{S_MW}, 5'); A(f's_add_u32 s{T0}, s{T0}, s{T0+1}'); A(f's_mul_i32 s{T0}, s{T0}, 1280')
        A(f's_mul_i32 s{T0+1}, s{S_C2}, 160'); A(f's_add_u32 s{T0}, s{T0}, s{T0+1}')
        A(f's_mov_b32 s{S_RSTEP}, {64*1280}')
        set_stream(A, S_RW, S_REND, S_RTOT, T0, S_ROT2, 64 * 1280, 5)
    W2 = lambda p: raw_ops(A, p, ('W2', p), VW2)
    DW = env('DW', 2)
    if DW == 3: run(W1(2))
    extra = {c: (W1(c + DW) if c + DW < 10 else []) + (x_ops(c + 2) if c + 2 < 10 else []) for c in range(10)}
    extra[2] = extra[2] + [misc_loads]
    extra[5] = extra[5] + [xt_write]; extra[6] = [xt_read] + extra[6] + [lambda: global_check_issue(A, PH0, 144)]
    n21 = env('P1W2', 1)
    def mall_touch():
        A(f's_cmp_eq_u32 s{S_MW}, 0')
        A(f's_cselect_b32 s{SRD_T}, s{S_W2}, s{S_WO}'); A(f's_cselect_b32 s{SRD_T+1}, s{S_W2+1}, s{S_WO+1}')
        A(f's_cselect_b32 s{T0}, s{S_W3}, s{S_W4}'); A(f's_cselect_b32 s{T0+1}, s{S_W3+1}, s{S_W4+1}')
        A(f's_cmp_eq_u32 s{S_KW}, 0')
        A(f's_cselect_b32 s{SRD_T}, s{SRD_T}, s{T0}'); A(f's_cselect_b32 s{SRD_T+1}, s{SRD_T+1}, s{T0+1}')
        A(f's_cselect_b32 s{T0}, 25, 60'); A(f's_mul_i32 s{SRD_T+2}, s{T0}, 32768'); A(f's_mov_b32 s{SRD_T+3}, 0x20000')
        A(f's_sub_u32 s{T0+1}, s{T0}, 1'); A(f'v_min_u32 v58, s{T0+1}, v0'); A('v_lshlrev_b32 v58, 7, v58')
        A(f's_mul_i32 s{T0}, s{T0}, s{S_Q}'); A(f's_lshl_b32 s{T0}, s{T0}, 7')
        A(f'buffer_load_dword v59, v58, s[{SRD_T}:{SRD_T+3}], s{T0} offen')
    def side_setup():
        l1, l2 = newl('sd'), newl('sd')
        A(f's_mov_b32 s{S_SS}, {OOB}'); A(f's_mov_b32 s{T0+8}, {OOB}')
        srd(A, SRD_T, S_W4, 1536 * 1280)
        A(f's_lshr_b32 s{T0+4}, s{S_TP1}, 2')
        for n in range(5): A(f'v_mov_b32 v{VS+n}, v{VW2+n}')
        A(f's_cmp_ge_u32 s{S_J1}, 12'); A(f's_cbranch_scc1 {l2}')
        A(f's_cmp_ge_u32 s{S_J1}, 4'); A(f's_cbranch_scc1 {l1}')
        A(f's_lshl_b32 s{T0+5}, s{S_J1}, 4'); A(f's_add_u32 s{T0+5}, s{T0+5}, s{T0+4}')
        A(f's_mul_i32 s{S_SS}, s{T0+5}, {32*1280}'); A(f's_mul_i32 s{T0+8}, s{S_WAVE}, 160'); A(f's_add_u32 s{S_SS}, s{S_SS}, s{T0+8}'); A(f's_add_u32 s{T0+8}, s{S_SS}, 640')
        A(f's_mul_i32 s{S_SD}, s{S_WAVE}, 48'); A(f's_add_u32 s{S_SD}, s{S_SD}, s{T0+5}'); A(f's_mul_i32 s{S_SD}, s{S_SD}, 5120'); A(f's_add_u32 s{S_SD}, s{S_SD}, {W4F}')
        A(f's_cmp_lt_u32 s{T0+5}, 48'); A(f's_cselect_b32 s{S_SD}, s{S_SD}, {OOB}')
        A(f's_branch {l2}')
        A.label(l1)
        srd(A, SRD_T, S_W3, 640 * 3072)
        A(f's_lshl_b32 s{T0+2}, s{T0+4}, 3'); A(f's_add_u32 s{T0+2}, s{T0+2}, s{S_J1}'); A(f's_sub_u32 s{T0+2}, s{T0+2}, 4')
        A(f's_mul_i32 s{T0+5}, s{T0+2}, 2731'); A(f's_lshr_b32 s{T0+5}, s{T0+5}, 16')
        A(f's_mul_i32 s{T0+6}, s{T0+5}, 24'); A(f's_sub_u32 s{T0+6}, s{T0+2}, s{T0+6}')
        A(f's_lshl_b32 s{T0+5}, s{T0+5}, 2'); A(f's_add_u32 s{T0+5}, s{T0+5}, s{S_WAVE}'); A(f's_mul_i32 s{S_SS}, s{T0+5}, {32*3072}')
        A(f's_lshl_b32 s{T0+5}, s{T0+6}, 7'); A(f's_add_u32 s{S_SS}, s{S_SS}, s{T0+5}')
        A(f's_lshl_b32 s{S_SD}, s{T0+6}, 8'); A(f's_add_u32 s{S_SD}, s{S_SD}, {CS3}')
        A(f's_cmp_lt_u32 s{T0+2}, 120'); A(f's_cselect_b32 s{S_SD}, s{S_SD}, {OOB}')
        A('v_lshrrev_b32 v58, 3, v0'); A('v_mul_u32_u24 v58, 3072, v58'); A('v_and_b32 v59, 7, v0'); A(f'v_lshl_add_u32 v{VS}, v59, 4, v58')
        for n in range(1, 4): A(f'v_add_u32 v{VS+n}, {n*8*3072}, v{VS}')
        A(f'v_mov_b32 v{VS+4}, v{VOOB}')
        A.label(l2)
    side_loads = [lambda j=j: A(f'buffer_load_dwordx4 a[{120+4*j}:{123+4*j}], v{VS+j%5}, s[{SRD_T}:{SRD_T+3}], s{S_SS if j<5 else T0+8} offen') for j in range(10)]
    def a2_setup():
        e2_va_setup(A)
        A(f's_mul_i32 s{T0}, s{S_KW}, 20480'); A(f's_mul_i32 s{T0+1}, s{S_TT2}, 40960'); A(f's_add_u32 s{T0}, s{T0}, s{T0+1}'); A(f's_add_u32 s{T0}, s{T0}, {HS}')
        set_stream(A, S_AO, S_AEND, S_ATOT, T0, S_ROT2, 4096, 5)
    if env('TOUCH', -1) >= 0: extra[env('TOUCH', -1)] = extra[env('TOUCH', -1)] + [mall_touch]
    extra[8] = extra[8] + [w2_stream, side_setup] + side_loads
    extra[9] = extra[9] + [a2_setup]
    for k in range(n21): extra[10 - n21 + k] = W2(k) + extra[10 - n21 + k] if 10 - n21 + k == 9 else extra[10 - n21 + k] + W2(k)
    hooks = {('post', 2): lambda: (A(f'v_add_u32 v{V_EP}, 1, v{V_EP}'), flag_store(A, PH0, False)), ('bar', 8): lambda: (global_check(A, PH0, 144), stat_load())}
    TP = [[0, 4], [1], [2], [3]]
    def rdw(s, t):
        c, p = divmod(s, 4); slot = c % 5
        b = WF + (s % 2) * 20 + 4 * t
        off = (slot % 3) * SLOT + t * 64
        A(f'ds_read_b64_tr_b16 v[{b}:{b+1}], v{VRD + 2*p + slot // 3} offset:{off}')
        A(f'ds_read_b64_tr_b16 v[{b+2}:{b+3}], v{VRD + 2*p + slot // 3} offset:{off + 4 * 320}')
    def rdx(s):
        c, p = divmod(s, 4)
        b = XF + 4 * (s % 2)
        A(f'ds_read_b128 v[{b}:{b+3}], v{VRD+8+p} offset:{(c % 3) * 16384}')
    A.wait_tag(('X', 0)); A.barrier()
    stamp(A, 7)
    rdx(0)
    for t in range(5): rdw(0, t)
    for s in range(40):
        c, p = divmod(s, 4)
        if p == 0:
            pend = extra[c]; state = dict(n=len(pend), done=0)
        if p == 3 and c + 1 < 10:
            if ('bar', c + 1) in hooks: hooks[('bar', c + 1)]()
            A.wait_tag(('X', c + 1)); A.wait_tag(('W1', c + 1)); A.barrier()
            if ('post', c + 1) in hooks: hooks[('post', c + 1)]()
        xb = XF + 4 * (s % 2)
        for t in range(5):
            b = WF + (s % 2) * 20 + 4 * t
            cc = '0' if s == 0 else f'v[{ACC+16*t}:{ACC+16*t+15}]'
            A(f'v_mfma_f32_32x32x16_bf16 v[{ACC+16*t}:{ACC+16*t+15}], v[{b}:{b+3}], v[{xb}:{xb+3}], {cc}')
            if t in TP[p]:
                cc = '0' if c == 0 else f'v[{CSA+4*t}:{CSA+4*t+3}]'
                A(f'v_mfma_f32_16x16x32_bf16 v[{CSA+4*t}:{CSA+4*t+3}], v[{SEL}:{SEL+3}], v[{b}:{b+3}], {cc}')
            if s + 1 < 40:
                if t == 0: rdx(s + 1)
                rdw(s + 1, t)
            interleave(pend, p * 5 + t + 1, 20, state)
    stamp(A, 8)
    A(f'v_and_b32 v57, 31, v0'); A('v_lshlrev_b32 v57, 4, v57'); A(f'v_add_u32 v57, {EXT}, v57')
    A(f's_lshl_b32 s{T0}, s{S_WAVE}, 2'); A(f'v_add_u32 v58, s{T0}, v57')
    for t in (0, 4, 1, 2, 3):
        split_hilo(A, 20 + t, CSA + 4 * t, 56)
        A(f'ds_write_b32 v58, v{20+t} offset:{512*t}')
    neg_mean_frag(A, 16, 60, 56)
    for i in range(1, 4): A(f'v_mov_b32 v{16+i}, v16')
    A.waitcnt(lg=0); A.barrier()
    for t in range(5): A(f'ds_read_b128 v[{28+4*t}:{31+4*t}], v57 offset:{512*t}')
    A(f'v_max_f32 v60, {f2u(1e-30)}, v61')
    A(f's_mul_i32 s{S_LX}, s{S_TT1}, 40960')
    for t in range(5):
        A(f'v_mfma_f32_32x32x16_bf16 v[{ACC+16*t}:{ACC+16*t+15}], v[{28+4*t}:{31+4*t}], v[16:19], v[{ACC+16*t}:{ACC+16*t+15}]')
    T = 160
    SO = T0 + 9
    def store_tiles(P, nt, fn):
        for t in range(nt):
            fn(t)
            d = 24 + 8 * (t % 2)
            pack(P, d, ACC + 16 * t, 16)
            if t in (2, 4): A(f's_add_u32 s{SO}, s{SO}, 4096')
            if t == nt - 1: P.flush()
            for hh in range(2):
                A(f'buffer_store_dwordx4 v[{d+4*hh}:{d+4*hh+3}], v{V_L16}, {WS}, s{SO} offen offset:{((2*t+hh)%4)*1024} {SCS}')
    n2e = env('E1W2', 3)
    w2rest = lambda: [o for p in range(n21, n2e) for o in W2(p)]
    A(f's_cmp_lt_u32 s{S_M}, 12'); A('s_cbranch_scc1 L_p1_qkv')
    st = A.save()
    A('v_mul_f32 v56, v60, v60'); A(f'v_mov_b32 v57, {f2u(1.0+EPS)}'); A(f'v_fmac_f32 v57, {f2u(-EPS)}, v56'); A('v_rsq_f32 v57, v57'); A('v_mul_f32 v60, v60, v57')
    gelu_consts(A, 60)
    A(f's_sub_u32 s{SO}, s{S_M}, 12'); A(f's_mul_i32 s{SO}, s{SO}, 10240'); A(f's_add_u32 s{SO}, s{SO}, s{S_LX}'); A(f's_add_u32 s{SO}, s{SO}, {HS}')
    P = Pacer(A, w2rest(), PACE)
    store_tiles(P, 5, lambda t: gelu_pk(P, ACC + 16 * t, 16, 56, 58, 62, T))
    stamp(A, 9)
    A('s_branch L_p1_done')
    A.label('L_p1_qkv'); A.restore(st)
    A(f'v_mul_f32 v56, {f2u(LOG2E)}, v60'); A('v_rcp_f32 v58, v60'); A(f'v_mul_f32 v58, {f2u(1e-6)}, v58')
    A(f's_cmp_ge_u32 s{S_J1}, 4'); A('s_cbranch_scc1 L_p1_kv')
    st = A.save()
    A(f's_mul_i32 s{SO}, s{S_J1}, 10240'); A(f's_mul_i32 s{T0}, s{S_TP1}, 40960'); A(f's_add_u32 s{SO}, s{SO}, s{T0}'); A(f's_add_u32 s{SO}, s{SO}, {PQ}')
    A(f's_add_u32 s{T0+3}, s{S_LW}, {XRING}'); A(f'v_add_u32 v146, s{T0+3}, v{V_L16}')
    A(f's_mul_i32 s{T0+4}, s{S_KW}, 10240'); A(f's_sub_u32 s{T0+3}, s{T0+3}, s{T0+4}')
    A(f'v_add_u32 v144, s{T0+3}, v{VR2}'); A(f'v_add_u32 v145, s{T0+3}, v{VR2+1}')
    A(f's_add_u32 s{T0+4}, s{S_SD}, 1024'); A(f's_add_u32 s{T0+5}, s{S_SD}, {4*48*5120}'); A(f's_add_u32 s{T0+6}, s{T0+5}, 1024')
    lw = [lambda j=j: A(f'ds_write_b128 v146, a[{120+4*j}:{123+4*j}] offset:{(j//5)*SLOT + (j%5)*1024}') for j in range(10)]
    def qrd(hf, f):
        base, off = (145, 64 * (f // 2) + 16 * (f % 2)) if f < 4 else (144, 128)
        d = 80 + 20 * hf + 4 * f
        A(f'ds_read_b64_tr_b16 a[{d}:{d+1}], v{base} offset:{off + hf*SLOT}')
        A(f'ds_read_b64_tr_b16 a[{d+2}:{d+3}], v{base} offset:{off + 8*160 + hf*SLOT}')
    def qst(hf, f):
        d = 80 + 20 * hf + 4 * f
        so = (S_SD if f < 4 else T0 + 4) if hf == 0 else (T0 + 5 if f < 4 else T0 + 6)
        A(f'buffer_store_dwordx4 a[{d}:{d+3}], v{V_L16}, {WS}, s{so} offen offset:{(f if f<4 else 3)*1024} {SC}')
    lr = [lambda hf=hf, f=f: qrd(hf, f) for hf in range(2) for f in range(5)]
    ls = [lambda hf=hf, f=f: qst(hf, f) for hf in range(2) for f in range(5)]
    w2l = w2rest(); ops = []
    lds_ops = lw + lr
    for k in range(max(len(w2l), len(lds_ops))):
        if k < len(lds_ops): ops.append(lds_ops[k])
        if k < len(w2l): ops.append(w2l[k])
    P = Pacer(A, ops + ls, env('PACEQ', 7))
    store_tiles(P, 5, lambda t: phi_pk(P, ACC + 16 * t, 16, 56, 58, 60, T))
    stamp(A, 9)
    A('s_branch L_p1_done')
    A.label('L_p1_kv'); A.restore(st)
    A(f's_lshl_b32 s{T0+8}, s{S_WAVE}, 12'); A(f's_add_u32 s{T0+8}, s{T0+8}, {CSST}')
    P = Pacer(A, w2rest(), env('PACEK', 10))
    phi_pk(P, ACC, 20, 56, 58, 60, T); phi_pk(P, ACC + 20, 20, 56, 58, 60, T)
    for i in range(40, 80, 2): P(f'v_pk_mul_f32 v[{ACC+i}:{ACC+i+1}], v[{ACC+i}:{ACC+i+1}], v[60:61] op_sel_hi:[1,0]')
    pack(P, 16, ACC, 80)
    A(f's_lshl_b32 s{T0}, s{S_WAVE}, 5'); P('v_and_b32 v56, 31, v0'); P(f'v_add_u32 v56, s{T0}, v56'); P('v_mul_u32_u24 v56, 328, v56'); P(f'v_add_u32 v56, {XRING}, v56')
    P('v_lshrrev_b32 v57, 5, v0'); P('v_lshl_add_u32 v57, v57, 3, v56')
    P('v_mov_b32 v58, 0x3f803f80'); P('v_mov_b32 v59, 0x3f803f80')
    for u in range(20): P(f'ds_write_b64 v57, v[{16+2*u}:{17+2*u}] offset:{16*u}')
    A('ds_write_b64 v56, v[58:59] offset:320')
    P('v_bfe_u32 v60, v0, 2, 2'); P('v_lshrrev_b32 v61, 5, v0'); P('v_lshl_add_u32 v60, v61, 2, v60'); P('v_lshlrev_b32 v145, 7, v60'); P('v_mul_u32_u24 v60, 328, v60'); P(f'v_add_u32 v60, {XRING}, v60')
    P('v_bfe_u32 v61, v0, 4, 1'); P('v_and_b32 v62, 3, v0'); P('v_lshl_add_u32 v61, v61, 2, v62')
    P('v_lshlrev_b32 v62, 3, v61')
    P('v_add_u32 v145, v145, v62'); P(f'v_add_u32 v145, s{T0+8}, v145')
    P(f'v_add_u32 v63, s{T0}, v62'); P('v_add_u32 v63, v63, v60')
    A(f's_mul_i32 s{T0+1}, s{S_WAVE}, 40'); A(f's_add_u32 s{T0+1}, s{T0+1}, 160'); P(f'v_add_u32 v62, s{T0+1}, v62')
    P('v_cmp_gt_u32 vcc, 5, v61'); P('v_mov_b32 v61, 320'); P('v_cndmask_b32 v62, v61, v62, vcc'); P('v_add_u32 v62, v62, v60')
    A.waitcnt(lg=0); A.barrier()
    for ks in range(8):
        for t in range(2):
            A(f'ds_read_b64_tr_b16 v[{64+8*ks+2*t}:{65+8*ks+2*t}], v63 offset:{(16*ks+8*t)*328}')
            A(f'ds_read_b64_tr_b16 v[{68+8*ks+2*t}:{69+8*ks+2*t}], v62 offset:{(16*ks+8*t)*328}')
    for j in range(4): A(f'v_add_u32 v{16+j}, s{T0+8}, v{VK+j}')
    A('v_and_b32 v20, 31, v0'); A('v_cmp_gt_u32 vcc, 21, v20')
    for j in range(4): A(f'v_cndmask_b32 v{16+j}, v{VOOB}, v{16+j}, vcc')
    A(f'v_lshlrev_b32 v21, 2, v0'); A(f'v_add_u32 v20, s{T0+8}, v21')
    A('v_cmp_gt_u32 vcc, 36, v0'); A(f'v_cndmask_b32 v22, v{VOOB}, v21, vcc')
    for ks in range(8):
        A(f'v_mfma_f32_32x32x16_bf16 v[160:175], v[{64+8*ks}:{67+8*ks}], v[{68+8*ks}:{71+8*ks}], {"0" if ks==0 else "v[160:175]"}')
    P.flush()
    A(f's_sub_u32 s{T0}, s{S_J1}, 4'); A(f's_lshl_b32 s{T0}, s{T0}, 2'); A(f's_add_u32 s{T0}, s{T0}, s{S_WAVE}'); A(f's_lshl_b32 s{T0}, s{T0}, 11'); A(f's_add_u32 s{T0}, s{T0}, {KVS}')
    for j in range(4): A(f'ds_write_b128 v{16+j}, v[{160+4*j}:{163+4*j}]')
    for r in range(7): A(f'ds_read_b32 v{176+r}, v20 offset:{256*r}')
    for r in range(7): A(f'buffer_atomic_add_f32 v{176+r}, v{21 if r < 6 else 22}, {WS}, s{T0} offen offset:{256*r}')
    A('v_cmp_gt_u32 vcc, 32, v0')
    stamp(A, 9)
    A(f'v_add_u32 v144, s{T0+8}, v{V_L16}')
    for j in range(4): A(f'ds_write_b128 v144, a[{120+4*j}:{123+4*j}] offset:{j*1024}')
    for ks in range(2):
        for t in range(2):
            b = 24 + 8 * ks + 4 * t
            A(f'ds_read_b64_tr_b16 v[{b}:{b+1}], v145 offset:{2048*ks+64*t}'); A(f'ds_read_b64_tr_b16 v[{b+2}:{b+3}], v145 offset:{2048*ks+64*t+1024}')
    for i in range(4): A(f'v_mov_b32 v{20+i}, 0x3f803f80')
    for ks in range(2):
        for t in range(2):
            d = 96 + 16 * t; b = 24 + 8 * ks + 4 * t
            A(f'v_mfma_f32_32x32x16_bf16 v[{d}:{d+15}], v[20:23], v[{b}:{b+3}], {"0" if ks==0 else f"v[{d}:{d+15}]"}')
    A('v_lshlrev_b32 v56, 2, v0')
    A('v_cndmask_b32 v96, v112, v96, vcc')
    A(f'buffer_atomic_add_f32 v96, v56, {WS}, s{S_SD} offen')
    A.label('L_p1_done'); A.hist = []; A.nop(2)
    def w3_stream():
        l1, l2 = newl('p3s'), newl('p3e')
        A(f's_cmp_ge_u32 s{S_M}, 12'); A(f's_cbranch_scc1 {l1}')
        srd(A, SRD_W, S_W3, 640 * 3072)
        A('v_lshrrev_b32 v58, 4, v0'); A('v_bfe_u32 v59, v0, 2, 2'); A('v_xor_b32 v59, v59, v58'); A('v_mul_u32_u24 v58, 3072, v58')
        A('v_lshl_add_u32 v58, v59, 6, v58'); A('v_and_b32 v59, 3, v0'); A(f'v_lshl_add_u32 v{VW}, v59, 4, v58')
        for n in range(1, 4): A(f'v_add_u32 v{VW+n}, {n*4*3072}, v{VW}')
        A(f'v_mov_b32 v{VW+4}, v{VOOB}')
        A(f's_mov_b32 s{S_RSTEP}, {64*3072}'); A(f's_mul_i32 s{T0}, s{S_WAVE}, {16*3072}'); A(f's_lshl_b32 s{T0+1}, s{S_M}, 8')
        A(f's_branch {l2}')
        A.label(l1)
        srd(A, SRD_W, S_WO, 640 * 1280)
        A(f's_mov_b32 s{S_RSTEP}, {64*1280}'); A(f's_mul_i32 s{T0}, s{S_WAVE}, {16*1280}'); A(f's_sub_u32 s{T0+1}, s{S_M}, 12'); A(f's_mul_i32 s{T0+1}, s{T0+1}, 320')
        A.label(l2)
        A(f's_add_u32 s{T0}, s{T0}, s{T0+1}')
        set_stream(A, S_RW, S_REND, S_RTOT, T0, S_ROT3, f's{S_RSTEP}', 10)
    W3S = [7, 6, 5, 1, 2, 3, 4, 0, 7, 6]
    W3 = lambda p: raw_ops(A, W3S[p], ('W3', p))
    unpack(A, ACC, KX1, 10)
    A('v_mul_f32 v62, v222, v223'); A('v_mov_b32 v60, v223')
    for i in range(0, 20, 2): A(f'v_pk_fma_f32 v[{ACC+i}:{ACC+i+1}], v[{ACC+i}:{ACC+i+1}], v[60:61], v[62:63] op_sel_hi:[1,0,0] neg_lo:[0,0,1] neg_hi:[0,0,1]')
    A.vm = [(('W2', p), set()) for p in range(n2e)] + [('st', set())]
    A.lg.append(('x', set())); A.waitcnt(lg=0)
    for p in range(n2e, 5): run(W2(p))
    w3_stream()
    lh = newl('nh')
    A(f's_cmp_lt_u32 s{S_M}, 12'); A(f's_cbranch_scc1 {lh}')
    sv = A.save(); A.wait_tag('st'); A.barrier(); flag_store(A, PH1); A.restore(sv)
    A.label(lh)
    stamp(A, 10)
    n1 = env('S1BG', 0)
    for p in range(n1): run(W3(p))
    wait_local(A, PH1, 0xf000)
    stamp(A, 11)
    extra = {}
    n2l = env('P2W3', 3)
    for k, p in enumerate(range(n1, n2l)): extra[5 - (n2l - n1) + k] = W3(p)
    engine2(A, 5, [0, 1, 2, 3, 4], 'W2', extra, {('post', 1): lambda: flag_store(A, PH1, False)}, D2, True, st0=12)
    e2_reduce(A, 0, 104)
    pack(A, KX1, ACC, 20)
    A(f's_add_u32 s{T0}, s{S_TILE2}, {X1}'); A(f's_add_u32 s{T0+1}, s{T0}, 4096')
    A(f'buffer_store_dwordx4 v[{KX1}:{KX1+3}], v{VA}, {WS}, s{T0} offen {SC}')
    A(f'buffer_store_dwordx4 v[{KX1+4}:{KX1+7}], v{VA}, {WS}, s{T0} offen offset:2048 {SC}')
    A(f'buffer_store_dwordx2 v[{KX1+8}:{KX1+9}], v{VA+2}, {WS}, s{T0+1} offen {SC}')
    stamp(A, 14)
    A('v_mov_b32 v26, 0x3f803f80'); A('v_mov_b32 v28, 0'); A('v_mov_b32 v29, 0')
    for i in range(10):
        A(f'v_dot2c_f32_bf16 v28, v{KX1+i}, v26'); A(f'v_dot2c_f32_bf16 v29, v{KX1+i}, v{KX1+i}')
    for sw in ('v_permlane16_swap_b32', 'v_permlane32_swap_b32'):
        A('v_mov_b32 v30, v28'); A('v_mov_b32 v31, v29'); A(f'{sw} v28, v30'); A(f'{sw} v29, v31')
        A('v_add_f32 v28, v28, v30'); A('v_add_f32 v29, v29, v31')
    A(f's_lshl_b32 s{T0}, s{S_TT2}, 1'); A(f's_add_u32 s{T0}, s{T0}, s{S_KW}'); A(f's_lshl_b32 s{T0}, s{T0}, 7')
    A(f's_lshl_b32 s{T0+1}, s{S_C2}, 14'); A(f's_add_u32 s{T0}, s{T0}, s{T0+1}'); A(f's_add_u32 s{T0}, s{T0}, {ST1}')
    A(f'buffer_store_dwordx2 v[28:29], v{VO+5}, {WS}, s{T0} offen {SC}', tag='x1')
    nxt3 = n2l
    for _ in range(env('S2A', 0)): run(W3(nxt3)); nxt3 += 1
    A(f's_cmp_ge_u32 s{S_M}, 12'); A(f's_cselect_b32 s{T0}, {OO-X1}, 0')
    A(f's_add_u32 s{T0}, s{T0}, s{S_LX}'); A(f's_add_u32 s{T0}, s{T0}, {X1}')
    set_stream(A, S_AO, S_AEND, S_ATOT, T0, S_ROT3, 4096, 10)
    W4S = [5, 1, 2, 3, 4, 0, 7, 6, 5, 1, 2, 3]
    W4 = lambda p: frag_ops(A, W4S[p], ('W4', p))
    np4 = env('P3W4', 1)
    GC = env('P3GC', 9)
    np4s = env('P3W4S', 4)
    def p3_extra(n3, np4=np4):
        ex = {}
        c = 0
        for p in range(n3, 10):
            c = max(c, {8: 2, 9: 3}.get(p, 0))
            assert c <= p - 2
            ex[c] = W3(p); c += 1
        for k in range(np4): ex[10 - np4 + k] = ex.get(10 - np4 + k, []) + W4(k)
        return ex
    global_check_issue(A, PH1, 144)
    A(f's_lshl_b32 s{T0+5}, s{S_C2}, 2'); A(f's_add_u32 s{T0+5}, s{T0+5}, s{S_WAVE}'); A(f's_lshl_b32 s{T0+5}, s{T0+5}, 11'); A(f's_add_u32 s{T0+5}, s{T0+5}, {KVS}')
    A(f's_mul_i32 s{T0+4}, s{S_MW}, 40960'); A(f's_sub_u32 s{T0+4}, s{S_TILE2}, s{T0+4}')
    A(f's_lshl_b32 s{T0+6}, s{S_WAVE}, 10'); A(f's_add_u32 s{T0+6}, s{T0+6}, s{T0+4}'); A(f's_add_u32 s{T0+6}, s{T0+6}, {PQ}'); A(f's_add_u32 s{T0+7}, s{T0+6}, 40960')
    A.wait_tag('x1'); A.waitcnt(lg=0); A.barrier()
    flag_store(A, PH2X)
    stamp(A, 15)
    global_check(A, PH1, 144)
    stamp(A, 5)
    for j in range(4): A(f'buffer_load_dwordx4 v[{128+4*j}:{131+4*j}], v{VK+j}, {WS}, s{T0+5} offen {SC}')
    for tt in range(2):
        for a_ in range(2):
            b_ = 160 + 8 * tt + 4 * a_
            A(f'buffer_load_dwordx4 v[{b_}:{b_+3}], v{V_L16}, {WS}, s{T0+6+tt} offen offset:{a_*1024} {SC}')
    for _ in range(env('S2B', 1)): run(W3(nxt3)); nxt3 += 1
    l1, l2 = newl('rs'), newl('rs')
    A(f's_cmp_ge_u32 s{S_M}, 12'); A(f's_cbranch_scc1 {l1}')
    e1_rd_setup(A, 256, True)
    A(f's_branch {l2}'); A.label(l1)
    e1_rd_setup(A, 320, False)
    A.label(l2)
    A(f's_mul_i32 s{T0+1}, s{S_KW}, 3072'); A(f's_add_u32 s{T0}, s{S_TILE2}, s{T0+1}'); A(f's_add_u32 s{T0}, s{T0}, {OO}')
    A(f's_cmp_eq_u32 s{S_KW}, 0'); A(f's_cselect_b32 s{T0+1}, s{T0}, {OOB}')
    pack(A, 32, 128, 16)
    for tt in range(2):
        d = 64 + 16 * tt
        A(f'v_mfma_f32_32x32x16_bf16 v[{d}:{d+15}], v[32:35], v[{160+8*tt}:{163+8*tt}], 0')
        A(f'v_mfma_f32_32x32x16_bf16 v[{d}:{d+15}], v[36:39], v[{164+8*tt}:{167+8*tt}], v[{d}:{d+15}]')
    for tt in range(2):
        d = 64 + 16 * tt
        A(f'v_add_f32 v{d+12}, {f2u(1e-6)}, v{d+12}'); A(f'v_rcp_f32 v{d+12}, v{d+12}')
        for i in range(0, 12, 2): A(f'v_pk_mul_f32 v[{d+i}:{d+i+1}], v[{d+i}:{d+i+1}], v[{d+12}:{d+13}] op_sel_hi:[1,0]')
        pack(A, 16 + 6 * tt, d, 12)
        for j in range(3): A(f'ds_write_b64 v{VO+j}, v[{16+6*tt+2*j}:{17+6*tt+2*j}] offset:{5120*tt}')
    A(f's_mov_b32 s{T0+8}, s{T0}'); A(f's_mov_b32 s{T0+9}, s{T0+1}')
    wait_local(A, PH2X, 0xffff)
    stamp(A, 16)
    for n in range(3): A(f'ds_read_b128 v[{128+4*n}:{131+4*n}], v{VO+4} offset:{1024*n}')
    def o_store():
        for n in range(3): A(f'buffer_store_dwordx4 v[{128+4*n}:{131+4*n}], v{V_L16}, {WS}, s{T0+8 if n<2 else T0+9} offen offset:{1024*n} {SC}', tag='o')
    o_store()
    A(f's_cmp_ge_u32 s{S_M}, 12'); A('s_cbranch_scc1 L_p3_s')
    st = A.save()
    nw = nxt3
    stamp(A, 17)
    def p3_loads():
        A('v_and_b32 v56, 31, v0'); A('v_lshlrev_b32 v58, 2, v56'); A('v_lshlrev_b32 v56, 3, v56'); A('v_lshrrev_b32 v57, 5, v0'); A('v_lshl_add_u32 v56, v57, 16, v56')
        A(f's_lshl_b32 s{T0}, s{S_TT1}, 8'); A(f's_add_u32 s{T0}, s{T0}, {ST1}')
        for p in range(4):
            A(f'buffer_load_dwordx2 v[{160+2*p}:{161+2*p}], v56, {WS}, s{T0} offen {SC}')
            if p < 3: A(f's_add_u32 s{T0}, s{T0}, 16384')
        A(f's_lshl_b32 s{T0}, s{S_M}, 9'); A(f's_add_u32 s{T0}, s{T0}, {CS3}')
        for t in range(4): A(f'buffer_load_dword v{168+t}, v58, {WS}, s{T0} offen offset:{128*t} {SC}')
    def p3_prep():
        A('v_add_f32 v160, v160, v162'); A('v_add_f32 v161, v161, v163'); A('v_add_f32 v164, v164, v166'); A('v_add_f32 v165, v165, v167')
        A('v_add_f32 v160, v160, v164'); A('v_add_f32 v161, v161, v165')
        A('v_mov_b32 v162, v160'); A('v_mov_b32 v163, v161')
        A('v_permlane32_swap_b32 v160, v162'); A('v_permlane32_swap_b32 v161, v163')
        A('v_add_f32 v160, v160, v162'); A('v_add_f32 v161, v161, v163')
        A(f'v_mul_f32 v160, {f2u(1.0/640)}, v160'); A(f'v_mul_f32 v161, {f2u(1.0/640)}, v161')
        neg_mean_frag(A, 172, 160, 56)
        for i in range(1, 4): A(f'v_mov_b32 v{172+i}, 0')
        for t in range(4):
            split_hilo(A, 176 + 4 * t, 168 + t, 56)
            for i in range(1, 4): A(f'v_mov_b32 v{176+4*t+i}, 0')
        A('v_fma_f32 v161, -v160, v160, v161'); A('v_max_f32 v161, 0, v161'); A(f'v_add_f32 v161, {f2u(EPS)}, v161')
        A('v_rsq_f32 v60, v161')
        gelu_consts(A, 60)
    class Rec:
        def __init__(s2): s2.ops = []
        def __call__(s2, text, tag=None): s2.ops.append(text)
    real = A; R = Rec(); A = R; p3_prep(); A = real
    prep_ops = [lambda t3=R.ops[i:i+3]: [A(x) for x in t3] for i in range(0, len(R.ops), 3)]
    ex = p3_extra(nw)
    ex[9] = prep_ops + ex.get(9, [])
    engine1(A, 4, W3S, 'W3', ex, {('step', 1): lambda: (A.barrier(), flag_store(A, PH2O)), ('bar', 6): p3_loads}, D1, swz=True, st0=18)
    for t in range(4):
        A(f'v_mfma_f32_32x32x16_bf16 v[{ACC+16*t}:{ACC+16*t+15}], v[{176+4*t}:{179+4*t}], v[172:175], v[{ACC+16*t}:{ACC+16*t+15}]')
    A.barrier()
    A(f's_mul_i32 s{SO}, s{S_TT1}, {96*1024}'); A(f's_lshl_b32 s{T0+1}, s{S_M}, 13'); A(f's_add_u32 s{SO}, s{SO}, s{T0+1}'); A(f's_add_u32 s{SO}, s{SO}, {H2}')
    n4e = env('E3W4', 6)
    w4e = lambda: [o for p in range(np4, n4e) for o in W4(p)]
    P = Pacer(A, w4e(), env('PACE3', 16))
    store_tiles(P, 4, lambda t: gelu_pk(P, ACC + 16 * t, 16, 56, 58, 62, 40))
    A('s_branch L_p3_done')
    A.label('L_p3_s'); A.restore(st)
    ns = nxt3
    for _ in range(min(env('S2S', 1), 5 - ns)): run(W3(ns)); ns += 1
    A.wait_tag('o'); A.barrier()
    flag_store(A, PH2O)
    for _ in range(env('S2T', 1)): run(W3(ns)); ns += 1
    wait_local(A, PH2O, 0xffff)
    stamp(A, 17)
    engine1(A, 5, W3S, 'W3', p3_extra(ns, np4s), {}, D1, st0=18)
    A.barrier()
    A(f's_sub_u32 s{SO}, s{S_M}, 12'); A(f's_mul_i32 s{SO}, s{SO}, 10240'); A(f's_add_u32 s{SO}, s{SO}, s{S_LX}'); A(f's_add_u32 s{SO}, s{SO}, {SS}')
    P = Pacer(A, [o for p in range(np4s, n4e) for o in W4(p)], 2)
    store_tiles(P, 5, lambda t: None)
    A.label('L_p3_done'); A.hist = []; A.nop(2)
    stamp(A, 20)
    e2_setup(A, False)
    A(f'v_add_u32 v{VO+6}, {4*SLOT}, v{VO+6}'); A(f'v_add_u32 v{VO+7}, {4*SLOT}, v{VO+7}')
    unpack(A, ACC, KX1, 10)
    srd(A, SRD_OUT, S_OUT, 2048 * 1280)
    A(f's_mul_i32 s{T0}, s{S_TT2}, {96*1024}'); A(f's_mul_i32 s{T0+1}, s{S_KW}, {48*1024}'); A(f's_add_u32 s{T0}, s{T0}, s{T0+1}'); A(f's_add_u32 s{T0}, s{T0}, {H2}')
    set_stream(A, S_AO, S_AEND, S_ATOT, T0, S_ROT4, 4096, 12)
    n3 = env('S3BG', 1)
    A.vm = [(('W4', p), set()) for p in range(n4e)] + [('st', set())]
    for p in range(n4e, n4e + n3): run(W4(p))
    A.wait_tag('st'); A.barrier(); flag_store(A, PH3)
    stamp(A, 21)
    A(f's_lshl_b32 s{T0+1}, s{S_WAVE}, 13'); A(f's_add_u32 s{T0+1}, s{T0+1}, {6*SLOT}')
    for n in range(3):
        A(f'v_add_u32 v60, {64*n}, v0'); div_magic(A, 61, 62, 60, 10, 63)
        A('v_mul_u32_u24 v61, 336, v61'); A(f'v_lshl_add_u32 v61, v62, 5, v61'); A(f'v_add_u32 v{176+n}, s{T0+1}, v61')
    A('v_and_b32 v58, 15, v0'); A('v_mul_u32_u24 v58, 336, v58'); A('v_lshrrev_b32 v59, 4, v0'); A('v_lshl_add_u32 v58, v59, 4, v58')
    A(f'v_add_u32 v179, s{T0+1}, v58'); A('v_lshrrev_b32 v59, 5, v0'); A('v_lshl_add_u32 v180, v59, 5, v179')
    unpack(A, 152, KX, 12)
    wait_local(A, PH3, 0x0fff)
    stamp(A, 22)
    extra = {}
    c = 0
    for p in range(n4e + n3, 12):
        c = max(c, p - 6); extra[c] = W4(p); c += 1
    def s_load():
        wait_local(A, PH3, 0xf000)
        A(f's_add_u32 s{T0}, s{S_TILE2}, {SS}'); A(f's_add_u32 s{T0+1}, s{T0}, 4096')
        A(f'buffer_load_dwordx4 v[128:131], v{VA}, {WS}, s{T0} offen {SC}')
        A(f'buffer_load_dwordx4 v[132:135], v{VA}, {WS}, s{T0} offen offset:2048 {SC}')
        A(f'buffer_load_dwordx2 v[136:137], v{VA+2}, {WS}, s{T0+1} offen {SC}')
    engine2(A, 12, W4S, 'W4', extra, {('post', 11): s_load}, D2, False, st0=23)
    e2_reduce(A, 4, 16)
    A(f'v_mov_b32 v56, {f2u(-LOG2E)}')
    TT = 16
    for i in range(0, 20, 2): A(f'v_pk_mul_f32 v[{TT+i}:{TT+i+1}], v[{ACC+i}:{ACC+i+1}], v[56:57] op_sel_hi:[1,0]')
    for i in range(20): A(f'v_exp_f32 v{TT+i}, v{TT+i}')
    for i in range(0, 20, 2): A(f'v_pk_add_f32 v[{TT+i}:{TT+i+1}], v[{TT+i}:{TT+i+1}], 1.0 op_sel_hi:[1,0]')
    for i in range(20): A(f'v_rcp_f32 v{TT+i}, v{TT+i}')
    unpack(A, 84, 128, 10)
    for i in range(0, 20, 2): A(f'v_pk_mul_f32 v[{ACC+i}:{ACC+i+1}], v[{ACC+i}:{ACC+i+1}], v[{TT+i}:{TT+i+1}]')
    for i in range(0, 20, 2): A(f'v_pk_mul_f32 v[{ACC+i}:{ACC+i+1}], v[{ACC+i}:{ACC+i+1}], v[{84+i}:{85+i}]')
    for f in range(5):
        base, off = (180, 128 * (f // 2) + 32 * (f % 2)) if f < 4 else (179, 256)
        A(f'ds_write_b128 v{base}, v[{ACC+4*f}:{ACC+4*f+3}] offset:{off}')
    A.waitcnt(lg=0)
    for n in range(3):
        A(f'ds_read_b128 v[{64+8*n}:{67+8*n}], v{176+n}'); A(f'ds_read_b128 v[{68+8*n}:{71+8*n}], v{176+n} offset:16')
    for n in range(3):
        for i in range(4): A(f'v_pk_add_f32 v[{64+8*n+2*i}:{65+8*n+2*i}], v[{64+8*n+2*i}:{65+8*n+2*i}], v[{152+8*n+2*i}:{153+8*n+2*i}]')
        pack(A, 40 + 4 * n, 64 + 8 * n, 8)
        A(f'buffer_store_dwordx4 v[{40+4*n}:{43+4*n}], v{VW2+n if n<2 else VW2+6}, s[{SRD_OUT}:{SRD_OUT+3}], s{S_ROWS2} offen {os.environ.get("OUTMOD", "")}')
    stamp(A, 25)
    stamp_out(A)
    A.label('L_end'); A('s_endpgm')

def main(out):
    hdr = open('cdna_kernels/' + NAME + '.s.ref').read().split('; Override launch')[0]
    A = Asm(); kernel(A)
    print(A.stats, 'nops', A.nops, file=sys.stderr)
    kd = f""".section .rodata,"a"
.p2align 6
.amdhsa_kernel {KN}
  .amdhsa_next_free_vgpr 408
  .amdhsa_next_free_sgpr 102
  .amdhsa_accum_offset 248
  .amdhsa_group_segment_fixed_size 0
  .amdhsa_kernarg_size 88
  .amdhsa_user_sgpr_count 2
  .amdhsa_user_sgpr_kernarg_segment_ptr 1
  .amdhsa_system_sgpr_workgroup_id_x 1
.end_amdhsa_kernel
"""
    txt = hdr + '; @launch grid=(256,1,1) block=(256,1,1) lds=163840\n.amdgcn_target "amdgcn-amd-amdhsa--gfx950"\n.text\n' + A.text() + kd
    open(out, 'w').write(txt)

if __name__ == '__main__':
    main(sys.argv[1] if len(sys.argv) > 1 else 'cdna_kernels/' + NAME + '.s')
```

```python
import struct, sys, math, os
from asmlib import *

NAME = 'recurrent_scan__linear_attn_block__mixer_s_mlp__prompt'
KN = NAME + '_kernel'
def f2u(x): return '0x%08x' % struct.unpack('<I', struct.pack('<f', x))[0]
def env(n, d): return int(os.environ.get(n, d))
LOG2E = 1.4426950408889634
GC1 = -2.0 * LOG2E * math.sqrt(2.0 / math.pi)
GC2 = GC1 * 0.044715
EPS = 1e-5
PQ, HS, X1, OO, SS, H2, W4F = 0x0, 0x280000, 0x500000, 0x780000, 0xA00000, 0xC80000, 0x1280000
OO, SS = PQ, HS
KVS, CS3 = 0x1480000, 0x14A0000
ST0, ST1 = 0x14C0000, 0x14D0000
FAST, SLOW, GEN = 0x1500000, 0x1510000, 0x1520000
F1 = SLOW + 0x2000
STAMP_BASE = 0x1900000
WS_SIZE = 0x2000000
OOB = 0x40000000
PH0, PHR, PH1, PH2X, PH2O, PH3 = range(6)
STAMP = env('STAMP', 0)
SC = 'sc1'
DEFER = bool(env('DEFER', 1))
S_X, S_WQKV, S_WO, S_W1, S_W2, S_W3, S_W4, S_OUT, S_WS = 16, 18, 20, 24, 26, 28, 30, 32, 36
SRD_WS, SRD_W, SRD_X, SRD_OUT = 40, 44, 48, 52
S_WAVE, S_RG, S_M, S_W8, S_FASTOK, S_Q = 60, 61, 62, 63, 64, 65
S_LW = 66
S_RW, S_RSTEP, S_REND, S_RTOT = 67, 68, 69, 70
S_FLF, S_FLS = 71, 72
S_AO, S_AEND, S_ATOT = 74, 75, 76
S_KW, S_MW, S_TT1, S_TT2, S_C2 = 77, 78, 79, 80, 81
T0 = 82
S_ROT1, S_ROT2, S_ROT4 = 12, 13, 14
S_TILE2, S_ROWS2, S_G1, S_TOK = 38, 15, 39, 3
S_J1, S_TP1, S_ROT3, S_LX, S_LPC = 73, 58, 57, 59, 56
WS = f's[{SRD_WS}:{SRD_WS+3}]'
XS = f's[{SRD_X}:{SRD_X+3}]'
WSRD = f's[{SRD_W}:{SRD_W+3}]'
SLOT = 20480
XR = 4 * SLOT
CTRL = 163840 - 15360
C_LP, C_CP, C_CB, C_LB, C_PUB = 0, 16, 32, 48, 64
EXT, STA, STB, XT = CTRL + 128, CTRL + 2688, CTRL + 4224, CTRL + 4736
V_L16, VOOB, V_EP, V_MY, V_CT = 4, 5, 6, 7, 8
VA, VROW, WF, ACC, PR, VRD, KX, KX1, KST, RING, VXT = 10, 13, 16, 64, 144, 148, 160, 172, 182, 184, 248

def stamp(A, i):
    if not STAMP: return
    A.lines.append('    s_memrealtime s[8:9]' if env('RT', 0) else '    s_memtime s[8:9]')
    A.lines.append('    s_waitcnt lgkmcnt(0)'); A.lg = []
    A.lines.append(f'    v_writelane_b32 v3, s8, {i}')
def stamp_out(A):
    if not STAMP: return
    L = A.lines.append
    L('    s_waitcnt vmcnt(0)')
    stamp(A, 29)
    L('    s_memrealtime s[8:9]'); L('    s_waitcnt lgkmcnt(0)')
    L('    v_writelane_b32 v3, s8, 31'); L('    v_writelane_b32 v3, s10, 30'); L(f'    v_writelane_b32 v3, s{S_J1}, 28')
    L(f'    s_lshl_b32 s8, s{S_Q}, 3'); L(f'    s_add_u32 s8, s8, s{S_W8}'); L('    s_lshl_b32 s8, s8, 7')
    L(f'    s_add_u32 s8, s8, {STAMP_BASE}')
    L('    v_lshlrev_b32 v1, 2, v0'); L('    v_cmp_gt_u32 vcc, 32, v0'); L('    s_and_saveexec_b64 s[6:7], vcc')
    L(f'    buffer_store_dword v3, v1, {WS}, s8 offen')

def srd(A, d, base, size):
    A(f's_mov_b32 s{d}, s{base}'); A(f's_mov_b32 s{d+1}, s{base+1}')
    A(f's_mov_b32 s{d+2}, {size}'); A(f's_mov_b32 s{d+3}, 0x20000')
def allreduce32(A, v, t):
    A(f'v_add_f32_dpp v{v}, v{v}, v{v} quad_perm:[1,0,3,2] row_mask:0xf bank_mask:0xf')
    A(f'v_add_f32_dpp v{v}, v{v}, v{v} quad_perm:[2,3,0,1] row_mask:0xf bank_mask:0xf')
    A(f'v_add_f32_dpp v{v}, v{v}, v{v} row_half_mirror row_mask:0xf bank_mask:0xf')
    A(f'v_add_f32_dpp v{v}, v{v}, v{v} row_mirror row_mask:0xf bank_mask:0xf')
    A(f'v_mov_b32 v{t}, v{v}'); A(f'v_permlane16_swap_b32 v{v}, v{t}'); A(f'v_add_f32 v{v}, v{v}, v{t}')
def gelu_pk(A, y, n, c1, c2, ir, t):
    for i in range(0, n, 2): A(f'v_pk_mul_f32 v[{t+i}:{t+i+1}], v[{y+i}:{y+i+1}], v[{y+i}:{y+i+1}]')
    for i in range(0, n, 2): A(f'v_pk_fma_f32 v[{t+i}:{t+i+1}], v[{t+i}:{t+i+1}], v[{c2}:{c2+1}], v[{c1}:{c1+1}] op_sel_hi:[1,0,0]')
    for i in range(0, n, 2): A(f'v_pk_mul_f32 v[{t+i}:{t+i+1}], v[{t+i}:{t+i+1}], v[{y+i}:{y+i+1}]')
    for i in range(n): A(f'v_exp_f32 v{t+i}, v{t+i}')
    for i in range(0, n, 2): A(f'v_pk_fma_f32 v[{t+i}:{t+i+1}], v[{t+i}:{t+i+1}], v[{ir}:{ir+1}], v[{ir}:{ir+1}] op_sel_hi:[1,0,0]')
    for i in range(n): A(f'v_rcp_f32 v{t+i}, v{t+i}')
    for i in range(0, n, 2): A(f'v_pk_mul_f32 v[{y+i}:{y+i+1}], v[{y+i}:{y+i+1}], v[{t+i}:{t+i+1}]')
def gelu_consts(A, r):
    A(f'v_mul_f32 v58, v{r}, v{r}'); A(f'v_mul_f32 v58, v58, v{r}'); A(f'v_mul_f32 v58, {f2u(GC2)}, v58')
    A(f'v_rcp_f32 v62, v{r}'); A(f'v_mul_f32 v56, {f2u(GC1)}, v{r}')
def phi_pk(A, y, n, rl, dl, r, t):
    for i in range(0, n, 2): A(f'v_pk_mul_f32 v[{t+i}:{t+i+1}], v[{y+i}:{y+i+1}], v[{rl}:{rl+1}] op_sel_hi:[1,0]')
    for i in range(n): A(f'v_exp_f32_e64 v{t+i}, v{t+i} clamp')
    for i in range(n): A(f'v_max_f32 v{y+i}, v{dl}, v{y+i}')
    for i in range(0, n, 2): A(f'v_pk_fma_f32 v[{y+i}:{y+i+1}], v[{y+i}:{y+i+1}], v[{r}:{r+1}], v[{t+i}:{t+i+1}] op_sel_hi:[1,0,1]')
def pack(A, dst, y, n):
    for i in range(0, n, 2): A(f'v_cvt_pk_bf16_f32 v{dst+i//2}, v{y+i}, v{y+i+1}')
def unpack(A, dst, src, n):
    A(f's_mov_b32 s{T0}, 0xffff0000')
    for i in range(n):
        A(f'v_lshlrev_b32 v{dst+2*i}, 16, v{src+i}'); A(f'v_and_b32 v{dst+2*i+1}, s{T0}, v{src+i}')
def div_magic(A, q, r, idx, d, t):
    magic = (65536 + d - 1) // d
    A(f'v_mul_u32_u24 v{q}, {magic}, v{idx}'); A(f'v_lshrrev_b32 v{q}, 16, v{q}')
    A(f'v_mul_u32_u24 v{t}, {d}, v{q}'); A(f'v_sub_u32 v{r}, v{idx}, v{t}')
def split_hilo(A, dst, c, t):
    A(f'v_cvt_pk_bf16_f32 v{t}, v{c}, v{c}'); A(f'v_lshlrev_b32 v{t}, 16, v{t}'); A(f'v_sub_f32 v{t}, v{c}, v{t}')
    A(f'v_cvt_pk_bf16_f32 v{dst}, v{c}, v{t}')
def neg_mean_frag(A, dst, m, t):
    A(f'v_cvt_pk_bf16_f32 v{dst}, -v{m}, -v{m}'); A(f'v_lshlrev_b32 v{t}, 16, v{dst}'); A(f'v_add_f32 v{t}, v{m}, v{t}')
    A(f'v_cvt_pk_bf16_f32 v{t}, -v{t}, -v{t}')
    A('v_cmp_gt_u32 vcc, 32, v0'); A(f'v_cndmask_b32 v{dst}, v{t}, v{dst}, vcc')
def advance(A, off, step, end, tot):
    A(f's_add_u32 s{off}, s{off}, {step}'); A(f's_cmp_ge_u32 s{off}, s{end}')
    A(f's_cselect_b32 s{off}, s{tot}, s{off}')
def set_stream(A, off, end, tot, base_reg, rot_reg, step, n):
    A(f's_mov_b32 s{tot}, s{base_reg}')
    if isinstance(step, int): A(f's_add_u32 s{end}, s{base_reg}, {n*step}')
    else: A(f's_mul_i32 s{end}, {step}, {n}'); A(f's_add_u32 s{end}, s{end}, s{base_reg}')
    A(f's_mul_i32 s{off}, s{rot_reg}, {step}'); A(f's_add_u32 s{off}, s{off}, s{base_reg}')
def run(ops):
    for o in ops: o()
lbl = [0]
def newl(p):
    lbl[0] += 1; return f'L_{p}_{lbl[0]}'

class G: PR = 144
def pw_write(A, off, val):
    A(f'v_mov_b32 v9, {val}'); A(f'ds_write_b32 v{V_MY}, v9 offset:{off}')
def pw_read(A, off):
    A(f'ds_read_b128 v[{G.PR}:{G.PR+3}], v{V_CT} offset:{off}')
OOL = []
def pw_cmp(A, val):
    A(f'v_min3_u32 v{G.PR}, v{G.PR}, v{G.PR+1}, v{G.PR+2}'); A(f'v_min_u32 v{G.PR}, v{G.PR}, v{G.PR+3}')
    A(f'v_cmp_gt_u32 vcc, {val}, v{G.PR}')
def pw_check(A, off, val, before_spin=None, sleep=1, pre=False):
    back, lp = newl('pd'), newl('pl')
    if not pre: pw_cmp(A, val)
    A.lines.append(f'    s_cbranch_vccnz {lp}'); A.pos += 1
    A.label(back)
    L = OOL.append
    L(f'{lp}:')
    if before_spin:
        for x in before_spin: L('    ' + x)
    L(f'    s_mov_b32 s{T0+12}, 0')
    L(f'{lp}_l:')
    if sleep: L(f'    s_sleep {sleep}')
    L(f'    ds_read_b128 v[{G.PR}:{G.PR+3}], v{V_CT} offset:{off}'); L(f'    s_add_u32 s{T0+12}, s{T0+12}, 1'); L('    s_waitcnt lgkmcnt(0)')
    L(f'    v_min3_u32 v{G.PR}, v{G.PR}, v{G.PR+1}, v{G.PR+2}'); L(f'    v_min_u32 v{G.PR}, v{G.PR}, v{G.PR+3}')
    L(f'    v_cmp_gt_u32 vcc, {val}, v{G.PR}'); L(f'    s_cbranch_vccz {back}')
    L(f'    s_cmp_lt_u32 s{T0+12}, 0x8000'); L(f'    s_cbranch_scc1 {lp}_l')
    L(f'    s_branch {back}')
def lp_cached(A, val):
    back, lp = newl('cd'), newl('cl')
    A(f's_cmp_lt_u32 s{S_LPC}, {val}')
    A.lines.append(f'    s_cbranch_scc1 {lp}'); A.pos += 1
    A.label(back)
    L = OOL.append
    L(f'{lp}:'); L(f'    s_mov_b32 s{T0+12}, 0'); L(f'{lp}_l:')
    L(f'    ds_read_b128 v[{G.PR}:{G.PR+3}], v{V_CT} offset:{C_LP}'); L(f'    s_add_u32 s{T0+12}, s{T0+12}, 1'); L('    s_waitcnt lgkmcnt(0)')
    L(f'    v_min3_u32 v{G.PR}, v{G.PR}, v{G.PR+1}, v{G.PR+2}'); L(f'    v_min_u32 v{G.PR}, v{G.PR}, v{G.PR+3}'); L('    s_nop 0')
    L(f'    v_readfirstlane_b32 s{S_LPC}, v{G.PR}'); L('    s_nop 1')
    L(f'    s_cmp_ge_u32 s{S_LPC}, {val}'); L(f'    s_cbranch_scc1 {back}')
    L(f'    s_cmp_lt_u32 s{T0+12}, 0x8000'); L(f'    s_cbranch_scc1 {lp}_l')
    L(f'    s_branch {back}')
gen = {C_CB: 0, C_LB: 0}
def gbar(A, off, sleep=0):
    gen[off] += 1
    A.waitcnt(lg=0)
    pw_write(A, off, gen[off]); pw_read(A, off); pw_check(A, off, gen[off], sleep=sleep)
pubn = {0: 0, 4: 0}
S_PEND = 98
def publish(A, ph, who, fast=True, tag=None, defer=False, f1=False):
    if tag is None:
        A.vm.append(('x', set())); A.waitcnt(vm=0)
    elif tag != 'none': A.wait_tag(tag)
    l = newl('pub')
    A('s_mov_b64 exec, 1')
    A('v_mov_b32 v9, 1'); A.lines.append(f'    ds_add_rtn_u32 v9, v{V_CT}, v9 offset:{C_PUB + who}')
    A(f's_add_u32 s{T0+10}, s{S_FLF}, {ph*64}'); A(f's_add_u32 s{T0+11}, s{S_FLS}, {ph*1024}')
    if f1:
        A(f's_lshl_b32 s{T0}, s{S_J1}, 7'); A(f's_and_b32 s{T0+1}, s{S_TP1}, 60'); A(f's_add_u32 s{T0}, s{T0}, s{T0+1}'); A(f's_add_u32 s{T0}, s{T0}, {F1}')
        A(f's_cmp_lt_u32 s{S_M}, 12'); A(f's_cselect_b32 s{T0+11}, s{T0}, s{T0+11}')
    if defer: A(f's_mov_b32 s{S_PEND}, {OOB}')
    A.lines.append('    s_waitcnt lgkmcnt(0)'); A.lg = []
    A(f'v_cmp_eq_u32 vcc, {4*pubn[who]+3}, v9')
    A.lines.append(f'    s_cbranch_vccz {l}')
    if fast: A.lines.append(f'    buffer_store_dword v{V_EP}, v{V_L16}, {WS}, s{T0+10} offen')
    if defer: A.lines.append(f'    s_mov_b32 s{S_PEND}, s{T0+11}')
    else: A.lines.append(f'    buffer_store_dword v{V_EP}, v{V_L16}, {WS}, s{T0+11} offen sc1')
    A.label(l)
    A('s_mov_b64 exec, -1')
def wait_local(A, ph, mask, pend=False):
    done, slow, lf, ls = newl('wd'), newl('wsl'), newl('wf'), newl('ws')
    A('v_lshlrev_b32 v1, 2, v0')
    A(f's_lshl_b32 s{T0}, s{S_RG}, 9'); A(f's_add_u32 s{T0}, s{T0}, {FAST + ph*64}')
    A(f's_mov_b64 exec, {mask}')
    A(f's_mov_b32 s{T0+3}, 0')
    A(f's_cmp_eq_u32 s{S_FASTOK}, 0'); A(f's_cbranch_scc1 {slow}')
    L = A.lines.append
    A.label(lf)
    L(f'    buffer_load_dword v2, v1, {WS}, s{T0} offen sc1'); L(f'    s_add_u32 s{T0+3}, s{T0+3}, 1'); L('    s_waitcnt vmcnt(0)')
    L(f'    v_cmp_ne_u32 vcc, v2, v{V_EP}'); L(f'    s_cbranch_vccz {done}')
    L(f'    s_cmp_lt_u32 s{T0+3}, 96'); L(f'    s_cbranch_scc1 {lf}')
    L(f'    s_mov_b32 s{S_FASTOK}, 0')
    A.label(slow)
    if pend:
        L('    s_mov_b64 exec, 1')
        L(f'    buffer_store_dword v{V_EP}, v{V_L16}, {WS}, s{S_PEND} offen sc1')
        L(f'    s_mov_b32 s{S_PEND}, {OOB}'); L(f'    s_mov_b64 exec, {mask}')
    L(f'    s_lshl_b32 s{T0}, s{S_RG}, 6'); L(f'    s_add_u32 s{T0}, s{T0}, {SLOW + ph*1024}')
    A.label(ls)
    L('    s_sleep 8')
    L(f'    buffer_load_dword v2, v1, {WS}, s{T0} offen sc1'); L(f'    s_add_u32 s{T0+3}, s{T0+3}, 1'); L('    s_waitcnt vmcnt(0)')
    L(f'    v_cmp_ne_u32 vcc, v2, v{V_EP}'); L(f'    s_cbranch_vccz {done}')
    L(f'    s_cmp_lt_u32 s{T0+3}, 20000'); L(f'    s_cbranch_scc1 {ls}')
    A.label(done)
    A.vm = []
    if pend:
        A('s_mov_b64 exec, 1')
        A(f'buffer_store_dword v{V_EP}, v{V_L16}, {WS}, s{S_PEND} offen sc1')
    A('s_mov_b64 exec, -1')
def global_check(A, ph, r):
    done, lp = newl('gd'), newl('gl')
    L = A.lines.append
    L(f'    s_mov_b32 s{T0+12}, 0'); L(f'    s_mov_b32 s{T0+13}, {SLOW + ph * 1024}')
    A.label(lp)
    L(f'    buffer_load_dwordx4 v[{r}:{r+3}], v{V_L16}, {WS}, s{T0+13} offen sc1')
    L(f'    s_add_u32 s{T0+12}, s{T0+12}, 1'); L('    s_waitcnt vmcnt(0)')
    for i in range(4): L(f'    v_xor_b32 v{r+i}, v{r+i}, v{V_EP}')
    L(f'    v_or3_b32 v{r}, v{r}, v{r+1}, v{r+2}'); L(f'    v_or_b32 v{r}, v{r}, v{r+3}')
    L(f'    v_cmp_ne_u32 vcc, 0, v{r}'); L(f'    s_cbranch_vccz {done}')
    L(f'    s_sleep {env("GSLEEP", 24)}')
    L(f'    s_cmp_lt_u32 s{T0+12}, 10000'); L(f'    s_cbranch_scc1 {lp}')
    A.label(done)
    A.vm = []

W2S = [2, 3, 0, 1, 4]
W3S = [6, 5, 3, 0, 1, 4, 2, 6, 5, 3]
W4S = [0, 1, 4, 2, 6, 5, 3, 0, 1, 4, 2, 6]
LORD = [('P1', c) for c in range(10)] + [('ST', 0)] + [('W2', p) for p in range(5)] + [('W3', p) for p in range(10)] + [('ST', 1)] + [('W4', p) for p in range(12)] + [('S', 0)]
SPOS = env('SPOS', 10)
LP = {k: i + 1 for i, k in enumerate(LORD)}
CORD = [('LN', 0)] + [('P1', c) for c in range(10)] + [('E1', 0), ('E1', 1)] + [('W2', p) for p in range(5)] + [('E2', 0)] + [('W3', p) for p in range(10)] + [('W4', p) for p in range(12)]
CP = {k: i + 1 for i, k in enumerate(CORD)}
def needfree(k):
    n, i = k
    if n == 'GATE': return CP[i]
    if n == 'P1': return CP[('P1', i - 4)] if i >= 4 else 0
    if n == 'W2': return CP[('P1', 6 + i)] if i < 4 else CP[('E1', 0)]
    g1 = CP[('W2', env('GATE1', -1))] if env('GATE1', -1) >= 0 else 0
    if n == 'W3':
        if i < 2: return max(g1, CP[('E1', 0)])
        if i < 6: return CP[('W2', i - 1)]
        if i == 6: return CP[('E2', 0)]
        return CP[('W3', i - 7)]
    if n == 'W4':
        if i < 7: return max(CP[('W3', i + 3)], CP[('W3', env('W4GATE', 8))])
        return CP[('W4', i - 7)]
    return 0

def rot(A, dst, terms, n):
    terms = [(r, m) for r, m in terms if m]
    if not terms:
        A(f's_mov_b32 s{dst}, 0'); return
    for k, (reg, mul) in enumerate(terms):
        if k == 0: A(f's_mul_i32 s{dst}, s{reg}, {mul}')
        else: A(f's_mul_i32 s{T0+2}, s{reg}, {mul}'); A(f's_add_u32 s{dst}, s{dst}, s{T0+2}')
    A(f's_lshr_b32 s{dst}, s{dst}, 3')
    A(f's_mul_i32 s{T0+2}, s{dst}, {(65536 + n - 1) // n}'); A(f's_lshr_b32 s{T0+2}, s{T0+2}, 16'); A(f's_mul_i32 s{T0+2}, s{T0+2}, {n}'); A(f's_sub_u32 s{dst}, s{dst}, s{T0+2}')
def ids_p1(A):
    A(f's_mov_b32 s{S_J1}, s{S_M}'); A(f's_mov_b32 s{S_TP1}, s{S_RG}')
    if env('MAP1', 1):
        A(f's_and_b32 s{T0}, s{S_RG}, 1'); A(f's_mul_i32 s{T0}, s{T0}, 12'); A(f's_add_u32 s{T0}, s{T0}, s{S_M}')
        A(f's_mul_i32 s{T0+1}, s{T0}, 43'); A(f's_lshr_b32 s{T0+1}, s{T0+1}, 8')
        A(f's_mul_i32 s{T0+2}, s{T0+1}, 6'); A(f's_sub_u32 s{T0}, s{T0}, s{T0+2}')
        A(f's_and_b32 s{T0+2}, s{S_RG}, 12'); A(f's_add_u32 s{T0+1}, s{T0+1}, s{T0+2}')
        A(f's_bfe_u32 s{T0+2}, s{S_RG}, 0x10001'); A(f's_mul_i32 s{T0+2}, s{T0+2}, 6'); A(f's_add_u32 s{T0}, s{T0}, s{T0+2}')
        A(f's_cmp_lt_u32 s{S_M}, 12'); A(f's_cselect_b32 s{S_J1}, s{T0}, s{S_M}'); A(f's_cselect_b32 s{S_TP1}, s{T0+1}, s{S_RG}')
    A(f's_lshr_b32 s{T0+3}, s{S_RG}, 1'); A(f's_and_b32 s{T0+6}, s{S_TP1}, 3')
    X1M = env('X1M', 0)
    if X1M: A(f's_lshr_b32 s{T0+3}, s{T0+3}, 1')
    rot(A, S_ROT1, [(T0 + 3, env('R1X', 20 if X1M else 10))], 10)
    if G.PR == 44:
        A(f's_and_b32 s{T0+6}, s{T0+6}, {X1M}'); A(f's_and_b32 s{T0+5}, s{S_J1}, {env("PH1M", 0)}')
        A(f'v_add_u32 v38, s{T0+5}, v0'); A('v_subrev_u32 v56, 10, v38'); A('v_min_u32 v38, v38, v56')
        A(f'v_xor_b32 v56, s{T0+6}, v38'); A(f's_and_b32 s{T0+2}, s{T0+6}, 1'); A(f'v_xor_b32 v57, s{T0+2}, v38')
        A('v_cmp_gt_u32 s[6:7], 8, v38'); A('v_cndmask_b32 v56, v57, v56, s[6:7]')
        A(f'v_add_u32 v38, s{S_ROT1}, v56'); A('v_subrev_u32 v56, 10, v38'); A('v_min_u32 v38, v38, v56')
    A(f's_lshl_b32 s{S_TP1}, s{S_TP1}, 2'); A(f's_add_u32 s{S_TP1}, s{S_TP1}, s{S_WAVE}')
    A(f's_sub_u32 s{T0}, s{S_M}, 12'); A(f's_lshr_b32 s{T0+1}, s{T0}, 1'); A(f's_add_u32 s{T0+1}, s{T0+1}, 1'); A(f's_sub_u32 s{T0+2}, 0, s{T0+1}')
    A(f's_bitcmp1_b32 s{S_M}, 0'); A(f's_cselect_b32 s{T0+1}, s{T0+1}, s{T0+2}')
    A(f's_cmp_ge_u32 s{S_M}, 12'); A(f's_cselect_b32 s{T0+1}, s{T0+1}, 0')
    A(f's_lshl_b32 s{S_TOK}, s{S_TP1}, 5'); A(f's_add_u32 s{S_TOK}, s{S_TOK}, s{T0+1}')
def ids_late(A):
    A(f'v_mov_b32 v{V_CT}, {CTRL}')
    A(f's_lshl_b32 s{T0}, s{S_WAVE}, 2'); A(f's_add_u32 s{T0}, s{T0}, {CTRL}'); A(f'v_mov_b32 v1, s{T0}')
    A('v_cmp_eq_u32 s[6:7], 0, v0'); A(f'v_cndmask_b32 v{V_MY}, v{VOOB}, v1, s[6:7]')
    A(f's_lshr_b32 s{S_KW}, s{S_WAVE}, 1'); A(f's_and_b32 s{S_MW}, s{S_WAVE}, 1')
    A(f's_lshl_b32 s{S_TT1}, s{S_RG}, 2'); A(f's_add_u32 s{S_TT1}, s{S_TT1}, s{S_WAVE}')
    A(f's_lshr_b32 s{T0}, s{S_M}, 3'); A(f's_lshl_b32 s{T0}, s{T0}, 1'); A(f's_lshl_b32 s{S_TT2}, s{S_RG}, 2')
    A(f's_add_u32 s{S_TT2}, s{S_TT2}, s{T0}'); A(f's_add_u32 s{S_TT2}, s{S_TT2}, s{S_MW}')
    A(f's_and_b32 s{S_C2}, s{S_M}, 7')
    A(f's_lshr_b32 s{T0+3}, s{S_RG}, 1'); A(f's_and_b32 s{T0+4}, s{S_RG}, 1')
    A(f's_lshl_b32 s{T0+5}, s{T0+4}, 1'); A(f's_lshr_b32 s{T0+2}, s{S_M}, 3'); A(f's_add_u32 s{T0+5}, s{T0+5}, s{T0+2}')
    rot(A, S_ROT3, [(T0 + 3, env('R3X', 10)), (T0 + 4, env('R3S', 0)), (S_M, env('R3M', 0))], 10)
    rot(A, S_ROT2, [(T0 + 3, env('R2X', 5)), (T0 + 5, env('R2U', 0)), (S_C2, env('R2C', 0))], 5)
    rot(A, S_ROT4, [(T0 + 3, env('R4X', 0)), (T0 + 5, env('R4U', 0)), (S_C2, env('R4C', 0))], 12)
    A(f's_lshl_b32 s{S_FLF}, s{S_RG}, 9'); A(f's_lshl_b32 s{T0}, s{S_M}, 2'); A(f's_add_u32 s{S_FLF}, s{S_FLF}, s{T0}'); A(f's_add_u32 s{S_FLF}, s{S_FLF}, {FAST}')
    A(f's_lshl_b32 s{S_FLS}, s{S_Q}, 2'); A(f's_add_u32 s{S_FLS}, s{S_FLS}, {SLOW}')
    A(f's_mul_i32 s{S_TILE2}, s{S_TT2}, 40960'); A(f's_mul_i32 s{T0}, s{S_C2}, 5120'); A(f's_add_u32 s{S_TILE2}, s{S_TILE2}, s{T0}')

def common_prologue(A):
    A.raw(f'.globl {KN}\n.p2align 8\n.type {KN},@function\n{KN}:')
    A('s_cmp_ge_u32 s2, 256'); A('s_cbranch_scc1 L_end')
    if STAMP:
        A.lines.append('    s_memrealtime s[10:11]'); A.lines.append('    v_mov_b32 v3, 0')
    stamp(A, 0)
    A('s_load_dwordx16 s[16:31], s[0:1], 0'); A('s_load_dwordx4 s[32:35], s[0:1], 64'); A('s_load_dwordx2 s[36:37], s[0:1], 80')
    A('v_lshrrev_b32 v1, 6, v0'); A('v_and_b32 v0, 63, v0')
    A(f'v_readfirstlane_b32 s{S_W8}, v1')
    A(f'v_lshlrev_b32 v{V_L16}, 4, v0'); A(f'v_mov_b32 v{VOOB}, {OOB}')
    A(f's_and_b32 s{T0}, s2, 7'); A(f's_lshl_b32 s{S_RG}, s{T0}, 1'); A(f's_lshr_b32 s{T0}, s2, 7'); A(f's_add_u32 s{S_RG}, s{S_RG}, s{T0}')
    A(f's_lshr_b32 s{S_M}, s2, 3'); A(f's_and_b32 s{S_M}, s{S_M}, 15')
    A(f's_lshl_b32 s{S_Q}, s{S_RG}, 4'); A(f's_add_u32 s{S_Q}, s{S_Q}, s{S_M}')
    A(f's_and_b32 s{S_WAVE}, s{S_W8}, 3')
    A(f's_mul_i32 s{S_LW}, s{S_WAVE}, 5120')
    A(f's_cmp_lt_u32 s{S_W8}, 4'); A('s_cbranch_scc1 L_compute')

def tr160_bases(A, nat, pair, sbase):
    A('v_bfe_u32 v56, v0, 2, 3'); A('v_lshrrev_b32 v57, 5, v0'); A('v_lshl_add_u32 v56, v57, 4, v56'); A('v_mul_u32_u24 v56, 160, v56')
    A(f'v_add_u32 v56, s{sbase}, v56')
    A('v_and_b32 v57, 3, v0'); A(f'v_lshl_add_u32 v{nat}, v57, 3, v56')
    A('v_and_b32 v57, 2, v0'); A(f'v_lshl_add_u32 v{pair}, v57, 3, v{nat}')

def loader(A):
    G.PR = 44
    VW, VX, VW2, VW3 = 16, 24, 32, 40
    A('s_setprio 3')
    ids_p1(A)
    A(f's_lshl_b32 s{S_LX}, s{S_WAVE}, 12')
    A(f's_cmp_ge_u32 s{S_M}, 12')
    A(f's_cselect_b32 s{T0+8}, 1, 3'); A(f's_cselect_b32 s{T0+9}, 12, 0')
    A(f's_mul_i32 s{T0+7}, s{T0+8}, 1280')
    A(f's_sub_u32 s{T0+9}, s{S_J1}, s{T0+9}'); A(f's_mul_i32 s{T0+9}, s{T0+9}, 320')
    A(f's_sub_u32 s{T0+5}, s{S_J1}, 4'); A(f's_mul_i32 s{T0+6}, s{T0+5}, 160'); A(f's_add_u32 s{T0+6}, s{T0+6}, 1280')
    A(f's_cmp_lt_u32 s{T0+5}, 8')
    A(f's_cselect_b32 s{T0+9}, s{T0+6}, s{T0+9}'); A(f's_cselect_b32 s{T0+5}, 1120, 0')
    A(f'v_mov_b32 v60, s{T0+5}')
    for n in range(5):
        A(f'v_add_u32 v56, {64*n}, v0'); div_magic(A, 57, 58, 56, 20, 59)
        A(f'v_mul_lo_u32 v57, v57, s{T0+7}'); A('v_cmp_lt_u32 vcc, 9, v58'); A('v_lshl_add_u32 v57, v58, 4, v57')
        A('v_cndmask_b32 v59, 0, v60, vcc')
        A(f'v_add_u32 v{VW+n}, v57, v59')
        if n: A(f'v_subrev_u32 v{VW+n}, {min(n,3)*1024}, v{VW+n}')
    A(f's_lshl_b32 s{T0+6}, s{S_WAVE}, 4'); A(f's_mul_i32 s{T0+6}, s{T0+6}, s{T0+7}'); A(f's_add_u32 s{T0+6}, s{T0+6}, s{T0+9}')
    A(f's_lshl_b32 s{S_RSTEP}, s{T0+7}, 6')
    set_stream(A, S_RW, S_REND, S_RTOT, T0 + 6, S_ROT1, f's{S_RSTEP}', 10)
    A('v_lshrrev_b32 v56, 3, v0'); A('v_lshrrev_b32 v57, 4, v0'); A('v_and_b32 v58, 7, v0'); A('v_xor_b32 v58, v58, v57'); A('v_lshlrev_b32 v58, 4, v58')
    A(f'v_add_u32 v56, s{S_TOK}, v56')
    for n in range(4):
        if n: A('v_add_u32 v56, 8, v56'); A('v_xor_b32 v58, 64, v58')
        A('v_mul_u32_u24 v57, 1280, v56'); A('v_cmp_gt_u32 vcc, 2048, v56'); A('v_add_u32 v57, v57, v58')
        if n: A(f'v_subrev_u32 v57, {1024*n}, v57')
        A(f'v_cndmask_b32 v{VX+n}, v{VOOB}, v57, vcc')
    A(f's_mov_b32 s{T0}, 0')
    set_stream(A, S_AO, S_AEND, S_ATOT, T0, S_ROT1, 128, 10)
    A('v_lshrrev_b32 v40, 5, v0'); A(f's_lshl_b32 s{T0}, s{S_WAVE}, 1'); A(f'v_add_u32 v41, s{T0}, v40')
    A('v_and_b32 v42, 31, v0')
    A.waitcnt(lg=0)
    srd(A, SRD_X, S_X, 2048 * 1280)
    A(f's_cmp_ge_u32 s{S_M}, 12')
    A(f's_cselect_b32 s{SRD_W}, s{S_W1}, s{S_WQKV}'); A(f's_cselect_b32 s{SRD_W+1}, s{S_W1+1}, s{S_WQKV+1}')
    A(f's_mul_i32 s{SRD_W+2}, s{T0+8}, {640*1280}'); A(f's_mov_b32 s{SRD_W+3}, 0x20000')
    srd(A, SRD_WS, S_WS, WS_SIZE)
    def raw(slot, vw, tag):
        for n in range(5):
            if n in (0, 4): A(f's_add_u32 m0, s{S_LW}, {slot * SLOT + (1024 if n == 4 else 0)}')
            A(f'buffer_load_dwordx4 v{vw+n}, {WSRD}, s{S_RW} offen offset:{min(n,3)*1024} lds', tag=tag)
        advance(A, S_RW, f's{S_RSTEP}', S_REND, S_RTOT)
    TS = f's[{SRD_OUT}:{SRD_OUT+3}]'
    S_SD = 73 + 26
    pre, post = {}, {}
    def flag_eval(ph, r):
        ok = newl('ge')
        for j in range(4): A(f'v_xor_b32 v{r+j}, v{r+j}, v{V_EP}')
        A(f'v_or3_b32 v{r}, v{r}, v{r+1}, v{r+2}'); A(f'v_or_b32 v{r}, v{r}, v{r+3}'); A(f'v_cmp_ne_u32 vcc, 0, v{r}')
        A.lines.append(f'    s_cbranch_vccz {ok}')
        sv = A.save(); global_check(A, ph, r); A.restore(sv)
        A.label(ok)
    def flag_issue(ph, r):
        A(f's_mov_b32 s{T0+13}, {SLOW + ph * 1024}')
        A(f'buffer_load_dwordx4 v[{r}:{r+3}], v{V_L16}, {WS}, s{T0+13} offen sc1')
    def late_setup():
        A(f's_setprio {env("LPRIO", 0)}')
        ids_late(A)
        A(f's_mov_b32 s{T0+1}, {GEN}'); A('v_mov_b32 v1, 0')
        A(f'buffer_load_dword v{V_EP}, v1, {WS}, s{T0+1} offen sc1')
        A(f's_lshl_b32 s{T0+1}, s{S_RG}, 9'); A(f's_add_u32 s{T0+1}, s{T0+1}, {FAST}'); A('v_lshlrev_b32 v1, 3, v0')
        A(f'buffer_load_dword v2, v1, {WS}, s{T0+1} offen sc1')
        for n in range(5):
            A(f'v_add_u32 v56, {64*n}, v0'); div_magic(A, 57, 58, 56, 10, 59)
            A('v_mul_u32_u24 v59, 1280, v57'); A(f'v_lshl_add_u32 v{VW2+n}, v58, 4, v59'); A(f'v_subrev_u32 v{200+n}, {min(n,3)*1024}, v{VW2+n}')
        A(f's_lshl_b32 s{S_ROWS2}, s{S_TT2}, 1'); A(f's_add_u32 s{S_ROWS2}, s{S_ROWS2}, s{S_KW}')
        A(f's_mul_i32 s{S_ROWS2}, s{S_ROWS2}, {16*1280}'); A(f's_mul_i32 s{T0}, s{S_C2}, 160'); A(f's_add_u32 s{S_ROWS2}, s{S_ROWS2}, s{T0}')
        A(f's_mul_i32 s{S_G1}, s{S_WAVE}, 2560'); A(f's_add_u32 s{S_G1}, s{S_G1}, {XT}')
        A(f's_mov_b32 s{S_FASTOK}, {env("FASTOK", 1)}')
    def ln_store():
        A(f's_lshl_b32 s{T0}, s{S_WAVE}, 7'); A(f's_add_u32 s{T0}, s{T0}, {STB}'); A(f'v_lshl_add_u32 v56, v40, 3, s{T0}')
        A('ds_read_b64 v[60:61], v56')
        A('v_cmp_eq_u32 vcc, 0, v42'); A('v_lshlrev_b32 v57, 3, v41'); A(f'v_cndmask_b32 v57, v{VOOB}, v57, vcc')
        A(f's_lshl_b32 s{T0}, s{S_Q}, 6'); A(f's_add_u32 s{T0}, s{T0}, {ST0}')
        A(f'buffer_store_dwordx2 v[60:61], v57, {WS}, s{T0} offen {SC}')
        for i in range(4): A(f'v_mov_b32 v{64+i}, 0')
        A(f's_lshl_b32 s{T0}, s{S_Q}, 10'); A(f's_add_u32 s{T0}, s{T0}, {KVS}')
        A(f's_cmp_eq_u32 s{S_WAVE}, 3'); A(f's_cselect_b32 s{T0}, s{T0}, {OOB}')
        A(f'buffer_store_dwordx4 v[64:67], v{V_L16}, {WS}, s{T0} offen {SC}', tag='pubst')
        A(f'v_add_u32 v{V_EP}, 1, v{V_EP}')
    def pub(ph, fast):
        publish(A, ph, 4, fast=fast, tag='pubst'); pubn[4] += 1
    def xt_dma():
        for n in range(3):
            A(f's_add_u32 m0, s{S_G1}, {n*1024}')
            if n == 2: A('s_mov_b64 exec, 0xffffffff')
            A(f'buffer_load_dwordx4 v{VW2+n}, {XS}, s{S_ROWS2} offen lds')
        A('s_mov_b64 exec, -1')
    def g0_eval():
        flag_eval(PH0, 48)
        l = newl('gen')
        A(f's_add_u32 s{T0}, s{S_Q}, s{S_WAVE}'); A(f's_cmp_lg_u32 s{T0}, 0'); A(f's_cbranch_scc1 {l}')
        A(f's_mov_b32 s{T0}, {GEN}'); A('s_mov_b64 exec, 1')
        A.lines.append(f'    buffer_store_dword v{V_EP}, v{V_L16}, {WS}, s{T0} offen sc1')
        A('s_mov_b64 exec, -1'); A.label(l)
    def st_load():
        A(f'v_add_u32 v56, s{S_TOK}, v42'); A('v_cmp_gt_u32 vcc, 2048, v56'); A('v_lshlrev_b32 v56, 3, v56')
        A(f'v_cndmask_b32 v56, v{VOOB}, v56, vcc'); A(f's_mov_b32 s{T0}, {ST0}')
        A(f'buffer_load_dwordx2 v[60:61], v56, {WS}, s{T0} offen {SC}')
        A(f's_lshl_b32 s{T0}, s{S_TT2}, 1'); A(f's_add_u32 s{T0}, s{T0}, s{S_KW}'); A(f's_lshl_b32 s{T0}, s{T0}, 7'); A(f's_add_u32 s{T0}, s{T0}, {ST0}')
        A('v_and_b32 v57, 15, v0'); A('v_lshlrev_b32 v57, 3, v57')
        A(f'buffer_load_dwordx2 v[62:63], v57, {WS}, s{T0} offen {SC}')
    def st_put():
        neg_mean_frag(A, 58, 60, 56)
        A(f'v_max_f32 v61, {f2u(1e-30)}, v61')
        A(f's_mul_i32 s{T0}, s{S_WAVE}, 384'); A(f's_add_u32 s{T0}, s{T0}, {STA}')
        A(f'v_lshl_add_u32 v56, v0, 2, s{T0}'); A('ds_write_b32 v56, v58')
        A(f'v_lshl_add_u32 v56, v42, 2, s{T0}'); A('ds_write_b32 v56, v61 offset:256')
        A('v_mul_f32 v62, v62, v63')
        A(f's_lshl_b32 s{T0}, s{S_WAVE}, 7'); A(f's_add_u32 s{T0}, s{T0}, {STB}'); A('v_and_b32 v57, 15, v0'); A(f'v_lshl_add_u32 v57, v57, 3, s{T0}')
        A('ds_write_b64 v57, v[62:63]')
        A(f'ds_write_b32 v{V_CT}, v{V_EP} offset:72')
    def w2_setup():
        srd(A, SRD_W, S_W2, 640 * 1280)
        A(f's_mul_i32 s{T0}, s{S_KW}, 320'); A(f's_lshl_b32 s{T0+1}, s{S_MW}, 5'); A(f's_add_u32 s{T0}, s{T0}, s{T0+1}'); A(f's_mul_i32 s{T0}, s{T0}, 1280')
        A(f's_mul_i32 s{T0+1}, s{S_C2}, 160'); A(f's_add_u32 s{T0}, s{T0}, s{T0+1}')
        A(f's_mov_b32 s{S_RSTEP}, {64*1280}')
        set_stream(A, S_RW, S_REND, S_RTOT, T0, S_ROT2, 64 * 1280, 5)
    def side_load():
        srd(A, SRD_OUT, S_W4, 1536 * 1280)
        A(f's_lshr_b32 s{T0+5}, s{S_Q}, 1'); A(f's_and_b32 s{T0+6}, s{S_Q}, 1'); A(f's_lshl_b32 s{T0+6}, s{T0+6}, 2'); A(f's_add_u32 s{T0+6}, s{T0+6}, s{S_WAVE}')
        A(f's_mul_i32 s{T0+7}, s{T0+5}, {32*1280}'); A(f's_mul_i32 s{T0+8}, s{T0+6}, 160'); A(f's_add_u32 s{T0+7}, s{T0+7}, s{T0+8}')
        A(f's_mul_i32 s{S_SD}, s{T0+6}, 48'); A(f's_add_u32 s{S_SD}, s{S_SD}, s{T0+5}'); A(f's_mul_i32 s{S_SD}, s{S_SD}, 5120'); A(f's_add_u32 s{S_SD}, s{S_SD}, {W4F}')
        for j in range(5): A(f'v_mov_b32 v{64+j}, v{VW2+j}')
        A(f's_cmp_lt_u32 s{S_Q}, 96'); A('s_cbranch_scc1 L_side_src')
        srd(A, SRD_OUT, S_W3, 640 * 3072)
        A(f's_sub_u32 s{T0+2}, s{S_Q}, 96'); A(f's_mul_i32 s{T0+5}, s{T0+2}, 2731'); A(f's_lshr_b32 s{T0+5}, s{T0+5}, 16')
        A(f's_mul_i32 s{T0+6}, s{T0+5}, 24'); A(f's_sub_u32 s{T0+6}, s{T0+2}, s{T0+6}')
        A(f's_lshl_b32 s{T0+5}, s{T0+5}, 2'); A(f's_add_u32 s{T0+5}, s{T0+5}, s{S_WAVE}'); A(f's_mul_i32 s{T0+7}, s{T0+5}, {32*3072}')
        A(f's_lshl_b32 s{T0+8}, s{T0+6}, 7'); A(f's_add_u32 s{T0+7}, s{T0+7}, s{T0+8}')
        A(f's_lshl_b32 s{S_SD}, s{T0+6}, 8'); A(f's_add_u32 s{S_SD}, s{S_SD}, {CS3}')
        A(f's_cmp_lt_u32 s{S_Q}, 216'); A(f's_cselect_b32 s{S_SD}, s{S_SD}, {OOB}')
        A('v_lshrrev_b32 v56, 3, v0'); A('v_mul_u32_u24 v56, 3072, v56'); A('v_and_b32 v57, 7, v0'); A('v_lshl_add_u32 v64, v57, 4, v56')
        for j in range(1, 4): A(f'v_add_u32 v{64+j}, {j*8*3072}, v64')
        A(f'v_mov_b32 v68, v{VOOB}')
        A.label('L_side_src')
        for j in range(5): A(f'buffer_load_dwordx4 v[{136+4*j}:{139+4*j}], v{64+j}, {TS}, s{T0+7} offen')
    def side_do():
        A(f's_add_u32 s{T0+3}, s{S_LW}, {5*SLOT}'); A(f'v_add_u32 v60, s{T0+3}, v{V_L16}')
        for j in range(5): A(f'ds_write_b128 v60, v[{136+4*j}:{139+4*j}] offset:{1024*j}')
        A(f's_cmp_lt_u32 s{S_Q}, 96'); A('s_cbranch_scc0 L_side_cs')
        st = A.save()
        A(f's_add_u32 s{T0+5}, s{S_SD}, 1024')
        tr160_bases(A, 58, 59, T0 + 3)
        for f in range(5):
            base, off = (59, 64 * (f // 2) + 16 * (f % 2)) if f < 4 else (58, 128)
            A(f'ds_read_b64_tr_b16 v[{64+4*f}:{65+4*f}], v{base} offset:{off}')
            A(f'ds_read_b64_tr_b16 v[{66+4*f}:{67+4*f}], v{base} offset:{off+8*160}')
        for f in range(5):
            A(f'buffer_store_dwordx4 v[{64+4*f}:{67+4*f}], v{V_L16}, {WS}, s{S_SD if f<4 else T0+5} offen offset:{(f if f<4 else 3)*1024} {SC}')
        A('s_branch L_side_done')
        A.label('L_side_cs'); A.restore(st)
        A('v_bfe_u32 v58, v0, 2, 2'); A('v_lshrrev_b32 v57, 5, v0'); A('v_lshl_add_u32 v58, v57, 2, v58'); A('v_lshlrev_b32 v58, 7, v58')
        A('v_bfe_u32 v57, v0, 4, 1'); A('v_lshl_add_u32 v58, v57, 5, v58'); A('v_and_b32 v57, 3, v0'); A('v_lshl_add_u32 v58, v57, 3, v58')
        A(f'v_add_u32 v58, s{T0+3}, v58')
        for j in range(4): A(f'v_mov_b32 v{112+j}, 0x3f803f80')
        for ks in range(2):
            for t in range(2):
                b = 96 + 8 * ks + 4 * t
                A(f'ds_read_b64_tr_b16 v[{b}:{b+1}], v58 offset:{2048*ks+64*t}'); A(f'ds_read_b64_tr_b16 v[{b+2}:{b+3}], v58 offset:{2048*ks+64*t+1024}')
        for ks in range(2):
            for t in range(2):
                d = 64 + 16 * t; b = 96 + 8 * ks + 4 * t
                A(f'v_mfma_f32_32x32x16_bf16 v[{d}:{d+15}], v[112:115], v[{b}:{b+3}], {"0" if ks==0 else f"v[{d}:{d+15}]"}')
        A('v_cmp_gt_u32 vcc, 32, v0'); A('v_lshlrev_b32 v56, 2, v0')
        A('v_cndmask_b32 v64, v80, v64, vcc')
        A(f'buffer_atomic_add_f32 v64, v56, {WS}, s{S_SD} offen')
        A.label('L_side_done'); A.restore(st); A.lg = []; A.hist = []; A.lines.append('    s_waitcnt lgkmcnt(0)'); A.nop(4)
    def w3_setup():
        l1, l2 = newl('p3s'), newl('p3e')
        A(f's_cmp_ge_u32 s{S_M}, 12'); A(f's_cbranch_scc1 {l1}')
        srd(A, SRD_W, S_W3, 640 * 3072)
        A('v_lshrrev_b32 v56, 4, v0'); A('v_bfe_u32 v57, v0, 2, 2'); A('v_xor_b32 v57, v57, v56'); A('v_mul_u32_u24 v56, 3072, v56')
        A('v_lshl_add_u32 v56, v57, 6, v56'); A('v_and_b32 v57, 3, v0'); A(f'v_lshl_add_u32 v{VW}, v57, 4, v56')
        for j in range(1, 4): A(f'v_add_u32 v{VW+j}, {j*4*3072 - j*1024}, v{VW}')
        A(f'v_mov_b32 v{VW+4}, v{VOOB}')
        A(f's_mov_b32 s{S_RSTEP}, {64*3072}'); A(f's_mul_i32 s{T0}, s{S_WAVE}, {16*3072}'); A(f's_lshl_b32 s{T0+1}, s{S_M}, 8')
        A(f's_branch {l2}')
        A.label(l1)
        srd(A, SRD_W, S_WO, 640 * 1280)
        A(f's_mov_b32 s{S_RSTEP}, {64*1280}'); A(f's_mul_i32 s{T0}, s{S_WAVE}, {16*1280}'); A(f's_sub_u32 s{T0+1}, s{S_M}, 12'); A(f's_mul_i32 s{T0+1}, s{T0+1}, 320')
        A.label(l2)
        A(f's_add_u32 s{T0}, s{T0}, s{T0+1}')
        A(f's_mov_b32 s{S_RTOT}, s{T0}')
    def f1_issue():
        A(f's_add_u32 s{T0}, s{S_C2}, 4'); A(f's_lshl_b32 s{T0}, s{T0}, 7'); A(f'v_lshl_add_u32 v56, v0, 2, s{T0}')
        A(f's_lshr_b32 s{T0}, s{S_C2}, 1'); A(f's_lshl_b32 s{T0}, s{T0}, 7'); A(f's_lshl_b32 s{T0+1}, s{S_RG}, 2'); A(f's_add_u32 s{T0}, s{T0}, s{T0+1}'); A(f'v_mov_b32 v57, s{T0}')
        A('v_cmp_gt_u32 vcc, 16, v0'); A('v_cndmask_b32 v49, v57, v56, vcc')
        A(f's_mov_b32 s{T0+13}, {F1}')
        A(f'buffer_load_dword v48, v49, {WS}, s{T0+13} offen sc1')
    def o_load(idx):
        A(f's_mul_i32 s{T0}, s{S_WAVE}, 5')
        A(f'v_add_u32 v58, s{T0}, v40')
        A('v_lshlrev_b32 v59, 4, v42'); A(f'v_add_u32 v59, {XT}, v59')
        for j in range(3):
            A(f'v_add_u32 v56, {2*j}, v58')
            A(f'v_lshrrev_b32 v{52+j}, 2, v56'); A(f'v_lshl_add_u32 v{52+j}, v{52+j}, 10, v59')
            A('v_and_b32 v57, 1, v56'); A(f'v_lshl_add_u32 v{52+j}, v57, 9, v{52+j}')
            A('v_bfe_u32 v57, v56, 1, 1'); A(f'v_lshl_add_u32 v{52+j}, v57, 3, v{52+j}')
        A('v_cmp_gt_u32 vcc, 32, v0'); A(f'v_cndmask_b32 v54, v{VOOB}, v54, vcc')
        A('v_min_u32 v56, 20, v42'); A(f'v_subrev_u32 v57, s{S_WAVE}, v40')
        for j in range(4):
            A(f'v_add_u32 v59, {2*j}, v57'); A('v_cmp_gt_u32 vcc, 5, v59'); A('v_mad_u32_u24 v59, v59, 21, v56'); A('v_lshlrev_b32 v59, 4, v59')
            A(f'v_cndmask_b32 v{60+j}, v{VOOB}, v59, vcc')
        stamp(A, 10)
        done, lp = newl('fd'), newl('fl')
        A(f'v_cmp_ne_u32 vcc, v48, v{V_EP}')
        L = lambda t: A.lines.append('    ' + t)
        L(f's_cbranch_vccz {done}'); L(f's_mov_b32 s{T0+12}, 0'); L(f's_mov_b32 s{T0+13}, {F1}')
        A.label(lp)
        L('s_sleep 8'); L(f'buffer_load_dword v48, v49, {WS}, s{T0+13} offen sc1'); L(f's_add_u32 s{T0+12}, s{T0+12}, 1'); L('s_waitcnt vmcnt(0)')
        L(f'v_cmp_ne_u32 vcc, v48, v{V_EP}'); L(f's_cbranch_vccz {done}'); L(f's_cmp_lt_u32 s{T0+12}, 30000'); L(f's_cbranch_scc1 {lp}')
        A.label(done)
        stamp(A, 11)
        A(f's_lshl_b32 s{T0}, s{S_C2}, 2'); A(f's_add_u32 s{T0}, s{T0}, s{S_WAVE}'); A(f's_lshl_b32 s{T0}, s{T0}, 11'); A(f's_add_u32 s{T0}, s{T0}, {KVS}')
        for j in range(4): A(f'buffer_load_dwordx4 v[{96+4*j}:{99+4*j}], v{60+j}, {WS}, s{T0} offen {SC}')
        A(f's_mul_i32 s{T0+4}, s{S_MW}, 40960'); A(f's_sub_u32 s{T0+4}, s{S_TILE2}, s{T0+4}')
        A(f's_lshl_b32 s{T0}, s{S_WAVE}, 10'); A(f's_add_u32 s{T0}, s{T0}, s{T0+4}'); A(f's_add_u32 s{T0}, s{T0}, {PQ}'); A(f's_add_u32 s{T0+1}, s{T0}, 40960')
        for tt in range(2):
            for a_ in range(2):
                b = 112 + 8 * tt + 4 * a_
                A(f'buffer_load_dwordx4 v[{b}:{b+3}], v{V_L16}, {WS}, s{T0+tt} offen offset:{a_*1024} {SC}')
    def o_do():
        pack(A, 128, 96, 16)
        for tt in range(2):
            d = 64 + 16 * tt
            A(f'v_mfma_f32_32x32x16_bf16 v[{d}:{d+15}], v[128:131], v[{112+8*tt}:{115+8*tt}], 0')
            A(f'v_mfma_f32_32x32x16_bf16 v[{d}:{d+15}], v[132:135], v[{116+8*tt}:{119+8*tt}], v[{d}:{d+15}]')
        A(f's_mul_i32 s{T0}, s{S_MW}, 5120'); A(f's_mul_i32 s{T0+1}, s{S_KW}, 3072'); A(f's_add_u32 s{T0}, s{T0}, s{T0+1}'); A(f's_add_u32 s{T0}, s{T0}, {XT}'); A(f'v_add_u32 v56, s{T0}, v{V_L16}')
        A(f's_add_u32 s{T0}, s{S_TILE2}, s{T0+1}'); A(f's_add_u32 s{T0}, s{T0}, {OO}')
        A(f's_cmp_eq_u32 s{S_KW}, 0'); A(f's_cselect_b32 s{T0+1}, s{T0}, {OOB}')
        for tt in range(2):
            d = 64 + 16 * tt
            A(f'v_add_f32 v{d+12}, {f2u(1e-6)}, v{d+12}'); A(f'v_rcp_f32 v{d+12}, v{d+12}')
            for j in range(12): A(f'v_mul_f32 v{d+j}, v{d+j}, v{d+12}')
            pack(A, 96 + 6 * tt, d, 12)
            for j in range(3): A(f'ds_write_b64 v{52+j}, v[{96+6*tt+2*j}:{97+6*tt+2*j}] offset:{5120*tt}')
        gbar(A, C_LB)
        for j in range(3): A(f'ds_read_b128 v[{64+4*j}:{67+4*j}], v56 offset:{1024*j}')
        for j in range(3): A(f'buffer_store_dwordx4 v[{64+4*j}:{67+4*j}], v{V_L16}, {WS}, s{T0 if j<2 else T0+1} offen offset:{1024*j} {SC}', tag='pubst')
    def p3_l1():
        A('v_lshlrev_b32 v56, 3, v42'); A('v_lshl_add_u32 v56, v40, 16, v56')
        A(f's_lshl_b32 s{T0+4}, s{S_TT1}, 8'); A(f's_add_u32 s{T0+4}, s{T0+4}, {ST1}')
        A(f's_cmp_lt_u32 s{S_M}, 12'); A(f's_cselect_b32 s{T0+4}, s{T0+4}, {OOB}')
        for p in range(4):
            A(f'buffer_load_dwordx2 v[{64+2*p}:{65+2*p}], v56, {WS}, s{T0+4} offen {SC}')
            if p < 3: A(f's_add_u32 s{T0+4}, s{T0+4}, 16384')
    def p3_l2():
        A('v_lshlrev_b32 v56, 2, v42')
        A(f's_lshl_b32 s{T0+4}, s{S_M}, 9'); A(f's_lshl_b32 s{T0+5}, s{S_WAVE}, 7'); A(f's_add_u32 s{T0+4}, s{T0+4}, s{T0+5}'); A(f's_add_u32 s{T0+4}, s{T0+4}, {CS3}')
        A(f'buffer_load_dword v72, v56, {WS}, s{T0+4} offen {SC}')
    def p3_put():
        X = 64
        for t in (f'v_add_f32 v{X}, v{X}, v{X+2}', f'v_add_f32 v{X+1}, v{X+1}, v{X+3}', f'v_add_f32 v{X+4}, v{X+4}, v{X+6}', f'v_add_f32 v{X+5}, v{X+5}, v{X+7}',
                  f'v_add_f32 v{X}, v{X}, v{X+4}', f'v_add_f32 v{X+1}, v{X+1}, v{X+5}', f'v_mov_b32 v{X+2}, v{X}', f'v_mov_b32 v{X+3}, v{X+1}',
                  f'v_permlane32_swap_b32 v{X}, v{X+2}', f'v_permlane32_swap_b32 v{X+1}, v{X+3}', f'v_add_f32 v{X}, v{X}, v{X+2}', f'v_add_f32 v{X+1}, v{X+1}, v{X+3}',
                  f'v_mul_f32 v{X}, {f2u(1.0/640)}, v{X}', f'v_mul_f32 v{X+1}, {f2u(1.0/640)}, v{X+1}',
                  f'v_fma_f32 v{X+1}, -v{X}, v{X}, v{X+1}', f'v_max_f32 v{X+1}, 0, v{X+1}', f'v_add_f32 v{X+1}, {f2u(EPS)}, v{X+1}', f'v_rsq_f32 v61, v{X+1}'): A(t)
        neg_mean_frag(A, 58, X, 56)
        A(f's_mul_i32 s{T0}, s{S_WAVE}, 384'); A(f's_add_u32 s{T0}, s{T0}, {STA}')
        A(f'v_lshl_add_u32 v56, v0, 2, s{T0}'); A('ds_write_b32 v56, v58')
        A(f'v_lshl_add_u32 v56, v42, 2, s{T0}'); A('ds_write_b32 v56, v61 offset:256')
        split_hilo(A, 58, 72, 57)
        A(f's_lshl_b32 s{T0}, s{S_WAVE}, 7'); A(f's_add_u32 s{T0}, s{T0}, {EXT}')
        A(f'v_lshl_add_u32 v56, v42, 2, s{T0}'); A('ds_write_b32 v56, v58')
    def w4_setup():
        A(f's_mul_i32 s{T0}, s{S_C2}, 48'); A(f's_mul_i32 s{T0+1}, s{S_KW}, 24'); A(f's_add_u32 s{T0}, s{T0}, s{T0+1}'); A(f's_add_u32 s{T0}, s{T0}, s{S_MW}')
        A(f's_mul_i32 s{T0}, s{T0}, 5120'); A(f's_add_u32 s{T0}, s{T0}, {W4F}')
        A(f's_mov_b32 s{S_AEND}, s{T0}')
    def s_dma():
        ok = newl('sk')
        A(f'v_cmp_ne_u32 vcc, v48, v{V_EP}')
        A.lines.append(f'    s_cbranch_vccz {ok}')
        sv = A.save(); flush_keep = list(pend)
        if pend:
            A.wait_tag(pend[-1]); pw_write(A, C_LP, LP[pend[-1]])
        wait_local(A, PH3, 0xf000); A.restore(sv)
        A.label(ok)
        A('v_lshrrev_b32 v56, 4, v0'); A('v_lshlrev_b32 v56, 9, v56'); A('v_and_b32 v57, 15, v0'); A('v_lshl_add_u32 v56, v57, 4, v56')
        A(f's_lshl_b32 s{T0}, s{S_KW}, 8'); A(f's_add_u32 s{T0}, s{T0}, s{S_TILE2}'); A(f's_add_u32 s{T0}, s{T0}, {SS}')
        for n in range(3):
            A(f's_add_u32 m0, s{S_G1}, {n*1024}')
            if n == 2: A('s_mov_b64 exec, 0xffffffff')
            A(f'buffer_load_dwordx4 v56, {WS}, s{T0} offen {SC} lds')
            if n < 2: A(f's_add_u32 s{T0}, s{T0}, 2048')
        A('s_mov_b64 exec, -1')
    pend = []
    def flush_pend(keep=0):
        while len(pend) > keep:
            k = pend.pop(0)
            if len(pend) > keep: continue
            A.wait_tag(k); pw_write(A, C_LP, LP[k])
    def wait_free(k):
        nf = needfree(k)
        if not nf: return
        bs = None
        if pend:
            last = max([j for j, (t, _) in enumerate(A.vm) if t == pend[-1]], default=None)
            yv = 63 if last is None else len(A.vm) - 1 - last
            bs = [f's_waitcnt vmcnt({yv})', f'v_mov_b32 v9, {LP[pend[-1]]}', f'ds_write_b32 v{V_MY}, v9 offset:{C_LP}']
        pw_read(A, C_CP); pw_check(A, C_CP, nf, before_spin=bs, sleep=env('LSLEEP', 2))
    def woff(k):
        n, i = k
        rot_, cnt, step, base = {'W3': (S_ROT3, 10, f's{S_RSTEP}', S_RTOT), 'W4': (S_ROT4, 12, 10240, S_AEND)}[n]
        A(f's_add_u32 s{S_RW}, s{rot_}, {i}'); A(f's_cmp_ge_u32 s{S_RW}, {cnt}'); A(f's_cselect_b32 s{T0}, {cnt}, 0'); A(f's_sub_u32 s{S_RW}, s{S_RW}, s{T0}')
        A(f's_mul_i32 s{S_RW}, s{S_RW}, {step}'); A(f's_add_u32 s{S_RW}, s{S_RW}, s{base}')
        if n == 'W4': A(f's_add_u32 s{T0}, s{S_RW}, 1024')
    def slot_of(k): return {'W2': W2S, 'W3': W3S, 'W4': W4S}[k[0]][k[1]]
    def dma(k, mid=None):
        n, i = k
        wait_free(k)
        if mid: mid()
        if n == 'P1':
            A(f'v_readlane_b32 s{T0}, v38, {i}'); A(f's_mul_i32 s{S_RW}, s{T0}, s{S_RSTEP}'); A(f's_add_u32 s{S_RW}, s{S_RW}, s{S_RTOT}'); A(f's_lshl_b32 s{S_AO}, s{T0}, 7')
            raw(i % 4, VW, k)
            if i == 0: A.barrier()
            A(f's_add_u32 m0, s{S_LX}, {XR + (i % 4) * 16384}')
            for j in range(4):
                A(f'buffer_load_dwordx4 v{VX+j}, {XS}, s{S_AO} offen offset:{j*1024} lds', tag=k)
            advance(A, S_AO, 128, S_AEND, S_ATOT)
            if i in (0, 2, 4, 6): stamp(A, 12 + i // 2)
        elif n == 'W2': raw(W2S[i], 200, k)
        elif n == 'W3':
            woff(k)
            for j in range(5):
                if j in (0, 4): A(f's_add_u32 m0, s{S_LW}, {W3S[i] * SLOT + (1024 if j == 4 else 0)}')
                A(f'buffer_load_dwordx4 v{VW+j}, {WSRD}, s{S_RW} offen offset:{min(j,3)*1024} lds', tag=k)
        else:
            woff(k)
            A(f's_add_u32 m0, s{S_LW}, {W4S[i] * SLOT}')
            for j in range(4): A(f'buffer_load_dwordx4 v{V_L16}, {WS}, s{S_RW} offen offset:{j*1024} {SC} lds', tag=k)
            A(f's_add_u32 m0, s{S_LW}, {W4S[i] * SLOT + 1024}')
            A(f'buffer_load_dwordx4 v{V_L16}, {WS}, s{T0} offen offset:3072 {SC} lds', tag=k)
        pend.append(k)
        flush_pend(1)
    freeb = [136 + 20 * j for j in range(6)]
    held = {}
    THIN = env('THIN', 0)
    def rload(k, thin=False):
        r = freeb.pop(0); held[k] = r
        woff(k)
        for j in range(5):
            if k[0] == 'W3': A(f'buffer_load_dwordx4 v[{r+4*j}:{r+4*j+3}], v{VW+j}, {WSRD}, s{S_RW} offen', tag=('Wr', k))
            else: A(f'buffer_load_dwordx4 v[{r+4*j}:{r+4*j+3}], v{V_L16}, {WS}, s{S_RW if j<4 else T0} offen offset:{(j if j<4 else 3)*1024} {SC}', tag=('Wr', k))
            if thin and THIN: A.waitcnt(vm=THIN)
        flush_pend(0)
    def rput(k):
        flush_pend(0)
        wait_free(k)
        r = held.pop(k); freeb.append(r)
        A(f's_add_u32 s{T0}, s{S_LW}, {slot_of(k) * SLOT}'); A(f'v_add_u32 v60, s{T0}, v{V_L16}')
        for j in range(5): A(f'ds_write_b128 v60, v[{r+4*j}:{r+4*j+3}] offset:{1024*j}')
        pw_write(A, C_LP, LP[k])
        A.waitcnt(lg=0)
    P1 = lambda i: ('P1', i); W2 = lambda i: ('W2', i); W3 = lambda i: ('W3', i); W4 = lambda i: ('W4', i)
    def mark(k):
        flush_pend(0); pw_write(A, C_LP, LP[k])
    gate = lambda c: wait_free(('GATE', c))
    dma(P1(0)); late_setup()
    LNP, PBP = env('LNP', 3), env('PBP', 5)
    for i in range(1, 9):
        dma(P1(i), mid=xt_dma if i == env('XTP', 4) else None)
        if i == LNP: gate(('LN', 0)); ln_store()
        if i == PBP: pub(PH0, False)
    dma(P1(9), mid=lambda: flag_issue(PH0, 48)); g0_eval(); st_load()
    stamp(A, 2); w2_setup(); side_load()
    flush_pend(0); st_put(); mark(('ST', 0))
    for i in range(5): dma(W2(i))
    stamp(A, 3); w3_setup(); w4_setup(); side_do(); stamp(A, 4)
    G1 = env('G1', 2)
    if G1 == 1: gate(('E1', 1))
    if G1 >= 2: gate(('W2', G1 - 2))
    dma(W3(0)); dma(W3(1))
    publish(A, PHR, 4, fast=False, tag='none'); pubn[4] += 1
    OP = env('OPOS', 2)
    for i in range(2, 7):
        if i == OP: dma(W3(i), mid=f1_issue); o_load(0)
        else: dma(W3(i))
        if i == OP + 1: o_do()
        if i == OP + 2: pub(PH2O, True); stamp(A, 6)
    stamp(A, 5)
    dma(W3(7), mid=lambda: (flag_issue(PHR, 48), p3_l1())); flag_eval(PHR, 48)
    dma(W3(8), mid=p3_l2)
    dma(W3(9)); p3_put(); mark(('ST', 1)); stamp(A, 7)
    def s_flag():
        A('v_lshlrev_b32 v49, 2, v0'); A('v_and_b32 v49, 12, v49'); A('v_add_u32 v49, 48, v49')
        A(f's_lshl_b32 s{T0+5}, s{S_RG}, 9'); A(f's_add_u32 s{T0+5}, s{T0+5}, {FAST + PH3*64}')
        A(f'buffer_load_dword v48, v49, {WS}, s{T0+5} offen sc1')
    for i in range(12):
        if i == SPOS - 1: dma(W4(i), mid=s_flag)
        elif i == SPOS: dma(W4(i), mid=s_dma)
        else: dma(W4(i))
        if i == 6: stamp(A, 9)
    A.vm.append(('x', set())); A.waitcnt(vm=0); pend.clear(); pw_write(A, C_LP, LP[('S', 0)])
    stamp_out(A)
    A('s_endpgm')

def spread(slots_after, ops):
    out = [[] for _ in slots_after]; i = 0
    for g, cap in enumerate(slots_after):
        while cap > 0 and i < len(ops): out[g].append(ops[i]); i += 1; cap -= 1
    assert i == len(ops), (len(ops), slots_after)
    return out

def mainloop(A, nsteps, spc, mfmas, reads, item, aload, hooks, caps, st0, cached=False, rel=None, waits=None):
    nch = nsteps // spc
    if cached:
        A(f's_mov_b32 s{S_LPC}, 0'); lp_cached(A, LP[item(0)])
    else:
        pw_read(A, C_LP); pw_check(A, C_LP, LP[item(0)], sleep=0)
    stamp(A, st0); A.inloop = True
    for r in reads(0): A(r, tag=('r', 0))
    for s in range(nsteps):
        c, p = divmod(s, spc)
        ops = []
        EX = os.environ.get('EXP', '')
        if p == spc - 1 and c + 1 < nch and 'nochk' not in EX:
            if cached: ops.append(lambda c=c: lp_cached(A, LP[item(c + 1)]))
            else: ops.append(lambda c=c: pw_check(A, C_LP, LP[item(c + 1)], sleep=0, pre=bool(env('SPLITCHK', 1))))
        if not cached and (p + 2) % spc == 0 and c + 1 < nch and 'nord' not in EX: ops.append(lambda: pw_read(A, C_LP))
        if p == 0 and c > 0 and (rel is None or c - 1 in rel) and 'norel' not in EX: ops.append(lambda c=c: pw_write(A, C_CP, CP[item(c - 1)]))
        if s + 1 < nsteps: ops += [lambda r=r, s=s: A(r, tag=('r', s + 1)) for r in reads(s + 1)]
        al = aload(c)
        per = (len(al) + spc - 1) // spc
        ops += al[p * per:(p + 1) * per]
        ops += hooks.get(s, [])
        if not cached and env('SPLITCHK', 1) and (p + 2) % spc == 0 and c + 1 < nch: ops.append(lambda c=c: pw_cmp(A, LP[item(c + 1)]))
        ms = mfmas(s)
        cp = list(caps)
        while sum(cp) < len(ops): cp = [x + 1 for x in cp]
        sp = spread(cp, ops)
        for g, m in enumerate(ms):
            if waits is not None and g == waits and s > 0: A.wait_lds_tag(('r', s))
            for x in m: A(x)
            for o in sp[g]: o()
    if rel is None or nch - 1 in rel: pw_write(A, C_CP, CP[item(nch - 1)])
    stamp(A, st0 + 1); A.inloop = False

def compute(A):
    G.PR = 144
    D1, D2 = env('D1', 2), env('D2', 2)
    A('s_getpc_b64 s[4:5]'); A.label('L_pc')
    A(f's_sub_u32 s4, s4, L_pc-{KN}'); A('s_subb_u32 s5, s5, 0')
    A('s_lshr_b32 s6, s2, 3'); A('s_lshl_b32 s6, s6, 11')
    A('v_and_b32 v1, 15, v0'); A('v_lshl_add_u32 v1, v1, 7, s6'); A(f'v_min_u32 v1, L_end-{KN}, v1')
    A('global_load_dword v2, v1, s[4:5]')
    A.vm = [('pf', set())]
    A('v_mov_b32 v9, 0'); A('v_lshlrev_b32 v1, 2, v0'); A(f'v_add_u32 v1, {CTRL}, v1')
    A(f's_cmp_lg_u32 s{S_W8}, 0'); A('s_cbranch_scc1 L_noinit')
    A('s_mov_b64 exec, 0xffffffff'); A('ds_write_b32 v1, v9'); A('s_mov_b64 exec, -1')
    A.label('L_noinit')
    A('v_lshrrev_b32 v40, 5, v0'); A(f's_lshl_b32 s{T0}, s{S_WAVE}, 1'); A(f'v_add_u32 v41, s{T0}, v40'); A('v_and_b32 v42, 31, v0')
    A('v_mul_u32_u24 v43, 1280, v41'); A('v_lshl_add_u32 v43, v42, 4, v43')
    A('v_cmp_gt_u32 vcc, 16, v42'); A(f'v_cndmask_b32 v44, v{VOOB}, v43, vcc')
    A(f's_mul_i32 s{T0+8}, s{S_Q}, 10240')
    A.lines.append('    s_waitcnt lgkmcnt(0)'); A.lg = []; A.smem = False
    stamp(A, 1)
    srd(A, SRD_X, S_X, 2048 * 1280)
    A(f'buffer_load_dwordx4 v[16:19], v43, {XS}, s{T0+8} offen')
    A(f'buffer_load_dwordx4 v[20:23], v43, {XS}, s{T0+8} offen offset:512')
    A(f'buffer_load_dwordx4 v[24:27], v44, {XS}, s{T0+8} offen offset:1024')
    A.barrier()
    A(f's_mov_b32 s{S_FASTOK}, {env("FASTOK", 1)}')
    ids_p1(A); ids_late(A)
    A(f's_mul_i32 s{T0+3}, s{S_WAVE}, 2560'); A(f's_add_u32 s{T0+3}, s{T0+3}, {XT}')
    for n in range(3):
        A(f'v_add_u32 v56, {64*n}, v0'); div_magic(A, 57, 58, 56, 10, 59)
        A('v_mul_u32_u24 v59, 1280, v57'); A(f'v_lshl_add_u32 v{VROW+n}, v58, 4, v59')
    A('v_cmp_gt_u32 s[6:7], 32, v0'); A(f'v_cndmask_b32 v{VROW+2}, v{VOOB}, v{VROW+2}, s[6:7]')
    A(f'v_add_u32 v{VXT}, s{T0+3}, v{V_L16}')
    A('v_and_b32 v57, 15, v0'); A('v_mul_u32_u24 v57, 160, v57'); A('v_lshrrev_b32 v56, 4, v0'); A('v_lshl_add_u32 v57, v56, 3, v57'); A(f'v_add_u32 v{VXT+3}, s{T0+3}, v57')
    A(f'v_lshl_add_u32 v{VXT+4}, v40, 4, v{VXT+3}')
    A('v_lshlrev_b32 v56, 4, v42'); A('v_lshl_add_u32 v56, v40, 3, v56'); A(f'v_add_u32 v{VXT+1}, s{T0+3}, v56')
    A(f's_mul_i32 s{T0}, s{S_WAVE}, 384'); A(f's_add_u32 s{T0}, s{T0}, {STA}')
    A(f'v_lshl_add_u32 v{VXT+2}, v0, 2, s{T0}'); A(f'v_lshl_add_u32 v{VXT+5}, v42, 2, s{T0}')
    A(f's_lshl_b32 s{T0}, s{S_WAVE}, 7'); A(f's_add_u32 s{T0}, s{T0}, {STB}'); A('v_and_b32 v57, 15, v0'); A(f'v_lshl_add_u32 v{VXT+6}, v57, 3, s{T0}')
    A(f's_lshl_b32 s{S_ROWS2}, s{S_TT2}, 1'); A(f's_add_u32 s{S_ROWS2}, s{S_ROWS2}, s{S_KW}')
    A(f's_mul_i32 s{S_ROWS2}, s{S_ROWS2}, {16*1280}'); A(f's_mul_i32 s{T0}, s{S_C2}, 160'); A(f's_add_u32 s{S_ROWS2}, s{S_ROWS2}, s{T0}')
    A(f's_mul_i32 s{S_G1}, s{S_TT1}, 40960')
    srd(A, SRD_WS, S_WS, WS_SIZE); srd(A, SRD_OUT, S_OUT, 2048 * 1280)
    A('v_bfe_u32 v56, v0, 2, 2'); A('v_lshl_add_u32 v58, v40, 3, v56'); A('v_mul_u32_u24 v58, 320, v58')
    A('v_bfe_u32 v57, v0, 4, 1'); A('v_lshl_add_u32 v58, v57, 5, v58'); A('v_and_b32 v57, 3, v0'); A('v_lshl_add_u32 v58, v57, 3, v58')
    A('v_bfe_u32 v59, v0, 1, 3'); A('v_xor_b32 v59, v59, v40')
    A(f's_lshl_b32 s{T0}, s{S_WAVE}, 12'); A(f's_add_u32 s{T0}, s{T0}, {XR}'); A('v_lshlrev_b32 v60, 7, v42'); A(f'v_add_u32 v60, s{T0}, v60')
    for p in range(4):
        A(f's_add_u32 s{T0}, s{S_WAVE}, {p}'); A(f's_and_b32 s{T0}, s{T0}, 3'); A(f's_mul_i32 s{T0+1}, s{T0}, 5120'); A(f's_lshl_b32 s{T0}, s{T0}, 1')
        A(f'v_add_u32 v{VRD+2*p}, s{T0+1}, v58'); A(f'v_add_u32 v{VRD+2*p+1}, {3*SLOT}, v{VRD+2*p}')
        A(f'v_xor_b32 v61, s{T0}, v59'); A(f'v_lshl_add_u32 v{VRD+8+p}, v61, 4, v60')
    SEL, CSA, XF = RING, RING + 4, RING + 24
    A('v_bfe_u32 v56, v0, 2, 1'); A('v_bfe_u32 v57, v0, 4, 1'); A('v_cmp_eq_u32 s[6:7], v56, v57'); A('v_mov_b32 v56, 0x3f803f80')
    for i in range(4): A(f'v_cndmask_b32 v{SEL+i}, 0, v56, s[6:7]')
    A('v_lshrrev_b32 v56, 4, v0'); A('v_lshlrev_b32 v56, 9, v56')
    A('v_and_b32 v57, 15, v0'); A('v_lshlrev_b32 v57, 4, v57')
    A(f's_lshl_b32 s{T0}, s{S_KW}, 8'); A(f'v_add_u32 v57, s{T0}, v57')
    A(f'v_add_u32 v{VA}, v56, v57'); A(f'v_xor_b32 v{VA+1}, 256, v{VA}')
    A('v_and_b32 v56, 512, v56'); A('v_add_u32 v57, v56, v57'); A(f'v_lshl_add_u32 v{VA+2}, v40, 3, v57')
    A('s_setprio 2')
    stamp(A, 2)
    F = 64
    unpack(A, F, 16, 12)
    A(f'v_pk_add_f32 v[56:57], v[{F}:{F+1}], v[{F+2}:{F+3}]')
    for i in range(2, 12): A(f'v_pk_add_f32 v[56:57], v[56:57], v[{F+2*i}:{F+1+2*i}]')
    A('v_add_f32 v56, v56, v57')
    allreduce32(A, 56, 57)
    A(f'v_mul_f32 v60, {f2u(1.0/640)}, v56')
    A('v_cndmask_b32 v58, 0, v60, vcc')
    for i in range(12):
        m = 60 if i < 8 else 58
        A(f'v_pk_add_f32 v[{F+2*i}:{F+1+2*i}], v[{F+2*i}:{F+1+2*i}], v[{m}:{m+1}] op_sel_hi:[1,0] neg_lo:[0,1] neg_hi:[0,1]')
    A(f'v_pk_mul_f32 v[56:57], v[{F}:{F+1}], v[{F}:{F+1}]')
    for i in range(1, 12): A(f'v_pk_fma_f32 v[56:57], v[{F+2*i}:{F+1+2*i}], v[{F+2*i}:{F+1+2*i}], v[56:57]')
    A('v_add_f32 v56, v56, v57')
    allreduce32(A, 56, 57)
    A(f'v_mul_f32 v56, {f2u(1.0/640)}, v56'); A(f'v_add_f32 v56, {f2u(EPS)}, v56'); A('v_rsq_f32 v61, v56')
    A(f's_lshl_b32 s{T0}, s{S_WAVE}, 7'); A(f's_add_u32 s{T0}, s{T0}, {STB}'); A(f'v_lshl_add_u32 v56, v40, 3, s{T0}')
    A('ds_write_b64 v56, v[60:61]')
    pw_write(A, C_CP, CP[('LN', 0)])
    stamp(A, 3)
    TP = [[0, 4], [1], [2], [3]]
    def reads1(s):
        c, p = divmod(s, 4); slot = c % 4
        r = [f'ds_read_b128 v[{XF+4*(s%2)}:{XF+4*(s%2)+3}], v{VRD+8+p} offset:{(c % 4) * 16384}']
        for t in range(5):
            b = WF + (s % 2) * 20 + 4 * t; off = (slot % 3) * SLOT + t * 64
            r.append(f'ds_read_b64_tr_b16 v[{b}:{b+1}], v{VRD + 2*p + slot // 3} offset:{off}')
            r.append(f'ds_read_b64_tr_b16 v[{b+2}:{b+3}], v{VRD + 2*p + slot // 3} offset:{off + 4 * 320}')
        return r
    def mf1(s):
        c, p = divmod(s, 4); xb = XF + 4 * (s % 2); out = []
        for t in range(5):
            b = WF + (s % 2) * 20 + 4 * t
            cc = '0' if s == 0 else f'v[{ACC+16*t}:{ACC+16*t+15}]'
            g = []
            if t in TP[p] and (c == 0 or not env('NOCS', 0)):
                c2 = '0' if c == 0 else f'v[{CSA+4*t}:{CSA+4*t+3}]'
                g.append(f'v_mfma_f32_16x16x32_bf16 v[{CSA+4*t}:{CSA+4*t+3}], v[{SEL}:{SEL+3}], v[{b}:{b+3}], {c2}')
            g.append(f'v_mfma_f32_32x32x16_bf16 v[{ACC+16*t}:{ACC+16*t+15}], v[{b}:{b+3}], v[{xb}:{xb+3}], {cc}')
            out.append(g)
        return out
    def xt_read1():
        for n in range(3): A(f'ds_read_b128 v[{KX+4*n}:{KX+3+4*n}], v{VXT} offset:{1024*n}')
    def xt_read2(fs):
        for f in fs:
            base, off = (VXT + 4, 64 * (f // 2) + 16 * (f % 2)) if f < 4 else (VXT + 3, 128)
            A(f'ds_read_b64 v[{KX1+2*f}:{KX1+1+2*f}], v{base} offset:{off}')
    def ext_prep():
        A(f'v_and_b32 v57, 31, v0'); A('v_lshlrev_b32 v57, 4, v57'); A(f'v_add_u32 v57, {EXT}, v57')
        A(f's_lshl_b32 s{T0}, s{S_WAVE}, 2'); A(f'v_add_u32 v58, s{T0}, v57')
    MF = RING + 32
    def st_read():
        A(f'ds_read_b32 v{MF}, v{VXT+2}'); A(f'ds_read_b32 v60, v{VXT+5} offset:256')
    def st_read2():
        A(f'ds_read_b64 v[{KST}:{KST+1}], v{VXT+6}'); A(f'ds_read_b32 v{V_EP}, v{V_CT} offset:72')
    def ext_prep3():
        for i in range(1, 4): A(f'v_mov_b32 v{MF+i}, v{MF}')
    hooks = {21: [xt_read1], 25: [lambda: xt_read2((0, 1, 2))], 29: [lambda: xt_read2((3, 4))], 33: [ext_prep], 38: [lambda: pw_read(A, C_LP)], 39: [lambda: pw_check(A, C_LP, LP[('ST', 0)], sleep=0), st_read, st_read2]}
    if STAMP:
        for st_, sid in ((8, 4), (16, 16), (24, 26), (32, 27)): hooks.setdefault(st_, []).append(lambda sid=sid: stamp(A, sid))
    mainloop(A, 40, 4, mf1, reads1, lambda c: ('P1', c), lambda c: [], hooks, eval(os.environ.get('CAPS1', '[3, 3, 3, 2, 2]')), 7)
    for t in (0, 4, 1, 2, 3):
        split_hilo(A, 20 + t, CSA + 4 * t, 56)
        A(f'ds_write_b32 v58, v{20+t} offset:{512*t}')
    ext_prep3()
    gbar(A, C_CB)
    for t in range(5): A(f'ds_read_b128 v[{28+4*t}:{31+4*t}], v57 offset:{512*t}')
    for t in range(5):
        A(f'v_mfma_f32_32x32x16_bf16 v[{ACC+16*t}:{ACC+16*t+15}], v[{28+4*t}:{31+4*t}], v[{MF}:{MF+3}], v[{ACC+16*t}:{ACC+16*t+15}]')
    T = RING
    SO = T0 + 9
    def store_tiles(nt, fn):
        for t in range(nt):
            fn(t)
            d = 24 + 8 * (t % 2)
            pack(A, d, ACC + 16 * t, 16)
            if t in (2, 4): A(f's_add_u32 s{SO}, s{SO}, 4096')
            for hh in range(2):
                A(f'buffer_store_dwordx4 v[{d+4*hh}:{d+4*hh+3}], v{V_L16}, {WS}, s{SO} offen offset:{((2*t+hh)%4)*1024} {SC}')
    A(f's_cmp_lt_u32 s{S_M}, 12'); A('s_cbranch_scc1 L_p1_qkv')
    st = A.save(); gsave = dict(gen)
    pw_write(A, C_CP, CP[('E1', 0)])
    A('v_mul_f32 v56, v60, v60'); A(f'v_mov_b32 v57, {f2u(1.0+EPS)}'); A(f'v_fmac_f32 v57, {f2u(-EPS)}, v56'); A('v_rsq_f32 v57, v57'); A('v_mul_f32 v60, v60, v57')
    gelu_consts(A, 60)
    A(f's_sub_u32 s{SO}, s{S_M}, 12'); A(f's_mul_i32 s{SO}, s{SO}, 10240'); A(f's_add_u32 s{SO}, s{SO}, s{S_G1}'); A(f's_add_u32 s{SO}, s{SO}, {HS}')
    store_tiles(5, lambda t: gelu_pk(A, ACC + 16 * t, 16, 56, 58, 62, T))
    A('s_branch L_p1_done')
    A.label('L_p1_qkv'); A.restore(st)
    A(f'v_mul_f32 v56, {f2u(LOG2E)}, v60'); A('v_rcp_f32 v58, v60'); A(f'v_mul_f32 v58, {f2u(1e-6)}, v58')
    A(f's_cmp_ge_u32 s{S_J1}, 4'); A('s_cbranch_scc1 L_p1_kv')
    st = A.save()
    pw_write(A, C_CP, CP[('E1', 0)])
    A(f's_mul_i32 s{SO}, s{S_J1}, 10240'); A(f's_mul_i32 s{T0}, s{S_TP1}, 40960'); A(f's_add_u32 s{SO}, s{SO}, s{T0}'); A(f's_add_u32 s{SO}, s{SO}, {PQ}')
    store_tiles(5, lambda t: phi_pk(A, ACC + 16 * t, 16, 56, 58, 60, T))
    A('s_branch L_p1_done')
    A.label('L_p1_kv'); A.restore(st)
    KVB = 4 * SLOT
    A(f's_lshl_b32 s{T0}, s{S_WAVE}, 5'); A('v_and_b32 v62, 31, v0'); A(f'v_add_u32 v62, s{T0}, v62'); A('v_mul_u32_u24 v62, 328, v62'); A(f'v_add_u32 v62, {KVB}, v62')
    A('v_lshrrev_b32 v63, 5, v0'); A('v_lshl_add_u32 v63, v63, 3, v62')
    A(f'v_mov_b32 v{T+40}, 0x3f803f80'); A(f'v_mov_b32 v{T+41}, 0x3f803f80')
    A(f'ds_write_b64 v62, v[{T+40}:{T+41}] offset:320')
    for i in range(40, 80, 2): A(f'v_pk_mul_f32 v[{ACC+i}:{ACC+i+1}], v[{ACC+i}:{ACC+i+1}], v[60:61] op_sel_hi:[1,0]')
    pack(A, 36, ACC + 40, 40)
    for u in range(10, 20): A(f'ds_write_b64 v63, v[{16+2*u}:{17+2*u}] offset:{16*u}')
    for hf in range(2):
        phi_pk(A, ACC + 20 * hf, 20, 56, 58, 60, T)
        pack(A, 16 + 10 * hf, ACC + 20 * hf, 20)
        for u in range(5 * hf, 5 * hf + 5): A(f'ds_write_b64 v63, v[{16+2*u}:{17+2*u}] offset:{16*u}')
    A('v_bfe_u32 v60, v0, 2, 2'); A('v_lshrrev_b32 v61, 5, v0'); A('v_lshl_add_u32 v60, v61, 2, v60'); A('v_mul_u32_u24 v60, 328, v60'); A(f'v_add_u32 v60, {KVB}, v60')
    A('v_bfe_u32 v61, v0, 4, 1'); A('v_and_b32 v58, 3, v0'); A('v_lshl_add_u32 v61, v61, 2, v58')
    A('v_lshlrev_b32 v58, 3, v61')
    A(f'v_add_u32 v59, s{T0}, v58'); A('v_add_u32 v59, v59, v60')
    A(f's_mul_i32 s{T0+1}, s{S_WAVE}, 40'); A(f's_add_u32 s{T0+1}, s{T0+1}, 160'); A(f'v_add_u32 v58, s{T0+1}, v58')
    A('v_cmp_gt_u32 vcc, 5, v61'); A('v_mov_b32 v61, 320'); A('v_cndmask_b32 v58, v61, v58, vcc'); A('v_add_u32 v58, v58, v60')
    gbar(A, C_CB)
    stamp(A, 5)
    for ks in range(8):
        for t in range(2):
            A(f'ds_read_b64_tr_b16 v[{64+8*ks+2*t}:{65+8*ks+2*t}], v59 offset:{(16*ks+8*t)*328}')
            A(f'ds_read_b64_tr_b16 v[{68+8*ks+2*t}:{69+8*ks+2*t}], v58 offset:{(16*ks+8*t)*328}')
    A(f's_lshl_b32 s{T0+8}, s{S_WAVE}, 11'); A(f's_add_u32 s{T0+8}, s{T0+8}, {KVB + 43008}')
    A('v_and_b32 v20, 31, v0'); A('v_lshrrev_b32 v21, 5, v0'); A(f'v_subrev_u32 v21, s{S_WAVE}, v21'); A('v_cmp_gt_u32 s[6:7], 21, v20')
    for j in range(4):
        A(f'v_add_u32 v22, {2*j}, v21'); A('v_cmp_gt_u32 vcc, 5, v22'); A('v_mad_u32_u24 v22, v22, 21, v20'); A(f'v_lshl_add_u32 v22, v22, 4, s{T0+8}')
        A('s_and_b64 vcc, vcc, s[6:7]'); A(f'v_cndmask_b32 v{16+j}, v{VOOB}, v22, vcc')
    A(f'v_lshlrev_b32 v21, 2, v0'); A(f'v_add_u32 v20, s{T0+8}, v21')
    A('v_cmp_gt_u32 vcc, 36, v0'); A(f'v_cndmask_b32 v22, v{VOOB}, v21, vcc')
    for ks in range(8):
        A(f'v_mfma_f32_32x32x16_bf16 v[{T}:{T+15}], v[{64+8*ks}:{67+8*ks}], v[{68+8*ks}:{71+8*ks}], {"0" if ks==0 else f"v[{T}:{T+15}]"}')
    A(f's_sub_u32 s{T0}, s{S_J1}, 4'); A(f's_lshl_b32 s{T0}, s{T0}, 2'); A(f's_add_u32 s{T0}, s{T0}, s{S_WAVE}'); A(f's_lshl_b32 s{T0}, s{T0}, 11'); A(f's_add_u32 s{T0}, s{T0}, {KVS}')
    for j in range(4): A(f'ds_write_b128 v{16+j}, v[{T+4*j}:{T+4*j+3}]')
    for r in range(7): A(f'ds_read_b32 v{T+16+r}, v20 offset:{256*r}')
    for r in range(7): A(f'buffer_atomic_add_f32 v{T+16+r}, v{21 if r < 6 else 22}, {WS}, s{T0} offen offset:{256*r}')
    pw_write(A, C_CP, CP[('E1', 0)])
    A.label('L_p1_done'); A.hist = []; A.nop(2)
    stamp(A, 9)
    A(f's_mul_i32 s{T0}, s{S_KW}, 10240')
    tr160_bases(A, VRD, VRD + 1, T0)
    A(f'v_add_u32 v{VRD+2}, {3*SLOT}, v{VRD}'); A(f'v_add_u32 v{VRD+3}, {3*SLOT}, v{VRD+1}')
    A(f's_mul_i32 s{T0}, s{S_KW}, 20480'); A(f's_mul_i32 s{T0+1}, s{S_TT2}, 40960'); A(f's_add_u32 s{T0}, s{T0}, s{T0+1}'); A(f's_add_u32 s{T0}, s{T0}, {HS}')
    set_stream(A, S_AO, S_AEND, S_ATOT, T0, S_ROT2, 4096, 5)
    unpack(A, ACC, KX1, 10)
    A(f'v_mov_b32 v62, v{KST}'); A(f'v_mov_b32 v60, v{KST+1}')
    for i in range(0, 20, 2): A(f'v_pk_fma_f32 v[{ACC+i}:{ACC+i+1}], v[{ACC+i}:{ACC+i+1}], v[60:61], v[62:63] op_sel_hi:[1,0,0] neg_lo:[0,0,1] neg_hi:[0,0,1]')
    def red_setup(slot):
        A(f's_add_u32 s{T0}, s{S_LW}, {slot*SLOT}')
        A(f's_xor_b32 s{T0+1}, s{S_WAVE}, 2'); A(f's_mul_i32 s{T0+1}, s{T0+1}, 5120'); A(f's_add_u32 s{T0+1}, s{T0+1}, {slot*SLOT}')
        A(f'v_add_u32 v{VRD+8}, s{T0}, v{V_L16}'); A(f'v_add_u32 v{VRD+9}, s{T0+1}, v{V_L16}')
    red_setup(W2S[0])
    A(f'v_lshlrev_b32 v{VRD+10}, 3, v0'); A('v_cmp_gt_u32 vcc, 16, v0'); A(f'v_cndmask_b32 v{VRD+10}, v{VOOB}, v{VRD+10}, vcc')
    publish(A, PH1, 0, defer=False, f1=True); pubn[0] += 1
    pw_write(A, C_CP, CP[('E1', 1)])
    stamp(A, 10)
    wait_local(A, PH1, 0xf000)
    stamp(A, 11)
    def e2(N, slots, name, raw, hooks, st0, rel=None):
        def aops(c):
            def op(st_, u):
                b = RING + 16 * (c % 4) + 8 * st_ + 4 * u
                A(f'buffer_load_dwordx4 v[{b}:{b+3}], v{VA+u}, {WS}, s{S_AO} offen offset:{st_*2048} {SC}', tag=('A', c))
                if st_ == 1 and u == 1: advance(A, S_AO, 4096, S_AEND, S_ATOT)
            return [lambda st_=st_, u=u: op(st_, u) for st_ in range(2) for u in range(2)]
        def reads(S):
            c, st_ = divmod(S, 2); slot = slots[c]; r = []
            for f in range(5):
                b = WF + (S % 2) * 20 + 4 * f
                if raw:
                    base = VRD + 2 * (slot // 3) + (1 if f < 4 else 0)
                    off = (slot % 3) * SLOT + st_ * 5120 + (64 * (f // 2) + 16 * (f % 2) if f < 4 else 128)
                    r.append(f'ds_read_b64_tr_b16 v[{b}:{b+1}], v{base} offset:{off}')
                    r.append(f'ds_read_b64_tr_b16 v[{b+2}:{b+3}], v{base} offset:{off + 8 * 160}')
                else:
                    r.append(f'ds_read_b128 v[{b}:{b+3}], v{VRD + slot // 3} offset:{(slot % 3) * SLOT + st_ * 5120 + f * 1024}')
            return r
        def mf(S):
            c, st_ = divmod(S, 2); out = []
            for u in range(2):
                for f in range(5):
                    b = WF + (S % 2) * 20 + 4 * f; acc = ACC + 20 * u + 4 * f
                    cc = '0' if (S == 0 and u == 1) else f'v[{acc}:{acc+3}]'
                    ab = RING + 16 * (c % 4) + 8 * st_ + 4 * u
                    out.append([f'v_mfma_f32_16x16x32_bf16 v[{acc}:{acc+3}], v[{b}:{b+3}], v[{ab}:{ab+3}], {cc}'])
            return out
        for c in range(D2): run(aops(c))
        caps = [1, 2, 2, 2, 2, 2, 1, 1, 1, 1] if raw else [1] * 10
        mainloop(A, 2 * N, 2, mf, reads, lambda c: (name, c), lambda c: aops(c + D2) if c + D2 < N else [], hooks, caps, st0, cached=True, rel=rel, waits=env('E2WAIT', 1))
    def e2_reduce(t, need):
        pw_read(A, C_CP); pw_check(A, C_CP, need, sleep=0)
        for f in range(5): A(f'ds_write_b128 v{VRD+8}, v[{ACC+20+4*f}:{ACC+23+4*f}] offset:{f*1024}')
        gbar(A, C_CB)
        for f in range(5): A(f'ds_read_b128 v[{t+4*f}:{t+4*f+3}], v{VRD+9} offset:{f*1024}')
        for i in range(0, 20, 2): A(f'v_pk_add_f32 v[{ACC+i}:{ACC+i+1}], v[{ACC+i}:{ACC+i+1}], v[{t+i}:{t+i+1}]')
    e2(5, W2S, 'W2', True, {}, 12)
    e2_reduce(104, CP[('W2', 0)])
    pw_write(A, C_CP, CP[('E2', 0)])
    pack(A, KX1, ACC, 20)
    A(f's_add_u32 s{T0}, s{S_TILE2}, {X1}'); A(f's_add_u32 s{T0+1}, s{T0}, 4096')
    A(f'buffer_store_dwordx4 v[{KX1}:{KX1+3}], v{VA}, {WS}, s{T0} offen {SC}')
    A(f'buffer_store_dwordx4 v[{KX1+4}:{KX1+7}], v{VA}, {WS}, s{T0} offen offset:2048 {SC}')
    A(f'buffer_store_dwordx2 v[{KX1+8}:{KX1+9}], v{VA+2}, {WS}, s{T0+1} offen {SC}')
    A('v_mov_b32 v26, 0x3f803f80'); A('v_mov_b32 v28, 0'); A('v_mov_b32 v29, 0')
    for i in range(10):
        A(f'v_dot2c_f32_bf16 v28, v{KX1+i}, v26'); A(f'v_dot2c_f32_bf16 v29, v{KX1+i}, v{KX1+i}')
    for sw in ('v_permlane16_swap_b32', 'v_permlane32_swap_b32'):
        A('v_mov_b32 v30, v28'); A('v_mov_b32 v31, v29'); A(f'{sw} v28, v30'); A(f'{sw} v29, v31')
        A('v_add_f32 v28, v28, v30'); A('v_add_f32 v29, v29, v31')
    A(f's_lshl_b32 s{T0}, s{S_TT2}, 1'); A(f's_add_u32 s{T0}, s{T0}, s{S_KW}'); A(f's_lshl_b32 s{T0}, s{T0}, 7')
    A(f's_lshl_b32 s{T0+1}, s{S_C2}, 14'); A(f's_add_u32 s{T0}, s{T0}, s{T0+1}'); A(f's_add_u32 s{T0}, s{T0}, {ST1}')
    A(f'buffer_store_dwordx2 v[28:29], v{VRD+10}, {WS}, s{T0} offen {SC}')
    stamp(A, 14)
    A(f's_cmp_ge_u32 s{S_M}, 12'); A(f's_cselect_b32 s{T0}, {(OO-X1) & 0xffffffff}, 0')
    A(f's_add_u32 s{T0}, s{T0}, s{S_G1}'); A(f's_add_u32 s{T0}, s{T0}, {X1}')
    set_stream(A, S_AO, S_AEND, S_ATOT, T0, S_ROT3, 4096, 10)
    def e1_rd_setup(RS, swz):
        A('v_bfe_u32 v56, v0, 2, 2'); A('v_lshrrev_b32 v57, 5, v0'); A('v_lshl_add_u32 v58, v57, 2, v56')
        A(f'v_mul_u32_u24 v58, {RS}, v58')
        A('v_bfe_u32 v57, v0, 4, 1'); A('v_lshl_add_u32 v58, v57, 5, v58')
        A('v_and_b32 v57, 3, v0'); A('v_lshl_add_u32 v58, v57, 3, v58')
        if not swz:
            for g in range(3): A(f'v_add_u32 v{VRD+g}, {g*3*SLOT}, v58')
        else:
            A('v_lshl_add_u32 v58, v56, 6, v58')
            for g in range(3):
                A(f'v_add_u32 v{VRD+4*g}, {g*3*SLOT}, v58')
                for t in range(1, 4): A(f'v_xor_b32 v{VRD+4*g+t}, {64*t}, v{VRD+4*g}')
    def e1(NT, swz, hooks, st0):
        RS = NT * 64
        def aops(c):
            def op(ks):
                b = RING + 16 * (c % 4) + 4 * ks
                A(f'buffer_load_dwordx4 v[{b}:{b+3}], v{V_L16}, {WS}, s{S_AO} offen offset:{ks*1024} {SC}', tag=('A', c))
                if ks == 3: advance(A, S_AO, 4096, S_AEND, S_ATOT)
            return [lambda ks=ks: op(ks) for ks in range(4)]
        def reads(s):
            c, ks = divmod(s, 4); slot = W3S[c]; r = []
            for t in range(NT):
                b = WF + (s % 2) * 20 + 4 * t
                off = (slot % 3) * SLOT + ks * 5120 + (0 if swz else t * 64)
                base = VRD + (slot // 3) * (4 if swz else 1) + (t if swz else 0)
                r.append(f'ds_read_b64_tr_b16 v[{b}:{b+1}], v{base} offset:{off}')
                r.append(f'ds_read_b64_tr_b16 v[{b+2}:{b+3}], v{base} offset:{off + 8 * RS}')
            return r
        def mf(s):
            c, ks = divmod(s, 4); ab = RING + 16 * (c % 4) + 4 * ks; out = []
            for t in range(NT):
                b = WF + (s % 2) * 20 + 4 * t
                cc = '0' if s == 0 else f'v[{ACC+16*t}:{ACC+16*t+15}]'
                out.append([f'v_mfma_f32_32x32x16_bf16 v[{ACC+16*t}:{ACC+16*t+15}], v[{b}:{b+3}], v[{ab}:{ab+3}], {cc}'])
            return out
        for c in range(D1): run(aops(c))
        mainloop(A, 40, 4, mf, reads, lambda c: ('W3', c), lambda c: aops(c + D1) if c + D1 < 10 else [], hooks, [3, 3, 2, 2, 2] if NT == 5 else [3, 3, 2, 2], st0)
    A(f's_cmp_ge_u32 s{S_M}, 12'); A('s_cbranch_scc1 L_p3_s')
    st = A.save()
    e1_rd_setup(256, True)
    publish(A, PH2X, 0, defer=DEFER)
    stamp(A, 15)
    wait_local(A, PH2X, 0xffff, pend=DEFER)
    stamp(A, 17)
    X = 128
    def p3_a():
        A(f'ds_read_b32 v{X}, v{VXT+2}'); A(f'ds_read_b32 v60, v{VXT+5} offset:256')
        A('v_and_b32 v57, 31, v0'); A('v_lshlrev_b32 v57, 2, v57')
    def p3_b():
        for t in range(4): A(f'ds_read_b32 v{X+4+t}, v57 offset:{EXT - 131072 + 128*t}')
    def p3_z():
        for i in range(1, 4): A(f'v_mov_b32 v{X+i}, 0')
    hooks = {30: [p3_z], 36: [lambda: pw_read(A, C_LP)], 37: [lambda: pw_check(A, C_LP, LP[('ST', 1)], sleep=0), p3_a], 38: [lambda: A('v_add_u32 v57, 131072, v57'), p3_b], 39: [lambda: gelu_consts(A, 60)]}
    e1(4, True, hooks, 18)
    for t in range(4):
        A(f'v_mov_b32 v{16+4*t}, v{X+4+t}')
    for t in range(4):
        A(f'v_mfma_f32_32x32x16_bf16 v[{ACC+16*t}:{ACC+16*t+15}], v[{16+4*t}:{19+4*t}], v[{X}:{X+3}], v[{ACC+16*t}:{ACC+16*t+15}]')
    A(f's_mul_i32 s{SO}, s{S_TT1}, {96*1024}'); A(f's_lshl_b32 s{T0+1}, s{S_M}, 13'); A(f's_add_u32 s{SO}, s{SO}, s{T0+1}'); A(f's_add_u32 s{SO}, s{SO}, {H2}')
    store_tiles(4, lambda t: gelu_pk(A, ACC + 16 * t, 16, 56, 58, 62, T))
    A('s_branch L_p3_done')
    A.label('L_p3_s'); A.restore(st)
    e1_rd_setup(320, False)
    publish(A, PH2X, 0, defer=DEFER); pubn[0] += 1
    stamp(A, 15)
    wait_local(A, PH2O, 0xffff, pend=DEFER)
    stamp(A, 17)
    e1(5, False, {}, 18)
    wait_local(A, PH2X, 0xffff)
    A(f's_sub_u32 s{SO}, s{S_M}, 12'); A(f's_mul_i32 s{SO}, s{SO}, 10240'); A(f's_add_u32 s{SO}, s{SO}, s{S_G1}'); A(f's_add_u32 s{SO}, s{SO}, {SS}')
    store_tiles(5, lambda t: None)
    A.label('L_p3_done'); A.hist = []; A.nop(2)
    stamp(A, 20)
    A(f's_mul_i32 s{T0}, s{S_KW}, 10240')
    A(f'v_add_u32 v{VRD}, s{T0}, v{V_L16}'); A(f'v_add_u32 v{VRD+1}, {3*SLOT}, v{VRD}'); A(f'v_add_u32 v{VRD+2}, {6*SLOT}, v{VRD}')
    unpack(A, ACC, KX1, 10)
    unpack(A, 104, KX, 12)
    red_setup(W4S[5])
    A(f's_mul_i32 s{T0}, s{S_TT2}, {96*1024}'); A(f's_mul_i32 s{T0+1}, s{S_KW}, {48*1024}'); A(f's_add_u32 s{T0}, s{T0}, s{T0+1}'); A(f's_add_u32 s{T0}, s{T0}, {H2}')
    set_stream(A, S_AO, S_AEND, S_ATOT, T0, S_ROT4, 4096, 12)
    publish(A, PH3, 0, defer=DEFER); pubn[0] += 1
    stamp(A, 21)
    wait_local(A, PH3, 0x0fff, pend=DEFER)
    stamp(A, 22)
    def s_load():
        lp_cached(A, LP[('S', 0)])
        A(f'ds_read_b128 v[128:131], v{VXT}'); A(f'ds_read_b128 v[132:135], v{VXT} offset:1024'); A(f'ds_read_b64 v[136:137], v{VXT+1} offset:2048')
    e2(12, W4S, 'W4', False, {}, 23, rel=set(range(6)))
    s_load()
    e2_reduce(16, CP[('W4', 5)])
    A(f'v_mov_b32 v56, {f2u(-LOG2E)}')
    TT = 16
    for i in range(0, 20, 2): A(f'v_pk_mul_f32 v[{TT+i}:{TT+i+1}], v[{ACC+i}:{ACC+i+1}], v[56:57] op_sel_hi:[1,0]')
    for i in range(20): A(f'v_exp_f32 v{TT+i}, v{TT+i}')
    for i in range(0, 20, 2): A(f'v_pk_add_f32 v[{TT+i}:{TT+i+1}], v[{TT+i}:{TT+i+1}], 1.0 op_sel_hi:[1,0]')
    for i in range(20): A(f'v_rcp_f32 v{TT+i}, v{TT+i}')
    unpack(A, 84, 128, 10)
    for i in range(0, 20, 2): A(f'v_pk_mul_f32 v[{ACC+i}:{ACC+i+1}], v[{ACC+i}:{ACC+i+1}], v[{TT+i}:{TT+i+1}]')
    for i in range(0, 20, 2): A(f'v_pk_mul_f32 v[{ACC+i}:{ACC+i+1}], v[{ACC+i}:{ACC+i+1}], v[{84+i}:{85+i}]')
    pack(A, 40, ACC, 20)
    for f in range(5):
        base, off = (VXT + 4, 64 * (f // 2) + 16 * (f % 2)) if f < 4 else (VXT + 3, 128)
        A(f'ds_write_b64 v{base}, v[{40+2*f}:{41+2*f}] offset:{off}')
    for n in range(3): A(f'ds_read_b128 v[{16+4*n}:{19+4*n}], v{VXT} offset:{1024*n}')
    for n in range(3):
        unpack(A, 64 + 8 * n, 16 + 4 * n, 4)
        for i in range(4): A(f'v_pk_add_f32 v[{64+8*n+2*i}:{65+8*n+2*i}], v[{64+8*n+2*i}:{65+8*n+2*i}], v[{104+8*n+2*i}:{105+8*n+2*i}]')
        pack(A, 28 + 4 * n, 64 + 8 * n, 8)
        A(f'buffer_store_dwordx4 v[{28+4*n}:{31+4*n}], v{VROW+n}, s[{SRD_OUT}:{SRD_OUT+3}], s{S_ROWS2} offen {os.environ.get("OUTMOD", "")}')
    stamp(A, 25)
    stamp_out(A)
    A('s_endpgm')

def main(out):
    hdr = open('cdna_kernels/' + NAME + '.s.ref').read().split('; Override launch')[0]
    A = Asm()
    common_prologue(A)
    st = A.save()
    loader(A)
    A.restore(st)
    A.label('L_compute')
    compute(A)
    A.lines += OOL
    A.label('L_end'); A('s_endpgm')
    print(A.stats, 'nops', A.nops, file=sys.stderr)
    kd = f""".section .rodata,"a"
.p2align 6
.amdhsa_kernel {KN}
  .amdhsa_next_free_vgpr 256
  .amdhsa_next_free_sgpr 102
  .amdhsa_accum_offset 256
  .amdhsa_group_segment_fixed_size 0
  .amdhsa_kernarg_size 88
  .amdhsa_user_sgpr_count 2
  .amdhsa_user_sgpr_kernarg_segment_ptr 1
  .amdhsa_system_sgpr_workgroup_id_x 1
.end_amdhsa_kernel
"""
    txt = hdr + '; @launch grid=(256,1,1) block=(512,1,1) lds=163840\n.amdgcn_target "amdgcn-amd-amdhsa--gfx950"\n.text\n' + A.text() + kd
    open(out, 'w').write(txt)

if __name__ == '__main__':
    main(sys.argv[1] if len(sys.argv) > 1 else 'cdna_kernels/' + NAME + '.s')
```

```python
import struct, sys, math, os
from asmlib import *

NAME = 'recurrent_scan__linear_attn_block__mixer_s_mlp__prompt'
KN = NAME + '_kernel'
def f2u(x): return '0x%08x' % struct.unpack('<I', struct.pack('<f', x))[0]
def env(n, d): return int(os.environ.get(n, d))
LOG2E = 1.4426950408889634
GC1 = -2.0 * LOG2E * math.sqrt(2.0 / math.pi)
GC2 = GC1 * 0.044715
EPS = 1e-5
PQ, HS, X1, OO, SS, H2, W4F = 0x0, 0x280000, 0x500000, 0x780000, 0xA00000, 0xC80000, 0x1280000
OO, SS = PQ, HS
KVS, CS3 = 0x1480000, 0x14A0000
ST0, ST1 = 0x14C0000, 0x14D0000
FAST, SLOW, GEN = 0x1500000, 0x1510000, 0x1520000
F1 = SLOW + 0x2000
STAMP_BASE = 0x1900000
WS_SIZE = 0x2000000
OOB = 0x40000000
PH0, PHR, PH1, PH2X, PH2O, PH3 = range(6)
STAMP = env('STAMP', 0)
SC = 'sc1'
DEFER = bool(env('DEFER', 1))
S_X, S_WQKV, S_WO, S_W1, S_W2, S_W3, S_W4, S_OUT, S_WS = 16, 18, 20, 24, 26, 28, 30, 32, 36
SRD_WS, SRD_W, SRD_X, SRD_OUT = 40, 44, 48, 52
S_WAVE, S_RG, S_M, S_W8, S_FASTOK, S_Q = 60, 61, 62, 63, 64, 65
S_LW = 66
S_RW, S_RSTEP, S_REND, S_RTOT = 67, 68, 69, 70
S_FLF, S_FLS = 71, 72
S_AO, S_AEND, S_ATOT = 74, 75, 76
S_KW, S_MW, S_TT1, S_TT2, S_C2 = 77, 78, 79, 80, 81
T0 = 82
S_ROT1, S_ROT2, S_ROT4 = 12, 13, 14
S_TILE2, S_ROWS2, S_G1, S_TOK = 38, 15, 39, 3
S_J1, S_TP1, S_ROT3, S_LX, S_LPC = 73, 58, 57, 59, 56
WS = f's[{SRD_WS}:{SRD_WS+3}]'
XS = f's[{SRD_X}:{SRD_X+3}]'
WSRD = f's[{SRD_W}:{SRD_W+3}]'
SLOT = 20480
XR = 4 * SLOT
CTRL = 163840 - 15360
C_LP, C_CP, C_CB, C_LB, C_PUB = 0, 16, 32, 48, 64
EXT, STA, STB, XT = CTRL + 128, CTRL + 2688, CTRL + 4224, CTRL + 4736
V_L16, VOOB, V_EP, V_MY, V_CT = 4, 5, 6, 7, 8
VA, VROW, WF, ACC, PR, VRD, KX, KX1, KST, RING, VXT = 10, 13, 16, 64, 144, 148, 160, 172, 182, 184, 248

def stamp(A, i):
    if not STAMP: return
    A.lines.append('    s_memrealtime s[8:9]' if env('RT', 0) else '    s_memtime s[8:9]')
    A.lines.append('    s_waitcnt lgkmcnt(0)'); A.lg = []
    A.lines.append(f'    v_writelane_b32 v3, s8, {i}')
def stamp_out(A):
    if not STAMP: return
    L = A.lines.append
    L('    s_waitcnt vmcnt(0)')
    stamp(A, 29)
    L('    s_memrealtime s[8:9]'); L('    s_waitcnt lgkmcnt(0)')
    L('    v_writelane_b32 v3, s8, 31'); L('    v_writelane_b32 v3, s10, 30'); L(f'    v_writelane_b32 v3, s{S_J1}, 28')
    L(f'    s_lshl_b32 s8, s{S_Q}, 3'); L(f'    s_add_u32 s8, s8, s{S_W8}'); L('    s_lshl_b32 s8, s8, 7')
    L(f'    s_add_u32 s8, s8, {STAMP_BASE}')
    L('    v_lshlrev_b32 v1, 2, v0'); L('    v_cmp_gt_u32 vcc, 32, v0'); L('    s_and_saveexec_b64 s[6:7], vcc')
    L(f'    buffer_store_dword v3, v1, {WS}, s8 offen')

def srd(A, d, base, size):
    A(f's_mov_b32 s{d}, s{base}'); A(f's_mov_b32 s{d+1}, s{base+1}')
    A(f's_mov_b32 s{d+2}, {size}'); A(f's_mov_b32 s{d+3}, 0x20000')
def allreduce32(A, v, t):
    A(f'v_add_f32_dpp v{v}, v{v}, v{v} quad_perm:[1,0,3,2] row_mask:0xf bank_mask:0xf')
    A(f'v_add_f32_dpp v{v}, v{v}, v{v} quad_perm:[2,3,0,1] row_mask:0xf bank_mask:0xf')
    A(f'v_add_f32_dpp v{v}, v{v}, v{v} row_half_mirror row_mask:0xf bank_mask:0xf')
    A(f'v_add_f32_dpp v{v}, v{v}, v{v} row_mirror row_mask:0xf bank_mask:0xf')
    A(f'v_mov_b32 v{t}, v{v}'); A(f'v_permlane16_swap_b32 v{v}, v{t}'); A(f'v_add_f32 v{v}, v{v}, v{t}')
def gelu_pk(A, y, n, c1, c2, ir, t):
    for i in range(0, n, 2): A(f'v_pk_mul_f32 v[{t+i}:{t+i+1}], v[{y+i}:{y+i+1}], v[{y+i}:{y+i+1}]')
    for i in range(0, n, 2): A(f'v_pk_fma_f32 v[{t+i}:{t+i+1}], v[{t+i}:{t+i+1}], v[{c2}:{c2+1}], v[{c1}:{c1+1}] op_sel_hi:[1,0,0]')
    for i in range(0, n, 2): A(f'v_pk_mul_f32 v[{t+i}:{t+i+1}], v[{t+i}:{t+i+1}], v[{y+i}:{y+i+1}]')
    for i in range(n): A(f'v_exp_f32 v{t+i}, v{t+i}')
    for i in range(0, n, 2): A(f'v_pk_fma_f32 v[{t+i}:{t+i+1}], v[{t+i}:{t+i+1}], v[{ir}:{ir+1}], v[{ir}:{ir+1}] op_sel_hi:[1,0,0]')
    for i in range(n): A(f'v_rcp_f32 v{t+i}, v{t+i}')
    for i in range(0, n, 2): A(f'v_pk_mul_f32 v[{y+i}:{y+i+1}], v[{y+i}:{y+i+1}], v[{t+i}:{t+i+1}]')
def gelu_consts(A, r):
    A(f'v_mul_f32 v58, v{r}, v{r}'); A(f'v_mul_f32 v58, v58, v{r}'); A(f'v_mul_f32 v58, {f2u(GC2)}, v58')
    A(f'v_rcp_f32 v62, v{r}'); A(f'v_mul_f32 v56, {f2u(GC1)}, v{r}')
def phi_pk(A, y, n, rl, dl, r, t):
    for i in range(0, n, 2): A(f'v_pk_mul_f32 v[{t+i}:{t+i+1}], v[{y+i}:{y+i+1}], v[{rl}:{rl+1}] op_sel_hi:[1,0]')
    for i in range(n): A(f'v_exp_f32_e64 v{t+i}, v{t+i} clamp')
    for i in range(n): A(f'v_max_f32 v{y+i}, v{dl}, v{y+i}')
    for i in range(0, n, 2): A(f'v_pk_fma_f32 v[{y+i}:{y+i+1}], v[{y+i}:{y+i+1}], v[{r}:{r+1}], v[{t+i}:{t+i+1}] op_sel_hi:[1,0,1]')
def pack(A, dst, y, n):
    for i in range(0, n, 2): A(f'v_cvt_pk_bf16_f32 v{dst+i//2}, v{y+i}, v{y+i+1}')
def unpack(A, dst, src, n):
    A(f's_mov_b32 s{T0}, 0xffff0000')
    for i in range(n):
        A(f'v_lshlrev_b32 v{dst+2*i}, 16, v{src+i}'); A(f'v_and_b32 v{dst+2*i+1}, s{T0}, v{src+i}')
def div_magic(A, q, r, idx, d, t):
    magic = (65536 + d - 1) // d
    A(f'v_mul_u32_u24 v{q}, {magic}, v{idx}'); A(f'v_lshrrev_b32 v{q}, 16, v{q}')
    A(f'v_mul_u32_u24 v{t}, {d}, v{q}'); A(f'v_sub_u32 v{r}, v{idx}, v{t}')
def split_hilo(A, dst, c, t):
    A(f'v_cvt_pk_bf16_f32 v{t}, v{c}, v{c}'); A(f'v_lshlrev_b32 v{t}, 16, v{t}'); A(f'v_sub_f32 v{t}, v{c}, v{t}')
    A(f'v_cvt_pk_bf16_f32 v{dst}, v{c}, v{t}')
def neg_mean_frag(A, dst, m, t):
    A(f'v_cvt_pk_bf16_f32 v{dst}, -v{m}, -v{m}'); A(f'v_lshlrev_b32 v{t}, 16, v{dst}'); A(f'v_add_f32 v{t}, v{m}, v{t}')
    A(f'v_cvt_pk_bf16_f32 v{t}, -v{t}, -v{t}')
    A('v_cmp_gt_u32 vcc, 32, v0'); A(f'v_cndmask_b32 v{dst}, v{t}, v{dst}, vcc')
def advance(A, off, step, end, tot):
    A(f's_add_u32 s{off}, s{off}, {step}'); A(f's_cmp_ge_u32 s{off}, s{end}')
    A(f's_cselect_b32 s{off}, s{tot}, s{off}')
def set_stream(A, off, end, tot, base_reg, rot_reg, step, n):
    A(f's_mov_b32 s{tot}, s{base_reg}')
    if isinstance(step, int): A(f's_add_u32 s{end}, s{base_reg}, {n*step}')
    else: A(f's_mul_i32 s{end}, {step}, {n}'); A(f's_add_u32 s{end}, s{end}, s{base_reg}')
    A(f's_mul_i32 s{off}, s{rot_reg}, {step}'); A(f's_add_u32 s{off}, s{off}, s{base_reg}')
def run(ops):
    for o in ops: o()
lbl = [0]
def newl(p):
    lbl[0] += 1; return f'L_{p}_{lbl[0]}'

class G: PR = 144
def pw_write(A, off, val):
    A(f'v_mov_b32 v9, {val}'); A(f'ds_write_b32 v{V_MY}, v9 offset:{off}')
def pw_read(A, off):
    A(f'ds_read_b128 v[{G.PR}:{G.PR+3}], v{V_CT} offset:{off}')
OOL = []
def pw_cmp(A, val):
    A(f'v_min3_u32 v{G.PR}, v{G.PR}, v{G.PR+1}, v{G.PR+2}'); A(f'v_min_u32 v{G.PR}, v{G.PR}, v{G.PR+3}')
    A(f'v_cmp_gt_u32 vcc, {val}, v{G.PR}')
def pw_check(A, off, val, before_spin=None, sleep=1, pre=False):
    back, lp = newl('pd'), newl('pl')
    if not pre: pw_cmp(A, val)
    A.lines.append(f'    s_cbranch_vccnz {lp}'); A.pos += 1
    A.label(back)
    L = OOL.append
    L(f'{lp}:')
    if before_spin:
        for x in before_spin: L('    ' + x)
    L(f'    s_mov_b32 s{T0+12}, 0')
    L(f'{lp}_l:')
    if sleep: L(f'    s_sleep {sleep}')
    L(f'    ds_read_b128 v[{G.PR}:{G.PR+3}], v{V_CT} offset:{off}'); L(f'    s_add_u32 s{T0+12}, s{T0+12}, 1'); L('    s_waitcnt lgkmcnt(0)')
    L(f'    v_min3_u32 v{G.PR}, v{G.PR}, v{G.PR+1}, v{G.PR+2}'); L(f'    v_min_u32 v{G.PR}, v{G.PR}, v{G.PR+3}')
    L(f'    v_cmp_gt_u32 vcc, {val}, v{G.PR}'); L(f'    s_cbranch_vccz {back}')
    L(f'    s_cmp_lt_u32 s{T0+12}, 0x8000'); L(f'    s_cbranch_scc1 {lp}_l')
    L(f'    s_branch {back}')
def lp_cached(A, val):
    back, lp = newl('cd'), newl('cl')
    A(f's_cmp_lt_u32 s{S_LPC}, {val}')
    A.lines.append(f'    s_cbranch_scc1 {lp}'); A.pos += 1
    A.label(back)
    L = OOL.append
    L(f'{lp}:'); L(f'    s_mov_b32 s{T0+12}, 0'); L(f'{lp}_l:')
    L(f'    ds_read_b128 v[{G.PR}:{G.PR+3}], v{V_CT} offset:{C_LP}'); L(f'    s_add_u32 s{T0+12}, s{T0+12}, 1'); L('    s_waitcnt lgkmcnt(0)')
    L(f'    v_min3_u32 v{G.PR}, v{G.PR}, v{G.PR+1}, v{G.PR+2}'); L(f'    v_min_u32 v{G.PR}, v{G.PR}, v{G.PR+3}'); L('    s_nop 0')
    L(f'    v_readfirstlane_b32 s{S_LPC}, v{G.PR}'); L('    s_nop 1')
    L(f'    s_cmp_ge_u32 s{S_LPC}, {val}'); L(f'    s_cbranch_scc1 {back}')
    L(f'    s_cmp_lt_u32 s{T0+12}, 0x8000'); L(f'    s_cbranch_scc1 {lp}_l')
    L(f'    s_branch {back}')
gen = {C_CB: 0, C_LB: 0}
def gbar(A, off, sleep=0):
    gen[off] += 1
    A.waitcnt(lg=0)
    pw_write(A, off, gen[off]); pw_read(A, off); pw_check(A, off, gen[off], sleep=sleep)
pubn = {0: 0, 4: 0}
S_PEND = 98
def publish(A, ph, who, fast=True, tag=None, defer=False, f1=False):
    if tag is None:
        A.vm.append(('x', set())); A.waitcnt(vm=0)
    elif tag != 'none': A.wait_tag(tag)
    l = newl('pub')
    A('s_mov_b64 exec, 1')
    A('v_mov_b32 v9, 1'); A.lines.append(f'    ds_add_rtn_u32 v9, v{V_CT}, v9 offset:{C_PUB + who}')
    A(f's_add_u32 s{T0+10}, s{S_FLF}, {ph*64}'); A(f's_add_u32 s{T0+11}, s{S_FLS}, {ph*1024}')
    if f1:
        A(f's_lshl_b32 s{T0}, s{S_J1}, 7'); A(f's_and_b32 s{T0+1}, s{S_TP1}, 60'); A(f's_add_u32 s{T0}, s{T0}, s{T0+1}'); A(f's_add_u32 s{T0}, s{T0}, {F1}')
        A(f's_cmp_lt_u32 s{S_M}, 12'); A(f's_cselect_b32 s{T0+11}, s{T0}, s{T0+11}')
    if defer: A(f's_mov_b32 s{S_PEND}, {OOB}')
    A.lines.append('    s_waitcnt lgkmcnt(0)'); A.lg = []
    A(f'v_cmp_eq_u32 vcc, {4*pubn[who]+3}, v9')
    A.lines.append(f'    s_cbranch_vccz {l}')
    if fast: A.lines.append(f'    buffer_store_dword v{V_EP}, v{V_L16}, {WS}, s{T0+10} offen')
    if defer: A.lines.append(f'    s_mov_b32 s{S_PEND}, s{T0+11}')
    else: A.lines.append(f'    buffer_store_dword v{V_EP}, v{V_L16}, {WS}, s{T0+11} offen sc1')
    A.label(l)
    A('s_mov_b64 exec, -1')
def wait_local(A, ph, mask, pend=False):
    done, slow, lf, ls = newl('wd'), newl('wsl'), newl('wf'), newl('ws')
    A('v_lshlrev_b32 v1, 2, v0')
    A(f's_lshl_b32 s{T0}, s{S_RG}, 9'); A(f's_add_u32 s{T0}, s{T0}, {FAST + ph*64}')
    A(f's_mov_b64 exec, {mask}')
    A(f's_mov_b32 s{T0+3}, 0')
    A(f's_cmp_eq_u32 s{S_FASTOK}, 0'); A(f's_cbranch_scc1 {slow}')
    L = A.lines.append
    A.label(lf)
    L(f'    buffer_load_dword v2, v1, {WS}, s{T0} offen sc1'); L(f'    s_add_u32 s{T0+3}, s{T0+3}, 1'); L('    s_waitcnt vmcnt(0)')
    L(f'    v_cmp_ne_u32 vcc, v2, v{V_EP}'); L(f'    s_cbranch_vccz {done}')
    L(f'    s_cmp_lt_u32 s{T0+3}, 96'); L(f'    s_cbranch_scc1 {lf}')
    L(f'    s_mov_b32 s{S_FASTOK}, 0')
    A.label(slow)
    if pend:
        L('    s_mov_b64 exec, 1')
        L(f'    buffer_store_dword v{V_EP}, v{V_L16}, {WS}, s{S_PEND} offen sc1')
        L(f'    s_mov_b32 s{S_PEND}, {OOB}'); L(f'    s_mov_b64 exec, {mask}')
    L(f'    s_lshl_b32 s{T0}, s{S_RG}, 6'); L(f'    s_add_u32 s{T0}, s{T0}, {SLOW + ph*1024}')
    A.label(ls)
    L('    s_sleep 8')
    L(f'    buffer_load_dword v2, v1, {WS}, s{T0} offen sc1'); L(f'    s_add_u32 s{T0+3}, s{T0+3}, 1'); L('    s_waitcnt vmcnt(0)')
    L(f'    v_cmp_ne_u32 vcc, v2, v{V_EP}'); L(f'    s_cbranch_vccz {done}')
    L(f'    s_cmp_lt_u32 s{T0+3}, 20000'); L(f'    s_cbranch_scc1 {ls}')
    A.label(done)
    A.vm = []
    if pend:
        A('s_mov_b64 exec, 1')
        A(f'buffer_store_dword v{V_EP}, v{V_L16}, {WS}, s{S_PEND} offen sc1')
    A('s_mov_b64 exec, -1')
def global_check(A, ph, r):
    done, lp = newl('gd'), newl('gl')
    L = A.lines.append
    L(f'    s_mov_b32 s{T0+12}, 0'); L(f'    s_mov_b32 s{T0+13}, {SLOW + ph * 1024}')
    A.label(lp)
    L(f'    buffer_load_dwordx4 v[{r}:{r+3}], v{V_L16}, {WS}, s{T0+13} offen sc1')
    L(f'    s_add_u32 s{T0+12}, s{T0+12}, 1'); L('    s_waitcnt vmcnt(0)')
    for i in range(4): L(f'    v_xor_b32 v{r+i}, v{r+i}, v{V_EP}')
    L(f'    v_or3_b32 v{r}, v{r}, v{r+1}, v{r+2}'); L(f'    v_or_b32 v{r}, v{r}, v{r+3}')
    L(f'    v_cmp_ne_u32 vcc, 0, v{r}'); L(f'    s_cbranch_vccz {done}')
    L(f'    s_sleep {env("GSLEEP", 24)}')
    L(f'    s_cmp_lt_u32 s{T0+12}, 10000'); L(f'    s_cbranch_scc1 {lp}')
    A.label(done)
    A.vm = []

W2S = [2, 3, 0, 1, 4]
W3S = [6, 5, 3, 0, 1, 4, 2, 6, 5, 3]
W4S = [0, 1, 4, 2, 6, 5, 3, 0, 1, 4, 2, 6]
LORD = [('P1', c) for c in range(10)] + [('ST', 0)] + [('W2', p) for p in range(5)] + [('W3', p) for p in range(10)] + [('ST', 1)] + [('W4', p) for p in range(12)] + [('S', 0)]
SPOS = env('SPOS', 10)
LP = {k: i + 1 for i, k in enumerate(LORD)}
CORD = [('LN', 0)] + [('P1', c) for c in range(10)] + [('E1', 0), ('E1', 1)] + [('W2', p) for p in range(5)] + [('E2', 0)] + [('W3', p) for p in range(10)] + [('W4', p) for p in range(12)]
CP = {k: i + 1 for i, k in enumerate(CORD)}
def needfree(k):
    n, i = k
    if n == 'GATE': return CP[i]
    if n == 'P1': return CP[('P1', i - 4)] if i >= 4 else 0
    if n == 'W2': return CP[('P1', 6 + i)] if i < 4 else CP[('E1', 0)]
    g1 = CP[('W2', env('GATE1', -1))] if env('GATE1', -1) >= 0 else 0
    if n == 'W3':
        if i < 2: return max(g1, CP[('E1', 0)])
        if i < 6: return CP[('W2', i - 1)]
        if i == 6: return CP[('E2', 0)]
        return CP[('W3', i - 7)]
    if n == 'W4':
        if i < 7: return max(CP[('W3', i + 3)], CP[('W3', env('W4GATE', 8))])
        return CP[('W4', i - 7)]
    return 0

def rot(A, dst, terms, n):
    terms = [(r, m) for r, m in terms if m]
    if not terms:
        A(f's_mov_b32 s{dst}, 0'); return
    for k, (reg, mul) in enumerate(terms):
        if k == 0: A(f's_mul_i32 s{dst}, s{reg}, {mul}')
        else: A(f's_mul_i32 s{T0+2}, s{reg}, {mul}'); A(f's_add_u32 s{dst}, s{dst}, s{T0+2}')
    A(f's_lshr_b32 s{dst}, s{dst}, 3')
    A(f's_mul_i32 s{T0+2}, s{dst}, {(65536 + n - 1) // n}'); A(f's_lshr_b32 s{T0+2}, s{T0+2}, 16'); A(f's_mul_i32 s{T0+2}, s{T0+2}, {n}'); A(f's_sub_u32 s{dst}, s{dst}, s{T0+2}')
def ids_p1(A):
    A(f's_mov_b32 s{S_J1}, s{S_M}'); A(f's_mov_b32 s{S_TP1}, s{S_RG}')
    if env('MAP1', 1):
        A(f's_and_b32 s{T0}, s{S_RG}, 1'); A(f's_mul_i32 s{T0}, s{T0}, 12'); A(f's_add_u32 s{T0}, s{T0}, s{S_M}')
        A(f's_mul_i32 s{T0+1}, s{T0}, 43'); A(f's_lshr_b32 s{T0+1}, s{T0+1}, 8')
        A(f's_mul_i32 s{T0+2}, s{T0+1}, 6'); A(f's_sub_u32 s{T0}, s{T0}, s{T0+2}')
        A(f's_and_b32 s{T0+2}, s{S_RG}, 12'); A(f's_add_u32 s{T0+1}, s{T0+1}, s{T0+2}')
        A(f's_bfe_u32 s{T0+2}, s{S_RG}, 0x10001'); A(f's_mul_i32 s{T0+2}, s{T0+2}, 6'); A(f's_add_u32 s{T0}, s{T0}, s{T0+2}')
        A(f's_cmp_lt_u32 s{S_M}, 12'); A(f's_cselect_b32 s{S_J1}, s{T0}, s{S_M}'); A(f's_cselect_b32 s{S_TP1}, s{T0+1}, s{S_RG}')
    A(f's_lshr_b32 s{T0+3}, s{S_RG}, 1'); A(f's_and_b32 s{T0+6}, s{S_TP1}, 3')
    X1M = env('X1M', 0)
    if X1M: A(f's_lshr_b32 s{T0+3}, s{T0+3}, 1')
    rot(A, S_ROT1, [(T0 + 3, env('R1X', 20 if X1M else 10))], 10)
    if G.PR == 44:
        A(f's_and_b32 s{T0+6}, s{T0+6}, {X1M}'); A(f's_and_b32 s{T0+5}, s{S_J1}, {env("PH1M", 0)}')
        A(f'v_add_u32 v38, s{T0+5}, v0'); A('v_subrev_u32 v56, 10, v38'); A('v_min_u32 v38, v38, v56')
        A(f'v_xor_b32 v56, s{T0+6}, v38'); A(f's_and_b32 s{T0+2}, s{T0+6}, 1'); A(f'v_xor_b32 v57, s{T0+2}, v38')
        A('v_cmp_gt_u32 s[6:7], 8, v38'); A('v_cndmask_b32 v56, v57, v56, s[6:7]')
        A(f'v_add_u32 v38, s{S_ROT1}, v56'); A('v_subrev_u32 v56, 10, v38'); A('v_min_u32 v38, v38, v56')
    A(f's_lshl_b32 s{S_TP1}, s{S_TP1}, 2'); A(f's_add_u32 s{S_TP1}, s{S_TP1}, s{S_WAVE}')
    A(f's_sub_u32 s{T0}, s{S_M}, 12'); A(f's_lshr_b32 s{T0+1}, s{T0}, 1'); A(f's_add_u32 s{T0+1}, s{T0+1}, 1'); A(f's_sub_u32 s{T0+2}, 0, s{T0+1}')
    A(f's_bitcmp1_b32 s{S_M}, 0'); A(f's_cselect_b32 s{T0+1}, s{T0+1}, s{T0+2}')
    A(f's_cmp_ge_u32 s{S_M}, 12'); A(f's_cselect_b32 s{T0+1}, s{T0+1}, 0')
    A(f's_lshl_b32 s{S_TOK}, s{S_TP1}, 5'); A(f's_add_u32 s{S_TOK}, s{S_TOK}, s{T0+1}')
def ids_late(A):
    A(f'v_mov_b32 v{V_CT}, {CTRL}')
    A(f's_lshl_b32 s{T0}, s{S_WAVE}, 2'); A(f's_add_u32 s{T0}, s{T0}, {CTRL}'); A(f'v_mov_b32 v1, s{T0}')
    A('v_cmp_eq_u32 s[6:7], 0, v0'); A(f'v_cndmask_b32 v{V_MY}, v{VOOB}, v1, s[6:7]')
    A(f's_lshr_b32 s{S_KW}, s{S_WAVE}, 1'); A(f's_and_b32 s{S_MW}, s{S_WAVE}, 1')
    A(f's_lshl_b32 s{S_TT1}, s{S_RG}, 2'); A(f's_add_u32 s{S_TT1}, s{S_TT1}, s{S_WAVE}')
    A(f's_lshr_b32 s{T0}, s{S_M}, 3'); A(f's_lshl_b32 s{T0}, s{T0}, 1'); A(f's_lshl_b32 s{S_TT2}, s{S_RG}, 2')
    A(f's_add_u32 s{S_TT2}, s{S_TT2}, s{T0}'); A(f's_add_u32 s{S_TT2}, s{S_TT2}, s{S_MW}')
    A(f's_and_b32 s{S_C2}, s{S_M}, 7')
    A(f's_lshr_b32 s{T0+3}, s{S_RG}, 1'); A(f's_and_b32 s{T0+4}, s{S_RG}, 1')
    A(f's_lshl_b32 s{T0+5}, s{T0+4}, 1'); A(f's_lshr_b32 s{T0+2}, s{S_M}, 3'); A(f's_add_u32 s{T0+5}, s{T0+5}, s{T0+2}')
    rot(A, S_ROT3, [(T0 + 3, env('R3X', 10)), (T0 + 4, env('R3S', 0)), (S_M, env('R3M', 0))], 10)
    rot(A, S_ROT2, [(T0 + 3, env('R2X', 5)), (T0 + 5, env('R2U', 0)), (S_C2, env('R2C', 0))], 5)
    rot(A, S_ROT4, [(T0 + 3, env('R4X', 0)), (T0 + 5, env('R4U', 0)), (S_C2, env('R4C', 0))], 12)
    A(f's_lshl_b32 s{S_FLF}, s{S_RG}, 9'); A(f's_lshl_b32 s{T0}, s{S_M}, 2'); A(f's_add_u32 s{S_FLF}, s{S_FLF}, s{T0}'); A(f's_add_u32 s{S_FLF}, s{S_FLF}, {FAST}')
    A(f's_lshl_b32 s{S_FLS}, s{S_Q}, 2'); A(f's_add_u32 s{S_FLS}, s{S_FLS}, {SLOW}')
    A(f's_mul_i32 s{S_TILE2}, s{S_TT2}, 40960'); A(f's_mul_i32 s{T0}, s{S_C2}, 5120'); A(f's_add_u32 s{S_TILE2}, s{S_TILE2}, s{T0}')

def common_prologue(A):
    A.raw(f'.globl {KN}\n.p2align 8\n.type {KN},@function\n{KN}:')
    A('s_cmp_ge_u32 s2, 256'); A('s_cbranch_scc1 L_end')
    if STAMP:
        A.lines.append('    s_memrealtime s[10:11]'); A.lines.append('    v_mov_b32 v3, 0')
    stamp(A, 0)
    A('s_load_dwordx16 s[16:31], s[0:1], 0'); A('s_load_dwordx4 s[32:35], s[0:1], 64'); A('s_load_dwordx2 s[36:37], s[0:1], 80')
    A('v_lshrrev_b32 v1, 6, v0'); A('v_and_b32 v0, 63, v0')
    A(f'v_readfirstlane_b32 s{S_W8}, v1')
    A(f'v_lshlrev_b32 v{V_L16}, 4, v0'); A(f'v_mov_b32 v{VOOB}, {OOB}')
    A(f's_and_b32 s{T0}, s2, 7'); A(f's_lshl_b32 s{S_RG}, s{T0}, 1'); A(f's_lshr_b32 s{T0}, s2, 7'); A(f's_add_u32 s{S_RG}, s{S_RG}, s{T0}')
    A(f's_lshr_b32 s{S_M}, s2, 3'); A(f's_and_b32 s{S_M}, s{S_M}, 15')
    A(f's_lshl_b32 s{S_Q}, s{S_RG}, 4'); A(f's_add_u32 s{S_Q}, s{S_Q}, s{S_M}')
    A(f's_and_b32 s{S_WAVE}, s{S_W8}, 3')
    A(f's_mul_i32 s{S_LW}, s{S_WAVE}, 5120')
    A(f's_cmp_lt_u32 s{S_W8}, 4'); A('s_cbranch_scc1 L_compute')

def tr160_bases(A, nat, pair, sbase):
    A('v_bfe_u32 v56, v0, 2, 3'); A('v_lshrrev_b32 v57, 5, v0'); A('v_lshl_add_u32 v56, v57, 4, v56'); A('v_mul_u32_u24 v56, 160, v56')
    A(f'v_add_u32 v56, s{sbase}, v56')
    A('v_and_b32 v57, 3, v0'); A(f'v_lshl_add_u32 v{nat}, v57, 3, v56')
    A('v_and_b32 v57, 2, v0'); A(f'v_lshl_add_u32 v{pair}, v57, 3, v{nat}')

def loader(A):
    G.PR = 44
    VW, VX, VW2, VW3 = 16, 24, 32, 40
    A('s_setprio 3')
    ids_p1(A)
    A(f's_lshl_b32 s{S_LX}, s{S_WAVE}, 12')
    A(f's_cmp_ge_u32 s{S_M}, 12')
    A(f's_cselect_b32 s{T0+8}, 1, 3'); A(f's_cselect_b32 s{T0+9}, 12, 0')
    A(f's_mul_i32 s{T0+7}, s{T0+8}, 1280')
    A(f's_sub_u32 s{T0+9}, s{S_J1}, s{T0+9}'); A(f's_mul_i32 s{T0+9}, s{T0+9}, 320')
    A(f's_sub_u32 s{T0+5}, s{S_J1}, 4'); A(f's_mul_i32 s{T0+6}, s{T0+5}, 160'); A(f's_add_u32 s{T0+6}, s{T0+6}, 1280')
    A(f's_cmp_lt_u32 s{T0+5}, 8')
    A(f's_cselect_b32 s{T0+9}, s{T0+6}, s{T0+9}'); A(f's_cselect_b32 s{T0+5}, 1120, 0')
    A(f'v_mov_b32 v60, s{T0+5}')
    for n in range(5):
        A(f'v_add_u32 v56, {64*n}, v0'); div_magic(A, 57, 58, 56, 20, 59)
        A(f'v_mul_lo_u32 v57, v57, s{T0+7}'); A('v_cmp_lt_u32 vcc, 9, v58'); A('v_lshl_add_u32 v57, v58, 4, v57')
        A('v_cndmask_b32 v59, 0, v60, vcc')
        A(f'v_add_u32 v{VW+n}, v57, v59')
        if n: A(f'v_subrev_u32 v{VW+n}, {min(n,3)*1024}, v{VW+n}')
    A(f's_lshl_b32 s{T0+6}, s{S_WAVE}, 4'); A(f's_mul_i32 s{T0+6}, s{T0+6}, s{T0+7}'); A(f's_add_u32 s{T0+6}, s{T0+6}, s{T0+9}')
    A(f's_lshl_b32 s{S_RSTEP}, s{T0+7}, 6')
    set_stream(A, S_RW, S_REND, S_RTOT, T0 + 6, S_ROT1, f's{S_RSTEP}', 10)
    A('v_lshrrev_b32 v56, 3, v0'); A('v_lshrrev_b32 v57, 4, v0'); A('v_and_b32 v58, 7, v0'); A('v_xor_b32 v58, v58, v57'); A('v_lshlrev_b32 v58, 4, v58')
    A(f'v_add_u32 v56, s{S_TOK}, v56')
    for n in range(4):
        if n: A('v_add_u32 v56, 8, v56'); A('v_xor_b32 v58, 64, v58')
        A('v_mul_u32_u24 v57, 1280, v56'); A('v_cmp_gt_u32 vcc, 2048, v56'); A('v_add_u32 v57, v57, v58')
        if n: A(f'v_subrev_u32 v57, {1024*n}, v57')
        A(f'v_cndmask_b32 v{VX+n}, v{VOOB}, v57, vcc')
    A(f's_mov_b32 s{T0}, 0')
    set_stream(A, S_AO, S_AEND, S_ATOT, T0, S_ROT1, 128, 10)
    A('v_lshrrev_b32 v40, 5, v0'); A(f's_lshl_b32 s{T0}, s{S_WAVE}, 1'); A(f'v_add_u32 v41, s{T0}, v40')
    A('v_and_b32 v42, 31, v0')
    A.waitcnt(lg=0)
    srd(A, SRD_X, S_X, 2048 * 1280)
    A(f's_cmp_ge_u32 s{S_M}, 12')
    A(f's_cselect_b32 s{SRD_W}, s{S_W1}, s{S_WQKV}'); A(f's_cselect_b32 s{SRD_W+1}, s{S_W1+1}, s{S_WQKV+1}')
    A(f's_mul_i32 s{SRD_W+2}, s{T0+8}, {640*1280}'); A(f's_mov_b32 s{SRD_W+3}, 0x20000')
    srd(A, SRD_WS, S_WS, WS_SIZE)
    def raw(slot, vw, tag):
        for n in range(5):
            if n in (0, 4): A(f's_add_u32 m0, s{S_LW}, {slot * SLOT + (1024 if n == 4 else 0)}')
            A(f'buffer_load_dwordx4 v{vw+n}, {WSRD}, s{S_RW} offen offset:{min(n,3)*1024} lds', tag=tag)
        advance(A, S_RW, f's{S_RSTEP}', S_REND, S_RTOT)
    TS = f's[{SRD_OUT}:{SRD_OUT+3}]'
    S_SD = 73 + 26
    pre, post = {}, {}
    def flag_eval(ph, r):
        ok = newl('ge')
        for j in range(4): A(f'v_xor_b32 v{r+j}, v{r+j}, v{V_EP}')
        A(f'v_or3_b32 v{r}, v{r}, v{r+1}, v{r+2}'); A(f'v_or_b32 v{r}, v{r}, v{r+3}'); A(f'v_cmp_ne_u32 vcc, 0, v{r}')
        A.lines.append(f'    s_cbranch_vccz {ok}')
        sv = A.save(); global_check(A, ph, r); A.restore(sv)
        A.label(ok)
    def flag_issue(ph, r):
        A(f's_mov_b32 s{T0+13}, {SLOW + ph * 1024}')
        A(f'buffer_load_dwordx4 v[{r}:{r+3}], v{V_L16}, {WS}, s{T0+13} offen sc1')
    def late_setup():
        A(f's_setprio {env("LPRIO", 0)}')
        ids_late(A)
        A(f's_mov_b32 s{T0+1}, {GEN}'); A('v_mov_b32 v1, 0')
        A(f'buffer_load_dword v{V_EP}, v1, {WS}, s{T0+1} offen sc1')
        A(f's_lshl_b32 s{T0+1}, s{S_RG}, 9'); A(f's_add_u32 s{T0+1}, s{T0+1}, {FAST}'); A('v_lshlrev_b32 v1, 3, v0')
        A(f'buffer_load_dword v2, v1, {WS}, s{T0+1} offen sc1')
        for n in range(5):
            A(f'v_add_u32 v56, {64*n}, v0'); div_magic(A, 57, 58, 56, 10, 59)
            A('v_mul_u32_u24 v59, 1280, v57'); A(f'v_lshl_add_u32 v{VW2+n}, v58, 4, v59'); A(f'v_subrev_u32 v{200+n}, {min(n,3)*1024}, v{VW2+n}')
        A(f's_lshl_b32 s{S_ROWS2}, s{S_TT2}, 1'); A(f's_add_u32 s{S_ROWS2}, s{S_ROWS2}, s{S_KW}')
        A(f's_mul_i32 s{S_ROWS2}, s{S_ROWS2}, {16*1280}'); A(f's_mul_i32 s{T0}, s{S_C2}, 160'); A(f's_add_u32 s{S_ROWS2}, s{S_ROWS2}, s{T0}')
        A(f's_mul_i32 s{S_G1}, s{S_WAVE}, 2560'); A(f's_add_u32 s{S_G1}, s{S_G1}, {XT}')
        A(f's_mov_b32 s{S_FASTOK}, {env("FASTOK", 1)}')
    def ln_store():
        A(f's_lshl_b32 s{T0}, s{S_WAVE}, 7'); A(f's_add_u32 s{T0}, s{T0}, {STB}'); A(f'v_lshl_add_u32 v56, v40, 3, s{T0}')
        A('ds_read_b64 v[60:61], v56')
        A('v_cmp_eq_u32 vcc, 0, v42'); A('v_lshlrev_b32 v57, 3, v41'); A(f'v_cndmask_b32 v57, v{VOOB}, v57, vcc')
        A(f's_lshl_b32 s{T0}, s{S_Q}, 6'); A(f's_add_u32 s{T0}, s{T0}, {ST0}')
        A(f'buffer_store_dwordx2 v[60:61], v57, {WS}, s{T0} offen {SC}')
        for i in range(4): A(f'v_mov_b32 v{64+i}, 0')
        A(f's_lshl_b32 s{T0}, s{S_Q}, 10'); A(f's_add_u32 s{T0}, s{T0}, {KVS}')
        A(f's_cmp_eq_u32 s{S_WAVE}, 3'); A(f's_cselect_b32 s{T0}, s{T0}, {OOB}')
        A(f'buffer_store_dwordx4 v[64:67], v{V_L16}, {WS}, s{T0} offen {SC}', tag='pubst')
        A(f'v_add_u32 v{V_EP}, 1, v{V_EP}')
    def pub(ph, fast):
        publish(A, ph, 4, fast=fast, tag='pubst'); pubn[4] += 1
    def xt_dma():
        for n in range(3):
            A(f's_add_u32 m0, s{S_G1}, {n*1024}')
            if n == 2: A('s_mov_b64 exec, 0xffffffff')
            A(f'buffer_load_dwordx4 v{VW2+n}, {XS}, s{S_ROWS2} offen lds')
        A('s_mov_b64 exec, -1')
    def g0_eval():
        flag_eval(PH0, 48)
        l = newl('gen')
        A(f's_add_u32 s{T0}, s{S_Q}, s{S_WAVE}'); A(f's_cmp_lg_u32 s{T0}, 0'); A(f's_cbranch_scc1 {l}')
        A(f's_mov_b32 s{T0}, {GEN}'); A('s_mov_b64 exec, 1')
        A.lines.append(f'    buffer_store_dword v{V_EP}, v{V_L16}, {WS}, s{T0} offen sc1')
        A('s_mov_b64 exec, -1'); A.label(l)
    def st_load():
        A(f'v_add_u32 v56, s{S_TOK}, v42'); A('v_cmp_gt_u32 vcc, 2048, v56'); A('v_lshlrev_b32 v56, 3, v56')
        A(f'v_cndmask_b32 v56, v{VOOB}, v56, vcc'); A(f's_mov_b32 s{T0}, {ST0}')
        A(f'buffer_load_dwordx2 v[60:61], v56, {WS}, s{T0} offen {SC}')
        A(f's_lshl_b32 s{T0}, s{S_TT2}, 1'); A(f's_add_u32 s{T0}, s{T0}, s{S_KW}'); A(f's_lshl_b32 s{T0}, s{T0}, 7'); A(f's_add_u32 s{T0}, s{T0}, {ST0}')
        A('v_and_b32 v57, 15, v0'); A('v_lshlrev_b32 v57, 3, v57')
        A(f'buffer_load_dwordx2 v[62:63], v57, {WS}, s{T0} offen {SC}')
    def st_put():
        neg_mean_frag(A, 58, 60, 56)
        A(f'v_max_f32 v61, {f2u(1e-30)}, v61')
        A(f's_mul_i32 s{T0}, s{S_WAVE}, 384'); A(f's_add_u32 s{T0}, s{T0}, {STA}')
        A(f'v_lshl_add_u32 v56, v0, 2, s{T0}'); A('ds_write_b32 v56, v58')
        A(f'v_lshl_add_u32 v56, v42, 2, s{T0}'); A('ds_write_b32 v56, v61 offset:256')
        A('v_mul_f32 v62, v62, v63')
        A(f's_lshl_b32 s{T0}, s{S_WAVE}, 7'); A(f's_add_u32 s{T0}, s{T0}, {STB}'); A('v_and_b32 v57, 15, v0'); A(f'v_lshl_add_u32 v57, v57, 3, s{T0}')
        A('ds_write_b64 v57, v[62:63]')
        A(f'ds_write_b32 v{V_CT}, v{V_EP} offset:72')
    def w2_setup():
        srd(A, SRD_W, S_W2, 640 * 1280)
        A(f's_mul_i32 s{T0}, s{S_KW}, 320'); A(f's_lshl_b32 s{T0+1}, s{S_MW}, 5'); A(f's_add_u32 s{T0}, s{T0}, s{T0+1}'); A(f's_mul_i32 s{T0}, s{T0}, 1280')
        A(f's_mul_i32 s{T0+1}, s{S_C2}, 160'); A(f's_add_u32 s{T0}, s{T0}, s{T0+1}')
        A(f's_mov_b32 s{S_RSTEP}, {64*1280}')
        set_stream(A, S_RW, S_REND, S_RTOT, T0, S_ROT2, 64 * 1280, 5)
    def side_load():
        srd(A, SRD_OUT, S_W4, 1536 * 1280)
        A(f's_lshr_b32 s{T0+5}, s{S_Q}, 1'); A(f's_and_b32 s{T0+6}, s{S_Q}, 1'); A(f's_lshl_b32 s{T0+6}, s{T0+6}, 2'); A(f's_add_u32 s{T0+6}, s{T0+6}, s{S_WAVE}')
        A(f's_mul_i32 s{T0+7}, s{T0+5}, {32*1280}'); A(f's_mul_i32 s{T0+8}, s{T0+6}, 160'); A(f's_add_u32 s{T0+7}, s{T0+7}, s{T0+8}')
        A(f's_mul_i32 s{S_SD}, s{T0+6}, 48'); A(f's_add_u32 s{S_SD}, s{S_SD}, s{T0+5}'); A(f's_mul_i32 s{S_SD}, s{S_SD}, 5120'); A(f's_add_u32 s{S_SD}, s{S_SD}, {W4F}')
        for j in range(5): A(f'v_mov_b32 v{64+j}, v{VW2+j}')
        A(f's_cmp_lt_u32 s{S_Q}, 96'); A('s_cbranch_scc1 L_side_src')
        srd(A, SRD_OUT, S_W3, 640 * 3072)
        A(f's_sub_u32 s{T0+2}, s{S_Q}, 96'); A(f's_mul_i32 s{T0+5}, s{T0+2}, 2731'); A(f's_lshr_b32 s{T0+5}, s{T0+5}, 16')
        A(f's_mul_i32 s{T0+6}, s{T0+5}, 24'); A(f's_sub_u32 s{T0+6}, s{T0+2}, s{T0+6}')
        A(f's_lshl_b32 s{T0+5}, s{T0+5}, 2'); A(f's_add_u32 s{T0+5}, s{T0+5}, s{S_WAVE}'); A(f's_mul_i32 s{T0+7}, s{T0+5}, {32*3072}')
        A(f's_lshl_b32 s{T0+8}, s{T0+6}, 7'); A(f's_add_u32 s{T0+7}, s{T0+7}, s{T0+8}')
        A(f's_lshl_b32 s{S_SD}, s{T0+6}, 8'); A(f's_add_u32 s{S_SD}, s{S_SD}, {CS3}')
        A(f's_cmp_lt_u32 s{S_Q}, 216'); A(f's_cselect_b32 s{S_SD}, s{S_SD}, {OOB}')
        A('v_lshrrev_b32 v56, 3, v0'); A('v_mul_u32_u24 v56, 3072, v56'); A('v_and_b32 v57, 7, v0'); A('v_lshl_add_u32 v64, v57, 4, v56')
        for j in range(1, 4): A(f'v_add_u32 v{64+j}, {j*8*3072}, v64')
        A(f'v_mov_b32 v68, v{VOOB}')
        A.label('L_side_src')
        for j in range(5): A(f'buffer_load_dwordx4 v[{136+4*j}:{139+4*j}], v{64+j}, {TS}, s{T0+7} offen')
    def side_do():
        A(f's_add_u32 s{T0+3}, s{S_LW}, {5*SLOT}'); A(f'v_add_u32 v60, s{T0+3}, v{V_L16}')
        for j in range(5): A(f'ds_write_b128 v60, v[{136+4*j}:{139+4*j}] offset:{1024*j}')
        A(f's_cmp_lt_u32 s{S_Q}, 96'); A('s_cbranch_scc0 L_side_cs')
        st = A.save()
        A(f's_add_u32 s{T0+5}, s{S_SD}, 1024')
        tr160_bases(A, 58, 59, T0 + 3)
        for f in range(5):
            base, off = (59, 64 * (f // 2) + 16 * (f % 2)) if f < 4 else (58, 128)
            A(f'ds_read_b64_tr_b16 v[{64+4*f}:{65+4*f}], v{base} offset:{off}')
            A(f'ds_read_b64_tr_b16 v[{66+4*f}:{67+4*f}], v{base} offset:{off+8*160}')
        for f in range(5):
            A(f'buffer_store_dwordx4 v[{64+4*f}:{67+4*f}], v{V_L16}, {WS}, s{S_SD if f<4 else T0+5} offen offset:{(f if f<4 else 3)*1024} {SC}')
        A('s_branch L_side_done')
        A.label('L_side_cs'); A.restore(st)
        A('v_bfe_u32 v58, v0, 2, 2'); A('v_lshrrev_b32 v57, 5, v0'); A('v_lshl_add_u32 v58, v57, 2, v58'); A('v_lshlrev_b32 v58, 7, v58')
        A('v_bfe_u32 v57, v0, 4, 1'); A('v_lshl_add_u32 v58, v57, 5, v58'); A('v_and_b32 v57, 3, v0'); A('v_lshl_add_u32 v58, v57, 3, v58')
        A(f'v_add_u32 v58, s{T0+3}, v58')
        for j in range(4): A(f'v_mov_b32 v{112+j}, 0x3f803f80')
        for ks in range(2):
            for t in range(2):
                b = 96 + 8 * ks + 4 * t
                A(f'ds_read_b64_tr_b16 v[{b}:{b+1}], v58 offset:{2048*ks+64*t}'); A(f'ds_read_b64_tr_b16 v[{b+2}:{b+3}], v58 offset:{2048*ks+64*t+1024}')
        for ks in range(2):
            for t in range(2):
                d = 64 + 16 * t; b = 96 + 8 * ks + 4 * t
                A(f'v_mfma_f32_32x32x16_bf16 v[{d}:{d+15}], v[112:115], v[{b}:{b+3}], {"0" if ks==0 else f"v[{d}:{d+15}]"}')
        A('v_cmp_gt_u32 vcc, 32, v0'); A('v_lshlrev_b32 v56, 2, v0')
        A('v_cndmask_b32 v64, v80, v64, vcc')
        A(f'buffer_atomic_add_f32 v64, v56, {WS}, s{S_SD} offen')
        A.label('L_side_done'); A.restore(st); A.lg = []; A.hist = []; A.lines.append('    s_waitcnt lgkmcnt(0)'); A.nop(4)
    def w3_setup():
        l1, l2 = newl('p3s'), newl('p3e')
        A(f's_cmp_ge_u32 s{S_M}, 12'); A(f's_cbranch_scc1 {l1}')
        srd(A, SRD_W, S_W3, 640 * 3072)
        A('v_lshrrev_b32 v56, 4, v0'); A('v_bfe_u32 v57, v0, 2, 2'); A('v_xor_b32 v57, v57, v56'); A('v_mul_u32_u24 v56, 3072, v56')
        A('v_lshl_add_u32 v56, v57, 6, v56'); A('v_and_b32 v57, 3, v0'); A(f'v_lshl_add_u32 v{VW}, v57, 4, v56')
        for j in range(1, 4): A(f'v_add_u32 v{VW+j}, {j*4*3072 - j*1024}, v{VW}')
        A(f'v_mov_b32 v{VW+4}, v{VOOB}')
        A(f's_mov_b32 s{S_RSTEP}, {64*3072}'); A(f's_mul_i32 s{T0}, s{S_WAVE}, {16*3072}'); A(f's_lshl_b32 s{T0+1}, s{S_M}, 8')
        A(f's_branch {l2}')
        A.label(l1)
        srd(A, SRD_W, S_WO, 640 * 1280)
        A(f's_mov_b32 s{S_RSTEP}, {64*1280}'); A(f's_mul_i32 s{T0}, s{S_WAVE}, {16*1280}'); A(f's_sub_u32 s{T0+1}, s{S_M}, 12'); A(f's_mul_i32 s{T0+1}, s{T0+1}, 320')
        A.label(l2)
        A(f's_add_u32 s{T0}, s{T0}, s{T0+1}')
        A(f's_mov_b32 s{S_RTOT}, s{T0}')
    def f1_issue():
        A(f's_add_u32 s{T0}, s{S_C2}, 4'); A(f's_lshl_b32 s{T0}, s{T0}, 7'); A(f'v_lshl_add_u32 v56, v0, 2, s{T0}')
        A(f's_lshr_b32 s{T0}, s{S_C2}, 1'); A(f's_lshl_b32 s{T0}, s{T0}, 7'); A(f's_lshl_b32 s{T0+1}, s{S_RG}, 2'); A(f's_add_u32 s{T0}, s{T0}, s{T0+1}'); A(f'v_mov_b32 v57, s{T0}')
        A('v_cmp_gt_u32 vcc, 16, v0'); A('v_cndmask_b32 v49, v57, v56, vcc')
        A(f's_mov_b32 s{T0+13}, {F1}')
        A(f'buffer_load_dword v48, v49, {WS}, s{T0+13} offen sc1')
    def o_load(idx):
        A(f's_mul_i32 s{T0}, s{S_WAVE}, 5')
        A(f'v_add_u32 v58, s{T0}, v40')
        A('v_lshlrev_b32 v59, 4, v42'); A(f'v_add_u32 v59, {XT}, v59')
        for j in range(3):
            A(f'v_add_u32 v56, {2*j}, v58')
            A(f'v_lshrrev_b32 v{52+j}, 2, v56'); A(f'v_lshl_add_u32 v{52+j}, v{52+j}, 10, v59')
            A('v_and_b32 v57, 1, v56'); A(f'v_lshl_add_u32 v{52+j}, v57, 9, v{52+j}')
            A('v_bfe_u32 v57, v56, 1, 1'); A(f'v_lshl_add_u32 v{52+j}, v57, 3, v{52+j}')
        A('v_cmp_gt_u32 vcc, 32, v0'); A(f'v_cndmask_b32 v54, v{VOOB}, v54, vcc')
        A('v_min_u32 v56, 20, v42'); A(f'v_subrev_u32 v57, s{S_WAVE}, v40')
        for j in range(4):
            A(f'v_add_u32 v59, {2*j}, v57'); A('v_cmp_gt_u32 vcc, 5, v59'); A('v_mad_u32_u24 v59, v59, 21, v56'); A('v_lshlrev_b32 v59, 4, v59')
            A(f'v_cndmask_b32 v{60+j}, v{VOOB}, v59, vcc')
        stamp(A, 10)
        done, lp = newl('fd'), newl('fl')
        A(f'v_cmp_ne_u32 vcc, v48, v{V_EP}')
        L = lambda t: A.lines.append('    ' + t)
        L(f's_cbranch_vccz {done}'); L(f's_mov_b32 s{T0+12}, 0'); L(f's_mov_b32 s{T0+13}, {F1}')
        A.label(lp)
        L('s_sleep 8'); L(f'buffer_load_dword v48, v49, {WS}, s{T0+13} offen sc1'); L(f's_add_u32 s{T0+12}, s{T0+12}, 1'); L('s_waitcnt vmcnt(0)')
        L(f'v_cmp_ne_u32 vcc, v48, v{V_EP}'); L(f's_cbranch_vccz {done}'); L(f's_cmp_lt_u32 s{T0+12}, 30000'); L(f's_cbranch_scc1 {lp}')
        A.label(done)
        stamp(A, 11)
        A(f's_lshl_b32 s{T0}, s{S_C2}, 2'); A(f's_add_u32 s{T0}, s{T0}, s{S_WAVE}'); A(f's_lshl_b32 s{T0}, s{T0}, 11'); A(f's_add_u32 s{T0}, s{T0}, {KVS}')
        for j in range(4): A(f'buffer_load_dwordx4 v[{96+4*j}:{99+4*j}], v{60+j}, {WS}, s{T0} offen {SC}')
        A(f's_mul_i32 s{T0+4}, s{S_MW}, 40960'); A(f's_sub_u32 s{T0+4}, s{S_TILE2}, s{T0+4}')
        A(f's_lshl_b32 s{T0}, s{S_WAVE}, 10'); A(f's_add_u32 s{T0}, s{T0}, s{T0+4}'); A(f's_add_u32 s{T0}, s{T0}, {PQ}'); A(f's_add_u32 s{T0+1}, s{T0}, 40960')
        for tt in range(2):
            for a_ in range(2):
                b = 112 + 8 * tt + 4 * a_
                A(f'buffer_load_dwordx4 v[{b}:{b+3}], v{V_L16}, {WS}, s{T0+tt} offen offset:{a_*1024} {SC}')
    def o_do():
        pack(A, 128, 96, 16)
        for tt in range(2):
            d = 64 + 16 * tt
            A(f'v_mfma_f32_32x32x16_bf16 v[{d}:{d+15}], v[128:131], v[{112+8*tt}:{115+8*tt}], 0')
            A(f'v_mfma_f32_32x32x16_bf16 v[{d}:{d+15}], v[132:135], v[{116+8*tt}:{119+8*tt}], v[{d}:{d+15}]')
        A(f's_mul_i32 s{T0}, s{S_MW}, 5120'); A(f's_mul_i32 s{T0+1}, s{S_KW}, 3072'); A(f's_add_u32 s{T0}, s{T0}, s{T0+1}'); A(f's_add_u32 s{T0}, s{T0}, {XT}'); A(f'v_add_u32 v56, s{T0}, v{V_L16}')
        A(f's_add_u32 s{T0}, s{S_TILE2}, s{T0+1}'); A(f's_add_u32 s{T0}, s{T0}, {OO}')
        A(f's_cmp_eq_u32 s{S_KW}, 0'); A(f's_cselect_b32 s{T0+1}, s{T0}, {OOB}')
        for tt in range(2):
            d = 64 + 16 * tt
            A(f'v_add_f32 v{d+12}, {f2u(1e-6)}, v{d+12}'); A(f'v_rcp_f32 v{d+12}, v{d+12}')
            for j in range(12): A(f'v_mul_f32 v{d+j}, v{d+j}, v{d+12}')
            pack(A, 96 + 6 * tt, d, 12)
            for j in range(3): A(f'ds_write_b64 v{52+j}, v[{96+6*tt+2*j}:{97+6*tt+2*j}] offset:{5120*tt}')
        gbar(A, C_LB)
        for j in range(3): A(f'ds_read_b128 v[{64+4*j}:{67+4*j}], v56 offset:{1024*j}')
        for j in range(3): A(f'buffer_store_dwordx4 v[{64+4*j}:{67+4*j}], v{V_L16}, {WS}, s{T0 if j<2 else T0+1} offen offset:{1024*j} {SC}', tag='pubst')
    def p3_l1():
        A('v_lshlrev_b32 v56, 3, v42'); A('v_lshl_add_u32 v56, v40, 16, v56')
        A(f's_lshl_b32 s{T0+4}, s{S_TT1}, 8'); A(f's_add_u32 s{T0+4}, s{T0+4}, {ST1}')
        A(f's_cmp_lt_u32 s{S_M}, 12'); A(f's_cselect_b32 s{T0+4}, s{T0+4}, {OOB}')
        for p in range(4):
            A(f'buffer_load_dwordx2 v[{64+2*p}:{65+2*p}], v56, {WS}, s{T0+4} offen {SC}')
            if p < 3: A(f's_add_u32 s{T0+4}, s{T0+4}, 16384')
    def p3_l2():
        A('v_lshlrev_b32 v56, 2, v42')
        A(f's_lshl_b32 s{T0+4}, s{S_M}, 9'); A(f's_lshl_b32 s{T0+5}, s{S_WAVE}, 7'); A(f's_add_u32 s{T0+4}, s{T0+4}, s{T0+5}'); A(f's_add_u32 s{T0+4}, s{T0+4}, {CS3}')
        A(f'buffer_load_dword v72, v56, {WS}, s{T0+4} offen {SC}')
    def p3_put():
        X = 64
        for t in (f'v_add_f32 v{X}, v{X}, v{X+2}', f'v_add_f32 v{X+1}, v{X+1}, v{X+3}', f'v_add_f32 v{X+4}, v{X+4}, v{X+6}', f'v_add_f32 v{X+5}, v{X+5}, v{X+7}',
                  f'v_add_f32 v{X}, v{X}, v{X+4}', f'v_add_f32 v{X+1}, v{X+1}, v{X+5}', f'v_mov_b32 v{X+2}, v{X}', f'v_mov_b32 v{X+3}, v{X+1}',
                  f'v_permlane32_swap_b32 v{X}, v{X+2}', f'v_permlane32_swap_b32 v{X+1}, v{X+3}', f'v_add_f32 v{X}, v{X}, v{X+2}', f'v_add_f32 v{X+1}, v{X+1}, v{X+3}',
                  f'v_mul_f32 v{X}, {f2u(1.0/640)}, v{X}', f'v_mul_f32 v{X+1}, {f2u(1.0/640)}, v{X+1}',
                  f'v_fma_f32 v{X+1}, -v{X}, v{X}, v{X+1}', f'v_max_f32 v{X+1}, 0, v{X+1}', f'v_add_f32 v{X+1}, {f2u(EPS)}, v{X+1}', f'v_rsq_f32 v61, v{X+1}'): A(t)
        neg_mean_frag(A, 58, X, 56)
        A(f's_mul_i32 s{T0}, s{S_WAVE}, 384'); A(f's_add_u32 s{T0}, s{T0}, {STA}')
        A(f'v_lshl_add_u32 v56, v0, 2, s{T0}'); A('ds_write_b32 v56, v58')
        A(f'v_lshl_add_u32 v56, v42, 2, s{T0}'); A('ds_write_b32 v56, v61 offset:256')
        split_hilo(A, 58, 72, 57)
        A(f's_lshl_b32 s{T0}, s{S_WAVE}, 7'); A(f's_add_u32 s{T0}, s{T0}, {EXT}')
        A(f'v_lshl_add_u32 v56, v42, 2, s{T0}'); A('ds_write_b32 v56, v58')
    def w4_setup():
        A(f's_mul_i32 s{T0}, s{S_C2}, 48'); A(f's_mul_i32 s{T0+1}, s{S_KW}, 24'); A(f's_add_u32 s{T0}, s{T0}, s{T0+1}'); A(f's_add_u32 s{T0}, s{T0}, s{S_MW}')
        A(f's_mul_i32 s{T0}, s{T0}, 5120'); A(f's_add_u32 s{T0}, s{T0}, {W4F}')
        A(f's_mov_b32 s{S_AEND}, s{T0}')
    def s_dma():
        ok = newl('sk')
        A(f'v_cmp_ne_u32 vcc, v48, v{V_EP}')
        A.lines.append(f'    s_cbranch_vccz {ok}')
        sv = A.save(); flush_keep = list(pend)
        if pend:
            A.wait_tag(pend[-1]); pw_write(A, C_LP, LP[pend[-1]])
        wait_local(A, PH3, 0xf000); A.restore(sv)
        A.label(ok)
        A('v_lshrrev_b32 v56, 4, v0'); A('v_lshlrev_b32 v56, 9, v56'); A('v_and_b32 v57, 15, v0'); A('v_lshl_add_u32 v56, v57, 4, v56')
        A(f's_lshl_b32 s{T0}, s{S_KW}, 8'); A(f's_add_u32 s{T0}, s{T0}, s{S_TILE2}'); A(f's_add_u32 s{T0}, s{T0}, {SS}')
        for n in range(3):
            A(f's_add_u32 m0, s{S_G1}, {n*1024}')
            if n == 2: A('s_mov_b64 exec, 0xffffffff')
            A(f'buffer_load_dwordx4 v56, {WS}, s{T0} offen {SC} lds')
            if n < 2: A(f's_add_u32 s{T0}, s{T0}, 2048')
        A('s_mov_b64 exec, -1')
    pend = []
    def flush_pend(keep=0):
        while len(pend) > keep:
            k = pend.pop(0)
            if len(pend) > keep: continue
            A.wait_tag(k); pw_write(A, C_LP, LP[k])
    def wait_free(k):
        nf = needfree(k)
        if not nf: return
        bs = None
        if pend:
            last = max([j for j, (t, _) in enumerate(A.vm) if t == pend[-1]], default=None)
            yv = 63 if last is None else len(A.vm) - 1 - last
            bs = [f's_waitcnt vmcnt({yv})', f'v_mov_b32 v9, {LP[pend[-1]]}', f'ds_write_b32 v{V_MY}, v9 offset:{C_LP}']
        pw_read(A, C_CP); pw_check(A, C_CP, nf, before_spin=bs, sleep=env('LSLEEP', 2))
    def woff(k):
        n, i = k
        rot_, cnt, step, base = {'W3': (S_ROT3, 10, f's{S_RSTEP}', S_RTOT), 'W4': (S_ROT4, 12, 10240, S_AEND)}[n]
        A(f's_add_u32 s{S_RW}, s{rot_}, {i}'); A(f's_cmp_ge_u32 s{S_RW}, {cnt}'); A(f's_cselect_b32 s{T0}, {cnt}, 0'); A(f's_sub_u32 s{S_RW}, s{S_RW}, s{T0}')
        A(f's_mul_i32 s{S_RW}, s{S_RW}, {step}'); A(f's_add_u32 s{S_RW}, s{S_RW}, s{base}')
        if n == 'W4': A(f's_add_u32 s{T0}, s{S_RW}, 1024')
    def slot_of(k): return {'W2': W2S, 'W3': W3S, 'W4': W4S}[k[0]][k[1]]
    def dma(k, mid=None):
        n, i = k
        wait_free(k)
        if mid: mid()
        if n == 'P1':
            A(f'v_readlane_b32 s{T0}, v38, {i}'); A(f's_mul_i32 s{S_RW}, s{T0}, s{S_RSTEP}'); A(f's_add_u32 s{S_RW}, s{S_RW}, s{S_RTOT}'); A(f's_lshl_b32 s{S_AO}, s{T0}, 7')
            raw(i % 4, VW, k)
            if i == 0: A.barrier()
            A(f's_add_u32 m0, s{S_LX}, {XR + (i % 4) * 16384}')
            for j in range(4):
                A(f'buffer_load_dwordx4 v{VX+j}, {XS}, s{S_AO} offen offset:{j*1024} lds', tag=k)
            advance(A, S_AO, 128, S_AEND, S_ATOT)
            if i in (0, 2, 4, 6): stamp(A, 12 + i // 2)
        elif n == 'W2': raw(W2S[i], 200, k)
        elif n == 'W3':
            woff(k)
            for j in range(5):
                if j in (0, 4): A(f's_add_u32 m0, s{S_LW}, {W3S[i] * SLOT + (1024 if j == 4 else 0)}')
                A(f'buffer_load_dwordx4 v{VW+j}, {WSRD}, s{S_RW} offen offset:{min(j,3)*1024} lds', tag=k)
        else:
            woff(k)
            A(f's_add_u32 m0, s{S_LW}, {W4S[i] * SLOT}')
            for j in range(4): A(f'buffer_load_dwordx4 v{V_L16}, {WS}, s{S_RW} offen offset:{j*1024} {SC} lds', tag=k)
            A(f's_add_u32 m0, s{S_LW}, {W4S[i] * SLOT + 1024}')
            A(f'buffer_load_dwordx4 v{V_L16}, {WS}, s{T0} offen offset:3072 {SC} lds', tag=k)
        pend.append(k)
        flush_pend(1)
    freeb = [136, 156, 176, 208, 228]
    held = {}
    THIN = env('THIN', 0)
    def rload(k, thin=False):
        r = freeb.pop(0); held[k] = r
        woff(k)
        for j in range(5):
            if k[0] == 'W3': A(f'buffer_load_dwordx4 v[{r+4*j}:{r+4*j+3}], v{VW+j}, {WSRD}, s{S_RW} offen offset:{min(j,3)*1024}', tag=('Wr', k))
            else: A(f'buffer_load_dwordx4 v[{r+4*j}:{r+4*j+3}], v{V_L16}, {WS}, s{S_RW if j<4 else T0} offen offset:{(j if j<4 else 3)*1024} {SC}', tag=('Wr', k))
            if thin and THIN: A.waitcnt(vm=THIN)
        flush_pend(0)
    def rput(k):
        flush_pend(0)
        wait_free(k)
        r = held.pop(k); freeb.append(r)
        A(f's_add_u32 s{T0}, s{S_LW}, {slot_of(k) * SLOT}'); A(f'v_add_u32 v60, s{T0}, v{V_L16}')
        for j in range(5): A(f'ds_write_b128 v60, v[{r+4*j}:{r+4*j+3}] offset:{1024*j}')
        pw_write(A, C_LP, LP[k])
        A.waitcnt(lg=0)
    P1 = lambda i: ('P1', i); W2 = lambda i: ('W2', i); W3 = lambda i: ('W3', i); W4 = lambda i: ('W4', i)
    def mark(k):
        flush_pend(0); pw_write(A, C_LP, LP[k])
    gate = lambda c: wait_free(('GATE', c))
    dma(P1(0)); late_setup()
    LNP, PBP = env('LNP', 3), env('PBP', 5)
    for i in range(1, 9):
        dma(P1(i), mid=xt_dma if i == env('XTP', 4) else None)
        if i == LNP: gate(('LN', 0)); ln_store()
        if i == PBP: pub(PH0, False)
    dma(P1(9), mid=lambda: flag_issue(PH0, 48)); g0_eval(); st_load()
    stamp(A, 2); w2_setup(); side_load()
    flush_pend(0); st_put(); mark(('ST', 0))
    for i in range(5): dma(W2(i))
    stamp(A, 3); w3_setup(); w4_setup(); side_do(); stamp(A, 4)
    G1 = env('G1', 2)
    if G1 == 1: gate(('E1', 1))
    if G1 >= 2: gate(('W2', G1 - 2))
    dma(W3(0)); dma(W3(1))
    publish(A, PHR, 4, fast=False, tag='none'); pubn[4] += 1
    ST3, ST4 = env('ST3', 0), env('ST4', 0)
    def s_flag():
        A('v_lshlrev_b32 v49, 2, v0'); A('v_and_b32 v49, 12, v49'); A('v_add_u32 v49, 48, v49')
        A(f's_lshl_b32 s{T0+5}, s{S_RG}, 9'); A(f's_add_u32 s{T0+5}, s{T0+5}, {FAST + PH3*64}')
        A(f'buffer_load_dword v48, v49, {WS}, s{T0+5} offen sc1')
    OP = env('OPOS', 2)
    for i in range(10 - ST3, 10): rload(W3(i))
    for i in range(2, 7):
        if i == OP: dma(W3(i), mid=f1_issue); o_load(0)
        else: dma(W3(i))
        if i == OP + 1: o_do()
        if i == OP + 2: pub(PH2O, True); stamp(A, 6)
    stamp(A, 5)
    put3 = lambda i, mid=None: (wait_free(W3(i)), mid() if mid else None, rput(W3(i))) if i >= 10 - ST3 else dma(W3(i), mid=mid)
    put3(7, lambda: (flag_issue(PHR, 48), p3_l1())); flag_eval(PHR, 48)
    put3(8, p3_l2)
    put3(9); p3_put(); mark(('ST', 1)); stamp(A, 7)
    if env('ST4E', 1):
        for i in range(12 - ST4, 12): rload(W4(i), True)
    for i in range(7): dma(W4(i))
    stamp(A, 9)
    if not env('ST4E', 1):
        for i in range(12 - ST4, 12): rload(W4(i), True)
    for i in range(7, 12):
        mid = s_flag if i == SPOS - 1 else (s_dma if i == SPOS else None)
        if i >= 12 - ST4:
            rput(W4(i))
            if mid: mid()
        else: dma(W4(i), mid=mid)
    A.vm.append(('x', set())); A.waitcnt(vm=0); pend.clear(); pw_write(A, C_LP, LP[('S', 0)])
    stamp_out(A)
    A('s_endpgm')

def spread(slots_after, ops):
    out = [[] for _ in slots_after]; i = 0
    for g, cap in enumerate(slots_after):
        while cap > 0 and i < len(ops): out[g].append(ops[i]); i += 1; cap -= 1
    assert i == len(ops), (len(ops), slots_after)
    return out

def mainloop(A, nsteps, spc, mfmas, reads, item, aload, hooks, caps, st0, cached=False, rel=None, waits=None):
    nch = nsteps // spc
    if cached:
        A(f's_mov_b32 s{S_LPC}, 0'); lp_cached(A, LP[item(0)])
    else:
        pw_read(A, C_LP); pw_check(A, C_LP, LP[item(0)], sleep=0)
    stamp(A, st0); A.inloop = True
    for r in reads(0): A(r, tag=('r', 0))
    for s in range(nsteps):
        c, p = divmod(s, spc)
        ops = []
        EX = os.environ.get('EXP', '')
        if p == spc - 1 and c + 1 < nch and 'nochk' not in EX:
            if cached: ops.append(lambda c=c: lp_cached(A, LP[item(c + 1)]))
            else: ops.append(lambda c=c: pw_check(A, C_LP, LP[item(c + 1)], sleep=0, pre=bool(env('SPLITCHK', 1))))
        if not cached and (p + 2) % spc == 0 and c + 1 < nch and 'nord' not in EX: ops.append(lambda: pw_read(A, C_LP))
        if p == 0 and c > 0 and (rel is None or c - 1 in rel) and 'norel' not in EX: ops.append(lambda c=c: pw_write(A, C_CP, CP[item(c - 1)]))
        if s + 1 < nsteps: ops += [lambda r=r, s=s: A(r, tag=('r', s + 1)) for r in reads(s + 1)]
        al = aload(c)
        per = (len(al) + spc - 1) // spc
        ops += al[p * per:(p + 1) * per]
        ops += hooks.get(s, [])
        if not cached and env('SPLITCHK', 1) and (p + 2) % spc == 0 and c + 1 < nch: ops.append(lambda c=c: pw_cmp(A, LP[item(c + 1)]))
        ms = mfmas(s)
        cp = list(caps)
        while sum(cp) < len(ops): cp = [x + 1 for x in cp]
        sp = spread(cp, ops)
        for g, m in enumerate(ms):
            if waits is not None and g == waits and s > 0: A.wait_lds_tag(('r', s))
            for x in m: A(x)
            for o in sp[g]: o()
    if rel is None or nch - 1 in rel: pw_write(A, C_CP, CP[item(nch - 1)])
    stamp(A, st0 + 1); A.inloop = False

def compute(A):
    G.PR = 144
    D1, D2 = env('D1', 2), env('D2', 2)
    A('s_getpc_b64 s[4:5]'); A.label('L_pc')
    A(f's_sub_u32 s4, s4, L_pc-{KN}'); A('s_subb_u32 s5, s5, 0')
    A('s_lshr_b32 s6, s2, 3'); A('s_lshl_b32 s6, s6, 11')
    A('v_and_b32 v1, 15, v0'); A('v_lshl_add_u32 v1, v1, 7, s6'); A(f'v_min_u32 v1, L_end-{KN}, v1')
    A('global_load_dword v2, v1, s[4:5]')
    A.vm = [('pf', set())]
    A('v_mov_b32 v9, 0'); A('v_lshlrev_b32 v1, 2, v0'); A(f'v_add_u32 v1, {CTRL}, v1')
    A(f's_cmp_lg_u32 s{S_W8}, 0'); A('s_cbranch_scc1 L_noinit')
    A('s_mov_b64 exec, 0xffffffff'); A('ds_write_b32 v1, v9'); A('s_mov_b64 exec, -1')
    A.label('L_noinit')
    A('v_lshrrev_b32 v40, 5, v0'); A(f's_lshl_b32 s{T0}, s{S_WAVE}, 1'); A(f'v_add_u32 v41, s{T0}, v40'); A('v_and_b32 v42, 31, v0')
    A('v_mul_u32_u24 v43, 1280, v41'); A('v_lshl_add_u32 v43, v42, 4, v43')
    A('v_cmp_gt_u32 vcc, 16, v42'); A(f'v_cndmask_b32 v44, v{VOOB}, v43, vcc')
    A(f's_mul_i32 s{T0+8}, s{S_Q}, 10240')
    A.lines.append('    s_waitcnt lgkmcnt(0)'); A.lg = []; A.smem = False
    stamp(A, 1)
    srd(A, SRD_X, S_X, 2048 * 1280)
    A(f'buffer_load_dwordx4 v[16:19], v43, {XS}, s{T0+8} offen')
    A(f'buffer_load_dwordx4 v[20:23], v43, {XS}, s{T0+8} offen offset:512')
    A(f'buffer_load_dwordx4 v[24:27], v44, {XS}, s{T0+8} offen offset:1024')
    A.barrier()
    A(f's_mov_b32 s{S_FASTOK}, {env("FASTOK", 1)}')
    ids_p1(A); ids_late(A)
    A(f's_mul_i32 s{T0+3}, s{S_WAVE}, 2560'); A(f's_add_u32 s{T0+3}, s{T0+3}, {XT}')
    for n in range(3):
        A(f'v_add_u32 v56, {64*n}, v0'); div_magic(A, 57, 58, 56, 10, 59)
        A('v_mul_u32_u24 v59, 1280, v57'); A(f'v_lshl_add_u32 v{VROW+n}, v58, 4, v59')
    A('v_cmp_gt_u32 s[6:7], 32, v0'); A(f'v_cndmask_b32 v{VROW+2}, v{VOOB}, v{VROW+2}, s[6:7]')
    A(f'v_add_u32 v{VXT}, s{T0+3}, v{V_L16}')
    A('v_and_b32 v57, 15, v0'); A('v_mul_u32_u24 v57, 160, v57'); A('v_lshrrev_b32 v56, 4, v0'); A('v_lshl_add_u32 v57, v56, 3, v57'); A(f'v_add_u32 v{VXT+3}, s{T0+3}, v57')
    A(f'v_lshl_add_u32 v{VXT+4}, v40, 4, v{VXT+3}')
    A('v_lshlrev_b32 v56, 4, v42'); A('v_lshl_add_u32 v56, v40, 3, v56'); A(f'v_add_u32 v{VXT+1}, s{T0+3}, v56')
    A(f's_mul_i32 s{T0}, s{S_WAVE}, 384'); A(f's_add_u32 s{T0}, s{T0}, {STA}')
    A(f'v_lshl_add_u32 v{VXT+2}, v0, 2, s{T0}'); A(f'v_lshl_add_u32 v{VXT+5}, v42, 2, s{T0}')
    A(f's_lshl_b32 s{T0}, s{S_WAVE}, 7'); A(f's_add_u32 s{T0}, s{T0}, {STB}'); A('v_and_b32 v57, 15, v0'); A(f'v_lshl_add_u32 v{VXT+6}, v57, 3, s{T0}')
    A(f's_lshl_b32 s{S_ROWS2}, s{S_TT2}, 1'); A(f's_add_u32 s{S_ROWS2}, s{S_ROWS2}, s{S_KW}')
    A(f's_mul_i32 s{S_ROWS2}, s{S_ROWS2}, {16*1280}'); A(f's_mul_i32 s{T0}, s{S_C2}, 160'); A(f's_add_u32 s{S_ROWS2}, s{S_ROWS2}, s{T0}')
    A(f's_mul_i32 s{S_G1}, s{S_TT1}, 40960')
    srd(A, SRD_WS, S_WS, WS_SIZE); srd(A, SRD_OUT, S_OUT, 2048 * 1280)
    A('v_bfe_u32 v56, v0, 2, 2'); A('v_lshl_add_u32 v58, v40, 3, v56'); A('v_mul_u32_u24 v58, 320, v58')
    A('v_bfe_u32 v57, v0, 4, 1'); A('v_lshl_add_u32 v58, v57, 5, v58'); A('v_and_b32 v57, 3, v0'); A('v_lshl_add_u32 v58, v57, 3, v58')
    A('v_bfe_u32 v59, v0, 1, 3'); A('v_xor_b32 v59, v59, v40')
    A(f's_lshl_b32 s{T0}, s{S_WAVE}, 12'); A(f's_add_u32 s{T0}, s{T0}, {XR}'); A('v_lshlrev_b32 v60, 7, v42'); A(f'v_add_u32 v60, s{T0}, v60')
    for p in range(4):
        A(f's_add_u32 s{T0}, s{S_WAVE}, {p}'); A(f's_and_b32 s{T0}, s{T0}, 3'); A(f's_mul_i32 s{T0+1}, s{T0}, 5120'); A(f's_lshl_b32 s{T0}, s{T0}, 1')
        A(f'v_add_u32 v{VRD+2*p}, s{T0+1}, v58'); A(f'v_add_u32 v{VRD+2*p+1}, {3*SLOT}, v{VRD+2*p}')
        A(f'v_xor_b32 v61, s{T0}, v59'); A(f'v_lshl_add_u32 v{VRD+8+p}, v61, 4, v60')
    SEL, CSA, XF = RING, RING + 4, RING + 24
    A('v_bfe_u32 v56, v0, 2, 1'); A('v_bfe_u32 v57, v0, 4, 1'); A('v_cmp_eq_u32 s[6:7], v56, v57'); A('v_mov_b32 v56, 0x3f803f80')
    for i in range(4): A(f'v_cndmask_b32 v{SEL+i}, 0, v56, s[6:7]')
    A('v_lshrrev_b32 v56, 4, v0'); A('v_lshlrev_b32 v56, 9, v56')
    A('v_and_b32 v57, 15, v0'); A('v_lshlrev_b32 v57, 4, v57')
    A(f's_lshl_b32 s{T0}, s{S_KW}, 8'); A(f'v_add_u32 v57, s{T0}, v57')
    A(f'v_add_u32 v{VA}, v56, v57'); A(f'v_xor_b32 v{VA+1}, 256, v{VA}')
    A('v_and_b32 v56, 512, v56'); A('v_add_u32 v57, v56, v57'); A(f'v_lshl_add_u32 v{VA+2}, v40, 3, v57')
    A('s_setprio 2')
    stamp(A, 2)
    F = 64
    unpack(A, F, 16, 12)
    A(f'v_pk_add_f32 v[56:57], v[{F}:{F+1}], v[{F+2}:{F+3}]')
    for i in range(2, 12): A(f'v_pk_add_f32 v[56:57], v[56:57], v[{F+2*i}:{F+1+2*i}]')
    A('v_add_f32 v56, v56, v57')
    allreduce32(A, 56, 57)
    A(f'v_mul_f32 v60, {f2u(1.0/640)}, v56')
    A('v_cndmask_b32 v58, 0, v60, vcc')
    for i in range(12):
        m = 60 if i < 8 else 58
        A(f'v_pk_add_f32 v[{F+2*i}:{F+1+2*i}], v[{F+2*i}:{F+1+2*i}], v[{m}:{m+1}] op_sel_hi:[1,0] neg_lo:[0,1] neg_hi:[0,1]')
    A(f'v_pk_mul_f32 v[56:57], v[{F}:{F+1}], v[{F}:{F+1}]')
    for i in range(1, 12): A(f'v_pk_fma_f32 v[56:57], v[{F+2*i}:{F+1+2*i}], v[{F+2*i}:{F+1+2*i}], v[56:57]')
    A('v_add_f32 v56, v56, v57')
    allreduce32(A, 56, 57)
    A(f'v_mul_f32 v56, {f2u(1.0/640)}, v56'); A(f'v_add_f32 v56, {f2u(EPS)}, v56'); A('v_rsq_f32 v61, v56')
    A(f's_lshl_b32 s{T0}, s{S_WAVE}, 7'); A(f's_add_u32 s{T0}, s{T0}, {STB}'); A(f'v_lshl_add_u32 v56, v40, 3, s{T0}')
    A('ds_write_b64 v56, v[60:61]')
    pw_write(A, C_CP, CP[('LN', 0)])
    stamp(A, 3)
    TP = [[0, 4], [1], [2], [3]]
    def reads1(s):
        c, p = divmod(s, 4); slot = c % 4
        r = [f'ds_read_b128 v[{XF+4*(s%2)}:{XF+4*(s%2)+3}], v{VRD+8+p} offset:{(c % 4) * 16384}']
        for t in range(5):
            b = WF + (s % 2) * 20 + 4 * t; off = (slot % 3) * SLOT + t * 64
            r.append(f'ds_read_b64_tr_b16 v[{b}:{b+1}], v{VRD + 2*p + slot // 3} offset:{off}')
            r.append(f'ds_read_b64_tr_b16 v[{b+2}:{b+3}], v{VRD + 2*p + slot // 3} offset:{off + 4 * 320}')
        return r
    def mf1(s):
        c, p = divmod(s, 4); xb = XF + 4 * (s % 2); out = []
        for t in range(5):
            b = WF + (s % 2) * 20 + 4 * t
            cc = '0' if s == 0 else f'v[{ACC+16*t}:{ACC+16*t+15}]'
            g = []
            if t in TP[p] and (c == 0 or not env('NOCS', 0)):
                c2 = '0' if c == 0 else f'v[{CSA+4*t}:{CSA+4*t+3}]'
                g.append(f'v_mfma_f32_16x16x32_bf16 v[{CSA+4*t}:{CSA+4*t+3}], v[{SEL}:{SEL+3}], v[{b}:{b+3}], {c2}')
            g.append(f'v_mfma_f32_32x32x16_bf16 v[{ACC+16*t}:{ACC+16*t+15}], v[{b}:{b+3}], v[{xb}:{xb+3}], {cc}')
            out.append(g)
        return out
    def xt_read1():
        for n in range(3): A(f'ds_read_b128 v[{KX+4*n}:{KX+3+4*n}], v{VXT} offset:{1024*n}')
    def xt_read2(fs):
        for f in fs:
            base, off = (VXT + 4, 64 * (f // 2) + 16 * (f % 2)) if f < 4 else (VXT + 3, 128)
            A(f'ds_read_b64 v[{KX1+2*f}:{KX1+1+2*f}], v{base} offset:{off}')
    def ext_prep():
        A(f'v_and_b32 v57, 31, v0'); A('v_lshlrev_b32 v57, 4, v57'); A(f'v_add_u32 v57, {EXT}, v57')
        A(f's_lshl_b32 s{T0}, s{S_WAVE}, 2'); A(f'v_add_u32 v58, s{T0}, v57')
    MF = RING + 32
    def st_read():
        A(f'ds_read_b32 v{MF}, v{VXT+2}'); A(f'ds_read_b32 v60, v{VXT+5} offset:256')
    def st_read2():
        A(f'ds_read_b64 v[{KST}:{KST+1}], v{VXT+6}'); A(f'ds_read_b32 v{V_EP}, v{V_CT} offset:72')
    def ext_prep3():
        for i in range(1, 4): A(f'v_mov_b32 v{MF+i}, v{MF}')
    hooks = {21: [xt_read1], 25: [lambda: xt_read2((0, 1, 2))], 29: [lambda: xt_read2((3, 4))], 33: [ext_prep], 38: [lambda: pw_read(A, C_LP)], 39: [lambda: pw_check(A, C_LP, LP[('ST', 0)], sleep=0), st_read, st_read2]}
    if STAMP:
        for st_, sid in ((8, 4), (16, 16), (24, 26), (32, 27)): hooks.setdefault(st_, []).append(lambda sid=sid: stamp(A, sid))
    mainloop(A, 40, 4, mf1, reads1, lambda c: ('P1', c), lambda c: [], hooks, eval(os.environ.get('CAPS1', '[3, 3, 3, 2, 2]')), 7)
    for t in (0, 4, 1, 2, 3):
        split_hilo(A, 20 + t, CSA + 4 * t, 56)
        A(f'ds_write_b32 v58, v{20+t} offset:{512*t}')
    ext_prep3()
    gbar(A, C_CB)
    for t in range(5): A(f'ds_read_b128 v[{28+4*t}:{31+4*t}], v57 offset:{512*t}')
    for t in range(5):
        A(f'v_mfma_f32_32x32x16_bf16 v[{ACC+16*t}:{ACC+16*t+15}], v[{28+4*t}:{31+4*t}], v[{MF}:{MF+3}], v[{ACC+16*t}:{ACC+16*t+15}]')
    T = RING
    SO = T0 + 9
    def store_tiles(nt, fn):
        for t in range(nt):
            fn(t)
            d = 24 + 8 * (t % 2)
            pack(A, d, ACC + 16 * t, 16)
            if t in (2, 4): A(f's_add_u32 s{SO}, s{SO}, 4096')
            for hh in range(2):
                A(f'buffer_store_dwordx4 v[{d+4*hh}:{d+4*hh+3}], v{V_L16}, {WS}, s{SO} offen offset:{((2*t+hh)%4)*1024} {SC}')
    A(f's_cmp_lt_u32 s{S_M}, 12'); A('s_cbranch_scc1 L_p1_qkv')
    st = A.save(); gsave = dict(gen)
    pw_write(A, C_CP, CP[('E1', 0)])
    A('v_mul_f32 v56, v60, v60'); A(f'v_mov_b32 v57, {f2u(1.0+EPS)}'); A(f'v_fmac_f32 v57, {f2u(-EPS)}, v56'); A('v_rsq_f32 v57, v57'); A('v_mul_f32 v60, v60, v57')
    gelu_consts(A, 60)
    A(f's_sub_u32 s{SO}, s{S_M}, 12'); A(f's_mul_i32 s{SO}, s{SO}, 10240'); A(f's_add_u32 s{SO}, s{SO}, s{S_G1}'); A(f's_add_u32 s{SO}, s{SO}, {HS}')
    store_tiles(5, lambda t: gelu_pk(A, ACC + 16 * t, 16, 56, 58, 62, T))
    A('s_branch L_p1_done')
    A.label('L_p1_qkv'); A.restore(st)
    A(f'v_mul_f32 v56, {f2u(LOG2E)}, v60'); A('v_rcp_f32 v58, v60'); A(f'v_mul_f32 v58, {f2u(1e-6)}, v58')
    A(f's_cmp_ge_u32 s{S_J1}, 4'); A('s_cbranch_scc1 L_p1_kv')
    st = A.save()
    pw_write(A, C_CP, CP[('E1', 0)])
    A(f's_mul_i32 s{SO}, s{S_J1}, 10240'); A(f's_mul_i32 s{T0}, s{S_TP1}, 40960'); A(f's_add_u32 s{SO}, s{SO}, s{T0}'); A(f's_add_u32 s{SO}, s{SO}, {PQ}')
    store_tiles(5, lambda t: phi_pk(A, ACC + 16 * t, 16, 56, 58, 60, T))
    A('s_branch L_p1_done')
    A.label('L_p1_kv'); A.restore(st)
    KVB = 4 * SLOT
    A(f's_lshl_b32 s{T0}, s{S_WAVE}, 5'); A('v_and_b32 v62, 31, v0'); A(f'v_add_u32 v62, s{T0}, v62'); A('v_mul_u32_u24 v62, 328, v62'); A(f'v_add_u32 v62, {KVB}, v62')
    A('v_lshrrev_b32 v63, 5, v0'); A('v_lshl_add_u32 v63, v63, 3, v62')
    A(f'v_mov_b32 v{T+40}, 0x3f803f80'); A(f'v_mov_b32 v{T+41}, 0x3f803f80')
    A(f'ds_write_b64 v62, v[{T+40}:{T+41}] offset:320')
    for i in range(40, 80, 2): A(f'v_pk_mul_f32 v[{ACC+i}:{ACC+i+1}], v[{ACC+i}:{ACC+i+1}], v[60:61] op_sel_hi:[1,0]')
    pack(A, 36, ACC + 40, 40)
    for u in range(10, 20): A(f'ds_write_b64 v63, v[{16+2*u}:{17+2*u}] offset:{16*u}')
    for hf in range(2):
        phi_pk(A, ACC + 20 * hf, 20, 56, 58, 60, T)
        pack(A, 16 + 10 * hf, ACC + 20 * hf, 20)
        for u in range(5 * hf, 5 * hf + 5): A(f'ds_write_b64 v63, v[{16+2*u}:{17+2*u}] offset:{16*u}')
    A('v_bfe_u32 v60, v0, 2, 2'); A('v_lshrrev_b32 v61, 5, v0'); A('v_lshl_add_u32 v60, v61, 2, v60'); A('v_mul_u32_u24 v60, 328, v60'); A(f'v_add_u32 v60, {KVB}, v60')
    A('v_bfe_u32 v61, v0, 4, 1'); A('v_and_b32 v58, 3, v0'); A('v_lshl_add_u32 v61, v61, 2, v58')
    A('v_lshlrev_b32 v58, 3, v61')
    A(f'v_add_u32 v59, s{T0}, v58'); A('v_add_u32 v59, v59, v60')
    A(f's_mul_i32 s{T0+1}, s{S_WAVE}, 40'); A(f's_add_u32 s{T0+1}, s{T0+1}, 160'); A(f'v_add_u32 v58, s{T0+1}, v58')
    A('v_cmp_gt_u32 vcc, 5, v61'); A('v_mov_b32 v61, 320'); A('v_cndmask_b32 v58, v61, v58, vcc'); A('v_add_u32 v58, v58, v60')
    gbar(A, C_CB)
    stamp(A, 5)
    for ks in range(8):
        for t in range(2):
            A(f'ds_read_b64_tr_b16 v[{64+8*ks+2*t}:{65+8*ks+2*t}], v59 offset:{(16*ks+8*t)*328}')
            A(f'ds_read_b64_tr_b16 v[{68+8*ks+2*t}:{69+8*ks+2*t}], v58 offset:{(16*ks+8*t)*328}')
    A(f's_lshl_b32 s{T0+8}, s{S_WAVE}, 11'); A(f's_add_u32 s{T0+8}, s{T0+8}, {KVB + 43008}')
    A('v_and_b32 v20, 31, v0'); A('v_lshrrev_b32 v21, 5, v0'); A(f'v_subrev_u32 v21, s{S_WAVE}, v21'); A('v_cmp_gt_u32 s[6:7], 21, v20')
    for j in range(4):
        A(f'v_add_u32 v22, {2*j}, v21'); A('v_cmp_gt_u32 vcc, 5, v22'); A('v_mad_u32_u24 v22, v22, 21, v20'); A(f'v_lshl_add_u32 v22, v22, 4, s{T0+8}')
        A('s_and_b64 vcc, vcc, s[6:7]'); A(f'v_cndmask_b32 v{16+j}, v{VOOB}, v22, vcc')
    A(f'v_lshlrev_b32 v21, 2, v0'); A(f'v_add_u32 v20, s{T0+8}, v21')
    A('v_cmp_gt_u32 vcc, 36, v0'); A(f'v_cndmask_b32 v22, v{VOOB}, v21, vcc')
    for ks in range(8):
        A(f'v_mfma_f32_32x32x16_bf16 v[{T}:{T+15}], v[{64+8*ks}:{67+8*ks}], v[{68+8*ks}:{71+8*ks}], {"0" if ks==0 else f"v[{T}:{T+15}]"}')
    A(f's_sub_u32 s{T0}, s{S_J1}, 4'); A(f's_lshl_b32 s{T0}, s{T0}, 2'); A(f's_add_u32 s{T0}, s{T0}, s{S_WAVE}'); A(f's_lshl_b32 s{T0}, s{T0}, 11'); A(f's_add_u32 s{T0}, s{T0}, {KVS}')
    for j in range(4): A(f'ds_write_b128 v{16+j}, v[{T+4*j}:{T+4*j+3}]')
    for r in range(7): A(f'ds_read_b32 v{T+16+r}, v20 offset:{256*r}')
    for r in range(7): A(f'buffer_atomic_add_f32 v{T+16+r}, v{21 if r < 6 else 22}, {WS}, s{T0} offen offset:{256*r}')
    pw_write(A, C_CP, CP[('E1', 0)])
    A.label('L_p1_done'); A.hist = []; A.nop(2)
    stamp(A, 9)
    A(f's_mul_i32 s{T0}, s{S_KW}, 10240')
    tr160_bases(A, VRD, VRD + 1, T0)
    A(f'v_add_u32 v{VRD+2}, {3*SLOT}, v{VRD}'); A(f'v_add_u32 v{VRD+3}, {3*SLOT}, v{VRD+1}')
    A(f's_mul_i32 s{T0}, s{S_KW}, 20480'); A(f's_mul_i32 s{T0+1}, s{S_TT2}, 40960'); A(f's_add_u32 s{T0}, s{T0}, s{T0+1}'); A(f's_add_u32 s{T0}, s{T0}, {HS}')
    set_stream(A, S_AO, S_AEND, S_ATOT, T0, S_ROT2, 4096, 5)
    unpack(A, ACC, KX1, 10)
    A(f'v_mov_b32 v62, v{KST}'); A(f'v_mov_b32 v60, v{KST+1}')
    for i in range(0, 20, 2): A(f'v_pk_fma_f32 v[{ACC+i}:{ACC+i+1}], v[{ACC+i}:{ACC+i+1}], v[60:61], v[62:63] op_sel_hi:[1,0,0] neg_lo:[0,0,1] neg_hi:[0,0,1]')
    def red_setup(slot):
        A(f's_add_u32 s{T0}, s{S_LW}, {slot*SLOT}')
        A(f's_xor_b32 s{T0+1}, s{S_WAVE}, 2'); A(f's_mul_i32 s{T0+1}, s{T0+1}, 5120'); A(f's_add_u32 s{T0+1}, s{T0+1}, {slot*SLOT}')
        A(f'v_add_u32 v{VRD+8}, s{T0}, v{V_L16}'); A(f'v_add_u32 v{VRD+9}, s{T0+1}, v{V_L16}')
    red_setup(W2S[0])
    A(f'v_lshlrev_b32 v{VRD+10}, 3, v0'); A('v_cmp_gt_u32 vcc, 16, v0'); A(f'v_cndmask_b32 v{VRD+10}, v{VOOB}, v{VRD+10}, vcc')
    publish(A, PH1, 0, defer=False, f1=True); pubn[0] += 1
    pw_write(A, C_CP, CP[('E1', 1)])
    stamp(A, 10)
    wait_local(A, PH1, 0xf000)
    stamp(A, 11)
    def e2(N, slots, name, raw, hooks, st0, rel=None):
        def aops(c):
            def op(st_, u):
                b = RING + 16 * (c % 4) + 8 * st_ + 4 * u
                A(f'buffer_load_dwordx4 v[{b}:{b+3}], v{VA+u}, {WS}, s{S_AO} offen offset:{st_*2048} {SC}', tag=('A', c))
                if st_ == 1 and u == 1: advance(A, S_AO, 4096, S_AEND, S_ATOT)
            return [lambda st_=st_, u=u: op(st_, u) for st_ in range(2) for u in range(2)]
        def reads(S):
            c, st_ = divmod(S, 2); slot = slots[c]; r = []
            for f in range(5):
                b = WF + (S % 2) * 20 + 4 * f
                if raw:
                    base = VRD + 2 * (slot // 3) + (1 if f < 4 else 0)
                    off = (slot % 3) * SLOT + st_ * 5120 + (64 * (f // 2) + 16 * (f % 2) if f < 4 else 128)
                    r.append(f'ds_read_b64_tr_b16 v[{b}:{b+1}], v{base} offset:{off}')
                    r.append(f'ds_read_b64_tr_b16 v[{b+2}:{b+3}], v{base} offset:{off + 8 * 160}')
                else:
                    r.append(f'ds_read_b128 v[{b}:{b+3}], v{VRD + slot // 3} offset:{(slot % 3) * SLOT + st_ * 5120 + f * 1024}')
            return r
        def mf(S):
            c, st_ = divmod(S, 2); out = []
            for u in range(2):
                for f in range(5):
                    b = WF + (S % 2) * 20 + 4 * f; acc = ACC + 20 * u + 4 * f
                    cc = '0' if (S == 0 and u == 1) else f'v[{acc}:{acc+3}]'
                    ab = RING + 16 * (c % 4) + 8 * st_ + 4 * u
                    out.append([f'v_mfma_f32_16x16x32_bf16 v[{acc}:{acc+3}], v[{b}:{b+3}], v[{ab}:{ab+3}], {cc}'])
            return out
        for c in range(D2): run(aops(c))
        caps = [1, 2, 2, 2, 2, 2, 1, 1, 1, 1] if raw else [1] * 10
        mainloop(A, 2 * N, 2, mf, reads, lambda c: (name, c), lambda c: aops(c + D2) if c + D2 < N else [], hooks, caps, st0, cached=True, rel=rel, waits=env('E2WAIT', 1))
    def e2_reduce(t, need):
        pw_read(A, C_CP); pw_check(A, C_CP, need, sleep=0)
        for f in range(5): A(f'ds_write_b128 v{VRD+8}, v[{ACC+20+4*f}:{ACC+23+4*f}] offset:{f*1024}')
        gbar(A, C_CB)
        for f in range(5): A(f'ds_read_b128 v[{t+4*f}:{t+4*f+3}], v{VRD+9} offset:{f*1024}')
        for i in range(0, 20, 2): A(f'v_pk_add_f32 v[{ACC+i}:{ACC+i+1}], v[{ACC+i}:{ACC+i+1}], v[{t+i}:{t+i+1}]')
    e2(5, W2S, 'W2', True, {}, 12)
    e2_reduce(104, CP[('W2', 0)])
    pw_write(A, C_CP, CP[('E2', 0)])
    pack(A, KX1, ACC, 20)
    A(f's_add_u32 s{T0}, s{S_TILE2}, {X1}'); A(f's_add_u32 s{T0+1}, s{T0}, 4096')
    A(f'buffer_store_dwordx4 v[{KX1}:{KX1+3}], v{VA}, {WS}, s{T0} offen {SC}')
    A(f'buffer_store_dwordx4 v[{KX1+4}:{KX1+7}], v{VA}, {WS}, s{T0} offen offset:2048 {SC}')
    A(f'buffer_store_dwordx2 v[{KX1+8}:{KX1+9}], v{VA+2}, {WS}, s{T0+1} offen {SC}')
    A('v_mov_b32 v26, 0x3f803f80'); A('v_mov_b32 v28, 0'); A('v_mov_b32 v29, 0')
    for i in range(10):
        A(f'v_dot2c_f32_bf16 v28, v{KX1+i}, v26'); A(f'v_dot2c_f32_bf16 v29, v{KX1+i}, v{KX1+i}')
    for sw in ('v_permlane16_swap_b32', 'v_permlane32_swap_b32'):
        A('v_mov_b32 v30, v28'); A('v_mov_b32 v31, v29'); A(f'{sw} v28, v30'); A(f'{sw} v29, v31')
        A('v_add_f32 v28, v28, v30'); A('v_add_f32 v29, v29, v31')
    A(f's_lshl_b32 s{T0}, s{S_TT2}, 1'); A(f's_add_u32 s{T0}, s{T0}, s{S_KW}'); A(f's_lshl_b32 s{T0}, s{T0}, 7')
    A(f's_lshl_b32 s{T0+1}, s{S_C2}, 14'); A(f's_add_u32 s{T0}, s{T0}, s{T0+1}'); A(f's_add_u32 s{T0}, s{T0}, {ST1}')
    A(f'buffer_store_dwordx2 v[28:29], v{VRD+10}, {WS}, s{T0} offen {SC}')
    stamp(A, 14)
    A(f's_cmp_ge_u32 s{S_M}, 12'); A(f's_cselect_b32 s{T0}, {(OO-X1) & 0xffffffff}, 0')
    A(f's_add_u32 s{T0}, s{T0}, s{S_G1}'); A(f's_add_u32 s{T0}, s{T0}, {X1}')
    set_stream(A, S_AO, S_AEND, S_ATOT, T0, S_ROT3, 4096, 10)
    def e1_rd_setup(RS, swz):
        A('v_bfe_u32 v56, v0, 2, 2'); A('v_lshrrev_b32 v57, 5, v0'); A('v_lshl_add_u32 v58, v57, 2, v56')
        A(f'v_mul_u32_u24 v58, {RS}, v58')
        A('v_bfe_u32 v57, v0, 4, 1'); A('v_lshl_add_u32 v58, v57, 5, v58')
        A('v_and_b32 v57, 3, v0'); A('v_lshl_add_u32 v58, v57, 3, v58')
        if not swz:
            for g in range(3): A(f'v_add_u32 v{VRD+g}, {g*3*SLOT}, v58')
        else:
            A('v_lshl_add_u32 v58, v56, 6, v58')
            for g in range(3):
                A(f'v_add_u32 v{VRD+4*g}, {g*3*SLOT}, v58')
                for t in range(1, 4): A(f'v_xor_b32 v{VRD+4*g+t}, {64*t}, v{VRD+4*g}')
    def e1(NT, swz, hooks, st0):
        RS = NT * 64
        def aops(c):
            def op(ks):
                b = RING + 16 * (c % 4) + 4 * ks
                A(f'buffer_load_dwordx4 v[{b}:{b+3}], v{V_L16}, {WS}, s{S_AO} offen offset:{ks*1024} {SC}', tag=('A', c))
                if ks == 3: advance(A, S_AO, 4096, S_AEND, S_ATOT)
            return [lambda ks=ks: op(ks) for ks in range(4)]
        def reads(s):
            c, ks = divmod(s, 4); slot = W3S[c]; r = []
            for t in range(NT):
                b = WF + (s % 2) * 20 + 4 * t
                off = (slot % 3) * SLOT + ks * 5120 + (0 if swz else t * 64)
                base = VRD + (slot // 3) * (4 if swz else 1) + (t if swz else 0)
                r.append(f'ds_read_b64_tr_b16 v[{b}:{b+1}], v{base} offset:{off}')
                r.append(f'ds_read_b64_tr_b16 v[{b+2}:{b+3}], v{base} offset:{off + 8 * RS}')
            return r
        def mf(s):
            c, ks = divmod(s, 4); ab = RING + 16 * (c % 4) + 4 * ks; out = []
            for t in range(NT):
                b = WF + (s % 2) * 20 + 4 * t
                cc = '0' if s == 0 else f'v[{ACC+16*t}:{ACC+16*t+15}]'
                out.append([f'v_mfma_f32_32x32x16_bf16 v[{ACC+16*t}:{ACC+16*t+15}], v[{b}:{b+3}], v[{ab}:{ab+3}], {cc}'])
            return out
        for c in range(D1): run(aops(c))
        mainloop(A, 40, 4, mf, reads, lambda c: ('W3', c), lambda c: aops(c + D1) if c + D1 < 10 else [], hooks, [3, 3, 2, 2, 2] if NT == 5 else [3, 3, 2, 2], st0)
    A(f's_cmp_ge_u32 s{S_M}, 12'); A('s_cbranch_scc1 L_p3_s')
    st = A.save()
    e1_rd_setup(256, True)
    publish(A, PH2X, 0, defer=DEFER)
    stamp(A, 15)
    wait_local(A, PH2X, 0xffff, pend=DEFER)
    stamp(A, 17)
    X = 128
    def p3_a():
        A(f'ds_read_b32 v{X}, v{VXT+2}'); A(f'ds_read_b32 v60, v{VXT+5} offset:256')
        A('v_and_b32 v57, 31, v0'); A('v_lshlrev_b32 v57, 2, v57')
    def p3_b():
        for t in range(4): A(f'ds_read_b32 v{X+4+t}, v57 offset:{EXT - 131072 + 128*t}')
    def p3_z():
        for i in range(1, 4): A(f'v_mov_b32 v{X+i}, 0')
    hooks = {30: [p3_z], 36: [lambda: pw_read(A, C_LP)], 37: [lambda: pw_check(A, C_LP, LP[('ST', 1)], sleep=0), p3_a], 38: [lambda: A('v_add_u32 v57, 131072, v57'), p3_b], 39: [lambda: gelu_consts(A, 60)]}
    e1(4, True, hooks, 18)
    for t in range(4):
        A(f'v_mov_b32 v{16+4*t}, v{X+4+t}')
    for t in range(4):
        A(f'v_mfma_f32_32x32x16_bf16 v[{ACC+16*t}:{ACC+16*t+15}], v[{16+4*t}:{19+4*t}], v[{X}:{X+3}], v[{ACC+16*t}:{ACC+16*t+15}]')
    A(f's_mul_i32 s{SO}, s{S_TT1}, {96*1024}'); A(f's_lshl_b32 s{T0+1}, s{S_M}, 13'); A(f's_add_u32 s{SO}, s{SO}, s{T0+1}'); A(f's_add_u32 s{SO}, s{SO}, {H2}')
    store_tiles(4, lambda t: gelu_pk(A, ACC + 16 * t, 16, 56, 58, 62, T))
    A('s_branch L_p3_done')
    A.label('L_p3_s'); A.restore(st)
    e1_rd_setup(320, False)
    publish(A, PH2X, 0, defer=DEFER); pubn[0] += 1
    stamp(A, 15)
    wait_local(A, PH2O, 0xffff, pend=DEFER)
    stamp(A, 17)
    e1(5, False, {}, 18)
    wait_local(A, PH2X, 0xffff)
    A(f's_sub_u32 s{SO}, s{S_M}, 12'); A(f's_mul_i32 s{SO}, s{SO}, 10240'); A(f's_add_u32 s{SO}, s{SO}, s{S_G1}'); A(f's_add_u32 s{SO}, s{SO}, {SS}')
    store_tiles(5, lambda t: None)
    A.label('L_p3_done'); A.hist = []; A.nop(2)
    stamp(A, 20)
    A(f's_mul_i32 s{T0}, s{S_KW}, 10240')
    A(f'v_add_u32 v{VRD}, s{T0}, v{V_L16}'); A(f'v_add_u32 v{VRD+1}, {3*SLOT}, v{VRD}'); A(f'v_add_u32 v{VRD+2}, {6*SLOT}, v{VRD}')
    unpack(A, ACC, KX1, 10)
    unpack(A, 104, KX, 12)
    red_setup(W4S[5])
    A(f's_mul_i32 s{T0}, s{S_TT2}, {96*1024}'); A(f's_mul_i32 s{T0+1}, s{S_KW}, {48*1024}'); A(f's_add_u32 s{T0}, s{T0}, s{T0+1}'); A(f's_add_u32 s{T0}, s{T0}, {H2}')
    set_stream(A, S_AO, S_AEND, S_ATOT, T0, S_ROT4, 4096, 12)
    publish(A, PH3, 0, defer=DEFER); pubn[0] += 1
    stamp(A, 21)
    wait_local(A, PH3, 0x0fff, pend=DEFER)
    stamp(A, 22)
    def s_load():
        lp_cached(A, LP[('S', 0)])
        A(f'ds_read_b128 v[128:131], v{VXT}'); A(f'ds_read_b128 v[132:135], v{VXT} offset:1024'); A(f'ds_read_b64 v[136:137], v{VXT+1} offset:2048')
    e2(12, W4S, 'W4', False, {}, 23, rel=set(range(6)))
    s_load()
    e2_reduce(16, CP[('W4', 5)])
    A(f'v_mov_b32 v56, {f2u(-LOG2E)}')
    TT = 16
    for i in range(0, 20, 2): A(f'v_pk_mul_f32 v[{TT+i}:{TT+i+1}], v[{ACC+i}:{ACC+i+1}], v[56:57] op_sel_hi:[1,0]')
    for i in range(20): A(f'v_exp_f32 v{TT+i}, v{TT+i}')
    for i in range(0, 20, 2): A(f'v_pk_add_f32 v[{TT+i}:{TT+i+1}], v[{TT+i}:{TT+i+1}], 1.0 op_sel_hi:[1,0]')
    for i in range(20): A(f'v_rcp_f32 v{TT+i}, v{TT+i}')
    unpack(A, 84, 128, 10)
    for i in range(0, 20, 2): A(f'v_pk_mul_f32 v[{ACC+i}:{ACC+i+1}], v[{ACC+i}:{ACC+i+1}], v[{TT+i}:{TT+i+1}]')
    for i in range(0, 20, 2): A(f'v_pk_mul_f32 v[{ACC+i}:{ACC+i+1}], v[{ACC+i}:{ACC+i+1}], v[{84+i}:{85+i}]')
    pack(A, 40, ACC, 20)
    for f in range(5):
        base, off = (VXT + 4, 64 * (f // 2) + 16 * (f % 2)) if f < 4 else (VXT + 3, 128)
        A(f'ds_write_b64 v{base}, v[{40+2*f}:{41+2*f}] offset:{off}')
    for n in range(3): A(f'ds_read_b128 v[{16+4*n}:{19+4*n}], v{VXT} offset:{1024*n}')
    for n in range(3):
        unpack(A, 64 + 8 * n, 16 + 4 * n, 4)
        for i in range(4): A(f'v_pk_add_f32 v[{64+8*n+2*i}:{65+8*n+2*i}], v[{64+8*n+2*i}:{65+8*n+2*i}], v[{104+8*n+2*i}:{105+8*n+2*i}]')
        pack(A, 28 + 4 * n, 64 + 8 * n, 8)
        A(f'buffer_store_dwordx4 v[{28+4*n}:{31+4*n}], v{VROW+n}, s[{SRD_OUT}:{SRD_OUT+3}], s{S_ROWS2} offen {os.environ.get("OUTMOD", "")}')
    stamp(A, 25)
    stamp_out(A)
    A('s_endpgm')

def main(out):
    hdr = open('cdna_kernels/' + NAME + '.s.ref').read().split('; Override launch')[0]
    A = Asm()
    common_prologue(A)
    st = A.save()
    loader(A)
    A.restore(st)
    A.label('L_compute')
    compute(A)
    A.lines += OOL
    A.label('L_end'); A('s_endpgm')
    print(A.stats, 'nops', A.nops, file=sys.stderr)
    kd = f""".section .rodata,"a"
.p2align 6
.amdhsa_kernel {KN}
  .amdhsa_next_free_vgpr 256
  .amdhsa_next_free_sgpr 102
  .amdhsa_accum_offset 256
  .amdhsa_group_segment_fixed_size 0
  .amdhsa_kernarg_size 88
  .amdhsa_user_sgpr_count 2
  .amdhsa_user_sgpr_kernarg_segment_ptr 1
  .amdhsa_system_sgpr_workgroup_id_x 1
.end_amdhsa_kernel
"""
    txt = hdr + '; @launch grid=(256,1,1) block=(512,1,1) lds=163840\n.amdgcn_target "amdgcn-amd-amdhsa--gfx950"\n.text\n' + A.text() + kd
    open(out, 'w').write(txt)

if __name__ == '__main__':
    main(sys.argv[1] if len(sys.argv) > 1 else 'cdna_kernels/' + NAME + '.s')
```
